```python
import torch

def _softmax(x, axis=-1):
    return torch.softmax(x, dim=axis)
def _gelu(x):
    return torch.nn.functional.gelu(x, approximate="tanh")
def _silu(x):
    return torch.nn.functional.silu(x)
def _sigmoid(x):
    return torch.sigmoid(x)
def _layernorm(x, axis=-1, eps=1e-5):
    m = x.mean(dim=axis, keepdim=True)
    v = x.var(dim=axis, keepdim=True, unbiased=False)
    return (x - m) / torch.sqrt(v + eps)
def _scatter_add(tgt, idx, src, axis=0):
    return tgt.clone().index_add_(axis, idx, src)
def _segment_sum(src, seg, n):
    out = torch.zeros((n,) + src.shape[1:], dtype=src.dtype)
    return out.index_add_(0, seg, src)
def _pad(x, pw):
    flat = tuple(v for pair in reversed(pw) for v in pair)
    return torch.nn.functional.pad(x, flat)

kernel_name = 'gather_scatter__molecular_angular_gemnet__graph'

def setup_inputs():

    _w = (lambda a: (lambda t: t.to(torch.bfloat16) if t.is_floating_point() else t)(torch.as_tensor(a)))
    N, deg, De, L = 50000, 16, 16, 2
    E = N * deg
    T = E * deg
    NR = 8
    dist = torch.rand(E).to(float)
    angle = (torch.rand(T) * torch.pi).to(float)
    centers = torch.linspace(0.0, 1.0, NR).to(float)
    ang_freq = torch.arange(1, L + 1).to(float)
    return {
        "m": _w((lambda *s: torch.randn(*s, dtype=torch.bfloat16) * 0.05)(E, De)),
        "idx_in": _w((lambda lo, hi, *s: torch.randint(lo, hi, s))(0, E, T).to(torch.int64)),
        "idx_out": _w((lambda lo, hi, *s: torch.randint(lo, hi, s))(0, E, T).to(torch.int64)),
        "dist": _w(dist),
        "angle": _w(angle),
        "centers": _w(centers),
        "ang_freq": _w(ang_freq),
        "w_rbf": _w((lambda *s: torch.randn(*s, dtype=torch.bfloat16) * 0.2)(NR, De)),
        "w_sbf": _w((lambda *s: torch.randn(*s, dtype=torch.bfloat16) * 0.2)(NR * L, De)),
        "w_down": _w((lambda *s: torch.randn(*s, dtype=torch.bfloat16) * 0.2)(De, De)),
        "w_up": _w((lambda *s: torch.randn(*s, dtype=torch.bfloat16) * 0.2)(De, De)),
    }

def reference(m, idx_in, idx_out, dist, angle, centers, ang_freq, w_rbf, w_sbf, w_down, w_up):
    E, De = m.shape[0], m.shape[1]
    NR = centers.shape[0]
    L = ang_freq.shape[0]
    rbf = torch.exp(-10.0 * (dist[:, None] - centers[None, :]) ** 2)
    cbf = torch.cos(ang_freq[None, :] * angle[:, None])
    rbf_t = rbf[idx_out]
    sbf = torch.reshape(rbf_t[:, :, None] * cbf[:, None, :], (-1, NR * L))
    x = (m[idx_in] @ w_down) * (sbf @ w_sbf)
    agg = _segment_sum(x, idx_out, E)
    return m + (agg @ w_up) * (rbf @ w_rbf)
```

```python
import sys, importlib
sys.path.insert(0, 'gen')
import common, lint, passa
def source(parts):
    src = ''
    for name, nthreads, lds, lines, vg, sg in parts:
        src += f'; @launch kernel={name} grid=(256,1,1) block=({nthreads},1,1) lds={lds}\n'
    src += '.amdgcn_target "amdgcn-amd-amdhsa--gfx950"\n.text\n'
    for name, nthreads, lds, lines, vg, sg in parts:
        lines, n = lint.fix(lines)
        print(name, 'instrs', len(lines), 'nop states inserted', n, file=sys.stderr)
        src += common.head(name) + '\n'.join(lines) + '\n' + common.KD.format(name=name, vgpr=vg, sgpr=sg, acc=vg)
    return src
if __name__ == '__main__':
    parts = [(passa.NAME, 512, passa.LDS, passa.gen(), 256, 80)]
    try:
        import passb
        parts.append((passb.NAME, 512, passb.LDS, passb.gen(), 256, 100))
    except ImportError:
        pass
    open(sys.argv[1], 'w').write(source(parts))
```

```python
E = 800000; T = 12800000; NCU = 256; TILE = 50000; EPC = 3125
TSTRIDE = TILE*8
REC_BYTES = NCU*TSTRIDE
TAB_OFF = REC_BYTES
TAB_BYTES = 65536*32
END_OFF = TAB_OFF + TAB_BYTES
END_BYTES = 65536*8
K_M, K_II, K_IO, K_DIST, K_ANG, K_CEN, K_FREQ, K_WRBF, K_WSBF, K_WD, K_WU, K_OUT, K_DBG, K_WS = [8*i for i in range(14)]
class Asm:
    def __init__(s): s.l = []
    def __call__(s, t):
        for x in t.strip('\n').split('\n'):
            x = x.strip()
            if not x: continue
            s.l.append(x if x.endswith(':') else '    ' + x)
    def label(s, n): s.l.append(n + ':')
def srd(a, r, lo, hi, off_s, size):
    if off_s is None:
        a(f's_mov_b32 s{r}, {lo}\ns_mov_b32 s{r+1}, {hi}')
    else:
        a(f's_add_u32 s{r}, {lo}, {off_s}\ns_addc_u32 s{r+1}, {hi}, 0')
    a(f's_mov_b32 s{r+2}, {size}\ns_mov_b32 s{r+3}, 0x20000')
KD = """.section .rodata,"a"
.p2align 6
.amdhsa_kernel {name}
  .amdhsa_next_free_vgpr {vgpr}
  .amdhsa_next_free_sgpr {sgpr}
  .amdhsa_accum_offset {acc}
  .amdhsa_group_segment_fixed_size 0
  .amdhsa_kernarg_size 112
  .amdhsa_user_sgpr_count 2
  .amdhsa_user_sgpr_kernarg_segment_ptr 1
  .amdhsa_system_sgpr_workgroup_id_x 1
.end_amdhsa_kernel
.text
"""
def head(name):
    return f""".globl {name}
.p2align 8
.type {name},@function
"""
```

```python
import re
TRANS = ('v_exp_f32','v_log_f32','v_rcp_f32','v_rsq_f32','v_sqrt_f32','v_sin_f32','v_cos_f32')
def regs_of(tok):
    tok = tok.strip()
    tok = tok.lstrip('-')
    m = re.fullmatch(r'abs\((.*)\)', tok)
    if m: tok = m.group(1)
    m = re.fullmatch(r'([vsa])(\d+)', tok)
    if m: return {(m.group(1), int(m.group(2)))}
    m = re.fullmatch(r'([vsa])\[(\d+):(\d+)\]', tok)
    if m: return {(m.group(1), k) for k in range(int(m.group(2)), int(m.group(3))+1)}
    if tok == 'vcc': return {('s','vcc_lo'),('s','vcc_hi')}
    if tok in ('vcc_lo','vcc_hi'): return {('s',tok)}
    if tok == 'exec': return {('s','exec_lo'),('s','exec_hi')}
    if tok in ('exec_lo','exec_hi'): return {('s',tok)}
    if tok == 'm0': return {('s','m0')}
    return set()
VCC = {('s','vcc_lo'),('s','vcc_hi')}; EXEC = {('s','exec_lo'),('s','exec_hi')}
class I:
    def __init__(s, text):
        s.text = text
        t = text.split(';')[0].strip()
        s.label = None; s.op = None
        if t.endswith(':'): s.label = t[:-1]; return
        if not t or t.startswith('.'): return
        p = t.split(None, 1); s.op = p[0]
        rest = p[1] if len(p) > 1 else ''
        toks = [x.strip() for x in re.split(r',(?![^\[]*\])', rest)] if rest else []
        s.mods = ''
        if toks:
            q = toks[-1].split(None, 1)
            toks[-1] = q[0]
            if len(q) > 1: s.mods = q[1]
        s.toks = toks
        op = s.op
        s.valu = op.startswith('v_') and not op.startswith('v_mfma')
        s.mfma = op.startswith('v_mfma')
        s.ds = op.startswith('ds_'); s.vmem = op.startswith('buffer_') or op.startswith('global_')
        s.salu = op.startswith('s_')
        s.dpp = '_dpp' in op; s.sdwa = '_sdwa' in op
        base = op.replace('_e32','').replace('_e64','').replace('_sdwa','').replace('_dpp','')
        s.base = base
        s.trans = base in TRANS
        d = set(); u = set(); s.srcA=set(); s.srcC=set(); s.stdata=set()
        R = [regs_of(x) for x in toks]
        if s.valu:
            d |= R[0]
            srcs = R[1:]
            if base.startswith('v_cmpx'): d |= EXEC
            if base in ('v_add_co_u32','v_sub_co_u32','v_addc_co_u32'): d |= R[1]; srcs = R[2:]
            for r in srcs: u |= r
            if base in ('v_fmac_f32','v_writelane_b32') or 'UNUSED_PRESERVE' in s.mods or s.dpp: u |= R[0]
            if base.startswith('v_permlane'): d |= R[1]; u |= R[0]
            if base == 'v_cndmask_b32' and len(toks) == 3: u |= VCC
        elif s.mfma:
            d |= R[0]; s.srcA = R[1] | R[2]; s.srcC = R[3]; u |= s.srcA | s.srcC
        elif s.ds:
            if re.match(r'ds_read|ds_.*_rtn|ds_bpermute|ds_permute|ds_swizzle', op):
                d |= R[0]
                for r in R[1:]: u |= r
            else:
                for r in R: u |= r
        elif s.vmem:
            lds = 'lds' in s.mods.split() or 'load_lds' in op
            s.ldsdma = lds
            if 'load' in op and not lds:
                d |= R[0]
                if 'd16' in op: u |= R[0]
                for r in R[1:]: u |= r
            else:
                for r in R: u |= r
                if 'store' in op:
                    dat = R[0] if op.startswith('buffer_') else R[1]
                    if len(dat) >= 3: s.stdata = dat
            if lds: u |= {('s','m0')}
        elif s.salu:
            if op.startswith('s_cmp') or op.startswith('s_cbranch') or op.startswith('s_bitcmp') or op in ('s_branch','s_waitcnt','s_barrier','s_nop','s_endpgm','s_setprio','s_sleep'):
                for r in R: u |= r
            else:
                if R: d |= R[0]
                for r in R[1:]: u |= r
                if 'saveexec' in op: d |= EXEC
        s.d = d; s.u = u
        s.states = 1
        if op == 's_nop': s.states = int(toks[0], 0) + 1
def need(p, c):
    n = 0
    vd = {r for r in p.d if r[0] in 'va'}; sd = {r for r in p.d if r[0] == 's'}
    cu_v = {r for r in c.u if r[0] in 'va'}; cu_s = {r for r in c.u if r[0] == 's'}
    if p.valu:
        if vd & cu_v:
            if c.dpp: n = max(n, 2)
            if c.base in ('v_readlane_b32','v_readfirstlane_b32'): n = max(n, 1)
            if c.base.startswith('v_permlane'): n = max(n, 2)
            if c.mfma: n = max(n, 2)
            if p.trans and c.valu and not c.trans: n = max(n, 1)
            if p.trans and c.valu and c.trans: n = max(n, 1)
            if p.sdwa and 'dst_sel:DWORD' not in p.mods and 'dst_sel' in p.mods and c.valu: n = max(n, 1)
        if p.sdwa and 'dst_sel:DWORD' not in p.mods and 'dst_sel' in p.mods and c.valu and (vd & c.d): n = max(n, 1)
        sdx = sd - EXEC
        if sdx & cu_s:
            if c.valu: n = max(n, 2)
            if c.base in ('v_readlane_b32','v_writelane_b32') : n = max(n, 4)
            if c.vmem: n = max(n, 5)
        if sd & EXEC:
            if c.dpp or c.vmem: n = max(n, 5)
            if c.valu and (cu_s & EXEC): n = max(n, 2)
            if c.base in ('v_readlane_b32','v_readfirstlane_b32','v_writelane_b32') or c.base.startswith('v_permlane') or c.mfma: n = max(n, 4)
    if p.salu and ('s','m0') in p.d and c.vmem and getattr(c,'ldsdma',False): n = max(n, 1)
    if p.vmem and p.stdata:
        w = {r for r in c.d if r[0] in 'va'}
        if w & p.stdata: n = max(n, 2 if c.valu else 1)
    if p.mfma:
        ps = 8 if '32x32' in p.op else 4
        full = {4: 8, 8: 12}[ps]
        if c.mfma:
            if c.srcA & vd: n = max(n, full)
            if c.srcC & vd and not (c.srcC == vd and p.op == c.op): n = max(n, {4: 6, 8: 10}[ps])
            if (c.d & vd) and not (c.srcC == vd): n = max(n, {4: 6, 8: 10}[ps])
        elif c.valu or c.ds or c.vmem:
            if (cu_v & vd) or (c.d & vd): n = max(n, full)
        if c.valu and (c.d & p.srcC): n = max(n, {4: 3, 8: 7}[ps])
    return n
def fix(lines, maxlook=14, verbose=False):
    total = 0
    while True:
        ins = [I(l) for l in lines]
        idx = [k for k, x in enumerate(ins) if x.op]
        lab = {x.label: k for k, x in enumerate(ins) if x.label}
        nxt_real = {}
        last = None
        for k in range(len(ins)-1, -1, -1):
            if ins[k].op: last = k
            nxt_real[k] = last
        preds = {k: [] for k in idx}
        for a, k in enumerate(idx):
            x = ins[k]
            if x.op.startswith('s_cbranch') or x.op == 's_branch':
                t = nxt_real[lab[x.toks[0]]]
                preds[t].append(k)
            if x.op not in ('s_branch','s_endpgm') and a+1 < len(idx): preds[idx[a+1]].append(k)
        add = {}
        for k in idx:
            c = ins[k]
            if c.op in ('s_nop','s_waitcnt','s_barrier','s_branch'): continue
            stack = [(p, 0) for p in preds[k]]; seen = {}
            while stack:
                p, dist = stack.pop()
                if dist >= maxlook: continue
                if seen.get(p, 99) <= dist: continue
                seen[p] = dist
                n = need(ins[p], c)
                if n > dist:
                    add[k] = max(add.get(k, 0), n - dist)
                    if verbose: print('hazard', ins[p].text.strip(), '->', c.text.strip(), n, dist)
                for q in preds[p]: stack.append((q, dist + ins[p].states))
        if not add: return lines, total
        k = min(add)
        out = []; lastfix = -100
        for j, l in enumerate(lines):
            if j in add and j - lastfix > 20:
                out.append(f'    s_nop {add[j]-1}'); total += add[j]; lastfix = j
            out.append(l)
        lines = out
```

```python
from common import *
NAME = 'bin_kernel'
LDS = 152576
H = 25000
def gen(PF=8):
    a = Asm()
    NGR = 25
    R0 = lambda k: 56 + k
    R1 = lambda k: 156 + k
    TA = lambda q: 40 + 2*(q % PF)
    a.label(NAME)
    a(f'''
    s_cmp_ge_u32 s2, {NCU}
    s_cbranch_scc1 A_end
    s_load_dwordx4 s[36:39], s[0:1], {K_II}
    s_load_dwordx2 s[40:41], s[0:1], {K_ANG}
    s_load_dwordx2 s[42:43], s[0:1], {K_FREQ}
    s_load_dwordx2 s[44:45], s[0:1], {K_WS}
    s_mul_i32 s46, s2, {TILE*4}
    s_mul_i32 s47, s2, {TILE*2}
    s_mul_i32 s48, s2, {TSTRIDE}
    v_lshlrev_b32 v1, 4, v0                      ; x*16
    v_lshlrev_b32 v2, 3, v0                      ; x*8
    v_mov_b32 v3, 1
    v_mov_b32 v4, 0
    v_mov_b32 v5, 0
    v_mov_b32 v6, 0
    v_mov_b32 v7, 0
    s_waitcnt lgkmcnt(0)
    s_load_dword s49, s[42:43], 0
    ''')
    srd(a, 4, 's36', 's37', 's46', TILE*4)
    srd(a, 8, 's38', 's39', 's46', TILE*4)
    srd(a, 12, 's40', 's41', 's47', TILE*2)
    def loads(q):
        a(f's_mov_b32 s50, {q*8192}\ns_mov_b32 s51, {q*4096}')
        a(f'buffer_load_dwordx4 v[{R0(4*q)}:{R0(4*q+3)}], v1, s[4:7], s50 offen nt')
        a(f'buffer_load_dwordx4 v[{R1(4*q)}:{R1(4*q+3)}], v1, s[8:11], s50 offen nt')
        a(f'buffer_load_dwordx2 v[{TA(q)}:{TA(q)+1}], v2, s[12:15], s51 offen nt')
    for q in range(PF): loads(q)
    for k in range(4): a(f'ds_write_b128 v1, v[4:7] offset:{k*8192}')
    srd(a, 16, 's44', 's45', 's48', H*8)
    srd(a, 20, 's44', 's45', TAB_OFF, TAB_BYTES + END_BYTES)
    a(f'''
    s_mov_b32 s24, 1374390
    s_mov_b32 s25, {-EPC}
    s_mov_b32 s26, 687194
    s_mov_b32 s27, 0xffff0000
    s_mov_b32 s28, 0xffff
    s_mov_b32 s29, {H}
    s_mov_b32 s32, {(TILE - 24*2048)//4}
    v_cmp_gt_u32 s[30:31], s32, v0
    v_lshrrev_b32 v8, 6, v0
    s_waitcnt lgkmcnt(0)
    v_readfirstlane_b32 s3, v8
    s_lshl_b32 s33, s49, 16
    s_and_b32 s34, s49, 0xffff0000
    v_mov_b32 v9, s33
    v_mov_b32 v10, s34
    v_mul_f32 v9, 0.15915494, v9                 ; f0/(2pi)
    v_mul_f32 v10, 0.15915494, v10               ; f1/(2pi)
    s_barrier
    ''')
    for q in range(NGR):
        issued = min(NGR, q + PF)
        a(f's_waitcnt vmcnt({3*(issued - q - 1)})')
        if q == NGR-1: a('s_mov_b64 exec, s[30:31]')
        td = [12, 13, 14, 15]; tp = [16, 17, 18, 19]; tl = [20, 21, 22, 23]
        for e in range(4): a(f'v_mul_hi_u32_u24 v{td[e]}, s24, v{R1(4*q+e)}')
        for e in range(4): a(f'v_mul_hi_u32_u24 v{tp[e]}, s26, v{R0(4*q+e)}')
        for e in range(4): a(f'v_mad_i32_i24 v{tl[e]}, v{td[e]}, s25, v{R1(4*q+e)}')
        for e in range(4): a(f'v_and_b32 v{tp[e]}, -4, v{tp[e]}')
        for e in range(4): a(f'v_lshl_or_b32 v{tp[e]}, v{td[e]}, 7, v{tp[e]}')
        for e in range(4):
            a(f'ds_add_u32 v{tp[e]}, v3')
            a(f'v_lshl_or_b32 v{R0(4*q+e)}, v{R0(4*q+e)}, 12, v{tl[e]}')
            if e % 2 == 0: a(f'v_lshl_or_b32 v{R1(4*q+e)}, v{TA(q)+e//2}, 16, v{tp[e]}')
            else: a(f'v_and_or_b32 v{R1(4*q+e)}, v{TA(q)+e//2}, s27, v{tp[e]}')
        if q + PF < NGR: loads(q + PF)
    a('s_mov_b64 exec, -1\ns_waitcnt lgkmcnt(0)\ns_barrier')
    C = 12; Q = 28
    a('v_lshlrev_b32 v11, 6, v0')
    for k in range(4): a(f'ds_read_b128 v[{C+4*k}:{C+4*k+3}], v11 offset:{16*k}')
    a('s_waitcnt lgkmcnt(0)')
    for k in range(1, 16): a(f'v_add_u32 v{C+k}, v{C+k}, v{C+k-1}')
    a(f'v_mov_b32 v44, v{C+15}')
    for sh in ('row_shr:1 row_mask:0xf', 'row_shr:2 row_mask:0xf', 'row_shr:4 row_mask:0xf', 'row_shr:8 row_mask:0xf', 'row_bcast:15 row_mask:0xa', 'row_bcast:31 row_mask:0xc'):
        a(f'v_add_u32_dpp v44, v44, v44 {sh} bank_mask:0xf')
    a(f'''
    v_readlane_b32 s35, v44, 63
    s_lshl_b32 s50, s3, 2
    s_add_u32 s50, s50, 32768
    v_mov_b32 v45, s50
    v_mov_b32 v46, s35
    s_mov_b64 exec, 1
    ds_write_b32 v45, v46
    s_mov_b64 exec, -1
    v_sub_u32 v44, v44, v{C+15}
    v_mov_b32 v45, 32768
    s_waitcnt lgkmcnt(0)
    s_barrier
    ds_read_b128 v[48:51], v45
    ds_read_b128 v[52:55], v45 offset:16
    s_mov_b32 s35, 0
    s_waitcnt lgkmcnt(0)
    ''')
    for w in range(7):
        a(f'v_readfirstlane_b32 s50, v{48+w}\ns_cmp_gt_u32 s3, {w}\ns_cselect_b32 s50, s50, 0\ns_add_u32 s35, s35, s50')
    a(f'v_add_u32 v{Q}, s35, v44')
    for k in range(1, 16): a(f'v_add_u32 v{Q+k}, v{Q}, v{C+k-1}')
    a(f'v_add_u32 v44, v{Q}, v{C+15}')
    for k in range(4): a(f'ds_write_b128 v11, v[{Q+4*k}:{Q+4*k+3}] offset:{16*k}')
    for k in range(4): a(f'v_lshl_or_b32 v{48+k}, v{Q+4*k+2}, 16, v{Q+4*k}')
    a(f'''
    v_lshrrev_b32 v45, 1, v0
    v_and_b32 v46, 1, v0
    v_lshlrev_b32 v47, 13, v45
    v_lshl_or_b32 v47, v46, 4, v47               ; d*8192 + hh*16
    v_lshlrev_b32 v45, 11, v45
    v_lshl_or_b32 v45, v46, 2, v45               ; d*2048 + hh*4
    s_lshl_b32 s50, s2, 5
    s_lshl_b32 s51, s2, 3
    s_add_u32 s51, s51, {TAB_BYTES}
    buffer_store_dwordx4 v[48:51], v47, s[20:23], s50 offen
    buffer_store_dword v44, v45, s[20:23], s51 offen
    s_waitcnt lgkmcnt(0)
    s_barrier
    ''')
    NR = 8
    ring = [12 + k for k in range(NR)]; rr = [20 + k for k in range(NR)]
    def fin(k):
        a(f'v_bfi_b32 v{R1(k)}, s28, v{rr[k % NR]}, v{R1(k)}')
    for k in range(96):
        if k >= NR:
            a(f's_waitcnt lgkmcnt({NR-1})'); fin(k - NR)
        a(f'v_and_b32 v{ring[k % NR]}, s28, v{R1(k)}')
        a(f'ds_add_rtn_u32 v{rr[k % NR]}, v{ring[k % NR]}, v3')
    a('s_waitcnt lgkmcnt(0)')
    for k in range(96 - NR, 96): fin(k)
    a('s_mov_b64 exec, s[30:31]')
    for k in range(96, 100):
        a(f'v_and_b32 v{ring[k % NR]}, s28, v{R1(k)}')
        a(f'ds_add_rtn_u32 v{rr[k % NR]}, v{ring[k % NR]}, v3')
    a('s_waitcnt lgkmcnt(0)')
    for k in range(96, 100): fin(k)
    a('s_mov_b64 exec, -1')
    a('s_not_b64 s[52:53], s[30:31]\ns_mov_b64 exec, s[52:53]')
    for k in range(96, 100): a(f'v_mov_b32 v{R1(k)}, -1')
    a(f'''
    s_mov_b64 exec, -1
    v_lshlrev_b32 v4, 2, v0
    v_add_u32 v5, {2*H}, v2
    v_add_u32 v6, {2*H + 65536}, v2
    s_barrier
    ''')
    for c in range(2):
        for k0 in range(0, 100, 4):
            t = [12, 13, 14, 15]; a2 = [16, 17, 18, 19]; a4 = [20, 21, 22, 23]
            for e in range(4):
                if c == 0: a(f'v_and_b32 v{t[e]}, s28, v{R1(k0+e)}')
                else: a(f'v_subrev_u32_sdwa v{t[e]}, s29, v{R1(k0+e)} dst_sel:DWORD dst_unused:UNUSED_PAD src0_sel:DWORD src1_sel:WORD_0')
            for e in range(4): a(f'v_cmp_gt_u32 s[{54+2*e}:{55+2*e}], s29, v{t[e]}')
            for e in range(4): a(f'v_add_u32 v{a2[e]}, v{t[e]}, v{t[e]}')
            for e in range(4): a(f'v_add_u32 v{a4[e]}, v{a2[e]}, v{a2[e]}')
            for e in range(4):
                a(f's_mov_b64 exec, s[{54+2*e}:{55+2*e}]')
                a(f'ds_write_b32 v{a4[e]}, v{R0(k0+e)} offset:{2*H}')
                a(f'ds_write_b16_d16_hi v{a2[e]}, v{R1(k0+e)}')
            a('s_mov_b64 exec, -1')
        a('s_waitcnt lgkmcnt(0)\ns_barrier')
        if c == 1: a(f's_mov_b32 s18, {2*H*8}')
        NI = 25; RD = 3
        QD = lambda it: 24 + 4*(it % 4)
        AR = lambda it: 40 + (it % 4)
        def rd(it):
            base, off = (5, it*4096) if it < 16 else (6, (it-16)*4096)
            a(f'ds_read_b64 v[{QD(it)}:{QD(it)+1}], v{base} offset:{off}')
            a(f'ds_read_b32 v{AR(it)}, v4 offset:{it*2048}')
        for it in range(RD-1): rd(it)
        for it in range(NI):
            if it + RD - 1 < NI: rd(it + RD - 1)
            a(f's_waitcnt lgkmcnt({2*min(RD-1, NI-1-it)})')
            q = QD(it); ar = AR(it)
            a(f'''
            v_lshlrev_b32 v12, 16, v{ar}
            v_and_b32 v13, s27, v{ar}
            v_mov_b32 v{q+2}, v{q+1}
            v_mul_f32 v14, v9, v12
            v_mul_f32 v15, v10, v12
            v_mul_f32 v16, v9, v13
            v_mul_f32 v17, v10, v13
            v_fract_f32 v14, v14
            v_fract_f32 v15, v15
            v_fract_f32 v16, v16
            v_fract_f32 v17, v17
            v_cos_f32 v14, v14
            v_cos_f32 v15, v15
            v_cos_f32 v16, v16
            v_cos_f32 v17, v17
            s_mov_b32 s50, {c*H*8 + it*8192}
            v_cvt_pk_bf16_f32 v{q+1}, v14, v15
            v_cvt_pk_bf16_f32 v{q+3}, v16, v17
            buffer_store_dwordx4 v[{q}:{q+3}], v1, s[16:19], s50 offen
            ''')
        if c == 0: a('s_barrier')
    a.label('A_end')
    a('s_endpgm')
    return a.l
```

```python
from common import *
NAME = 'agg_kernel'
NPH = 16
CNT = 0; FLAG = 1600; TBL = 1664; SPILL = 7808; PST = 16000; STG = 32384; LIST = 56960
LSTR = 264; LPAR = 197*LSTR
LDS = 163840
NV = 25
MAXSW = 20000
vLB, vLB24, vHALF, vKC, vPR, vTR, vNEG, vZ, vINC, vK2, vSB = 1, 2, 3, 4, 5, 6, 9, 10, 11, 12, 13
vP2, vE = 14, 16
RING = lambda v: 18 + 2*(v % 5)
X, Y, M, Q0 = 28, 36, 40, 44
T0, T1, T2, vF = 52, 53, 54, 55
ACC = lambda v: 56 + 8*v
sSEL0, sSEL1, sNM32, sLIM, sM19, s3FC = 16, 17, 18, 19, 20, 21
sM0 = 22; sU, sUE, sSP, sRES, sDID = 25, 26, 27, 28, 29
sLIVE, sSKIP, sSW, sSPB, sPH, sST = 30, 32, 34, 48, 50, 51
sNG = 52
def sp(r): return f's[{r}:{r+1}]'
def vp(r, n=2): return f'v[{r}:{r+n-1}]'

class Seq:
    def __init__(s): s.o = []
    def __call__(s, t, cls=None, tag=None, maybe=False):
        ls = [x.strip() for x in t.strip('\n').split('\n') if x.strip()]
        for x in ls:
            c = 'v' if x.startswith('buffer_') else ('l' if x.startswith('ds_') else None)
            s.o.append(dict(t=x, c=c, tag=tag if c else None, maybe=maybe))
    def wait(s, c, tags): s.o.append(dict(t=None, c=None, w=c, tags=tags))
    def resolve(s, a, cyclic):
        n = len(s.o)
        for k, x in enumerate(s.o):
            if x['t'] is not None: a(x['t']); continue
            cnt = 0; found = None; j = k - 1; steps = 0
            while steps < n:
                if j < 0:
                    if not cyclic: break
                    j += n
                y = s.o[j]
                if y['c'] == x['w']:
                    if y['tag'] in x['tags']: found = cnt; break
                    if not y['maybe']: cnt += 1
                j -= 1; steps += 1
            assert found is not None, x
            a(f's_waitcnt vmcnt({min(found,63)})' if x['w'] == 'v' else f's_waitcnt lgkmcnt({min(found,15)})')

def gen(NS=6, APOS=(0,3,7,10,14,17), DA=6):
    a = Asm(); stubs = Asm()
    uid = [0]
    def L1(q, sig):
        q(f'''
        s_add_u32 s36, s{sU}, {sig}
        s_lshr_b32 s{sPH}, s36, 2
        s_and_b32 s38, s36, 3
        s_mul_i32 s38, s38, 192
        s_min_u32 s39, s{sPH}, {NPH-1}
        v_add_u32 v{T0}, s38, v{vSB}
        v_add_u32 v{T1}, s39, v{T0}
        ''')
        q(f'ds_read_b64 {vp(vP2)}, v{T0} offset:16\nds_read_u8 v{vE}, v{T1}', tag=('ent', sig))
    def L2(q, sig, quad, m0, m1):
        uid[0] += 1; k = uid[0]
        q.wait('l', [('ent', sig)])
        q(f's_cmp_ge_u32 s{sPH}, {NPH}\ns_cbranch_scc1 B_tail{k}\nB_tailb{k}:')
        stubs(f'B_tail{k}:\nv_mov_b32 v{vE}, s{sPH}\ns_branch B_tailb{k}')
        q(f'''
        v_lshl_add_u32 v{T0}, v{vE}, 4, v{vK2}
        v_sub_u32_sdwa v{T1}, v{T0}, v{vP2+1} dst_sel:DWORD dst_unused:UNUSED_PAD src0_sel:DWORD src1_sel:WORD_1
        v_lshl_add_u32 v{T0}, v{T0}, 3, v{vP2}
        v_cmp_lt_u32_sdwa {sp(m0)}, v{T1}, v{vP2+1} src0_sel:DWORD src1_sel:WORD_0
        v_add_u32 v{T1}, 1, v{T1}
        v_cmp_lt_u32_sdwa {sp(m1)}, v{T1}, v{vP2+1} src0_sel:DWORD src1_sel:WORD_0
        s_or_b64 vcc, {sp(m0)}, {sp(m1)}
        v_cndmask_b32 v{T0}, -1, v{T0}, vcc
        ''')
        if sig == 0: q(f's_andn2_b64 {sp(m0)}, {sp(m0)}, {sp(sSKIP)}')
        q(f'buffer_load_dwordx4 {vp(quad,4)}, v{T0}, s[8:11], 0 offen', tag=('rec', sig))
    def A1(q, sig, quad, masks, par, live=True):
        for h in range(2):
            q(f'v_lshrrev_b32 v{T0+h}, 2, v{quad+2*h}')
        for h in range(2):
            q(f'v_and_b32 v{T0+h}, s{s3FC}, v{T0+h}')
        for h in range(2):
            q(f's_and_b64 exec, {sp(masks[h])}, {sp(sLIVE)}' if live else f's_mov_b64 exec, {sp(masks[h])}')
            q(f'ds_add_rtn_u32 v{vP2+h}, v{T0+h}, v{vINC} offset:{CNT+800*par}', tag=('ret', sig), maybe=True)
        q('s_mov_b64 exec, -1')
    def A2(q, sig, quad, masks, live=True):
        for h in range(2):
            uid[0] += 1; k = uid[0]
            q(f's_and_b64 exec, {sp(masks[h])}, {sp(sLIVE)}' if live else f's_mov_b64 exec, {sp(masks[h])}')
            q(f'''
            v_cmp_le_u32 vcc, s{sLIM}, v{vP2+h}
            v_and_b32 v{T0}, s{sM19}, v{vP2+h}
            s_cbranch_vccnz B_sp{k}
            B_spb{k}:
            ''')
            q(f'ds_write_b64 v{T0}, {vp(quad+2*h)}', maybe=True)
            stubs(f'''
            B_sp{k}:
            v_mbcnt_lo_u32_b32 v{T1}, vcc_lo, 0
            v_mbcnt_hi_u32_b32 v{T1}, vcc_hi, v{T1}
            s_lshl_b32 s36, s{sSP}, 3
            s_add_u32 s36, s36, s{sSPB}
            v_lshl_add_u32 v{T1}, v{T1}, 3, s36
            s_bcnt1_i32_b64 s37, vcc
            s_add_u32 s{sSP}, s{sSP}, s37
            s_andn2_b64 s[36:37], exec, vcc
            s_mov_b64 exec, vcc
            ds_write_b64 v{T1}, {vp(quad+2*h)}
            s_mov_b64 exec, s[36:37]
            ''')
            if live:
                stubs(f'''
                s_cmp_le_u32 s{sSP}, 64
                s_cbranch_scc1 B_spb{k}
                s_mov_b64 {sp(sLIVE)}, 0
                s_lshl_b32 s{sRES}, s{sU}, 1
                s_add_u32 s{sRES}, s{sRES}, {2*sig+h+1}
                ''')
            stubs(f's_branch B_spb{k}')
        q('s_mov_b64 exec, -1')
    def sweep_end(q):
        uid[0] += 1; k = uid[0]
        q(f'''
        s_add_u32 s{sU}, s{sU}, {NS}
        s_mov_b64 {sp(sSKIP)}, 0
        s_cmp_eq_u32 s{sLIVE}, 0
        s_cbranch_scc1 B_st{k}
        B_stb{k}:
        s_add_u32 s{sSW}, s{sSW}, 1
        s_waitcnt lgkmcnt(0)
        s_barrier
        ''')
        stubs(f'''
        B_st{k}:
        s_lshr_b32 s{sU}, s{sRES}, 1
        s_bitcmp1_b32 s{sRES}, 0
        s_cselect_b64 {sp(sSKIP)}, -1, 0
        s_mov_b64 {sp(sLIVE)}, -1
        s_branch B_stb{k}
        ''')
    def reappend(q, par):
        uid[0] += 1; k = uid[0]
        q(f'''
        s_cmp_lt_u32 s{sU}, s{sUE}
        s_cselect_b32 s{sDID}, 1, 0
        s_cmp_lg_u32 s{sSP}, 0
        s_cbranch_scc1 B_ra{k}
        B_rab{k}:
        ''')
        r = Seq()
        r(f'''
        B_ra{k}:
        s_mov_b32 s{sDID}, 1
        v_mbcnt_lo_u32_b32 v{T0}, -1, 0
        v_mbcnt_hi_u32_b32 v{T0}, -1, v{T0}
        v_lshl_add_u32 v{T1}, v{T0}, 3, s{sSPB}
        ds_read_b64 {vp(Q0)}, v{T1}
        ds_read_b64 {vp(Q0+2)}, v{T1} offset:512
        v_cmp_gt_u32 s[40:41], s{sSP}, v{T0}
        v_add_u32 v{T0}, 64, v{T0}
        v_cmp_gt_u32 s[42:43], s{sSP}, v{T0}
        s_mov_b32 s{sSP}, 0
        s_waitcnt lgkmcnt(0)
        ''')
        A1(r, 99, Q0, (40, 42), par, live=False)
        r('s_waitcnt lgkmcnt(0)')
        A2(r, 99, Q0, (40, 42), live=False)
        r(f'''
        s_waitcnt lgkmcnt(0)
        s_cmp_le_u32 s{sSP}, 64
        s_cbranch_scc1 B_rab{k}
        s_mov_b64 {sp(sLIVE)}, 0
        s_lshl_b32 s{sRES}, s{sU}, 1
        s_and_b32 s36, s{sSKIP}, 1
        s_add_u32 s{sRES}, s{sRES}, s36
        s_branch B_rab{k}
        ''')
        tmp = Asm(); r.resolve(tmp, False); late.append(tmp.l)
    late = []

    a.label(NAME)
    a(f'''
    s_cmp_ge_u32 s2, {NCU}
    s_cbranch_scc1 B_end
    s_load_dwordx2 s[54:55], s[0:1], {K_M}
    s_load_dwordx2 s[56:57], s[0:1], {K_WS}
    v_lshrrev_b32 v14, 6, v0
    v_lshlrev_b32 v15, 4, v0                     ; x*16
    v_lshlrev_b32 v16, 2, v0                     ; x*4
    v_readfirstlane_b32 s3, v14
    s_lshl_b32 s36, s2, 13
    s_lshl_b32 s37, s2, 11
    s_add_u32 s37, s37, {TAB_BYTES}
    s_waitcnt lgkmcnt(0)
    ''')
    srd(a, 12, 's56', 's57', TAB_OFF, TAB_BYTES + END_BYTES)
    a(f'''
    buffer_load_dwordx4 v[28:31], v15, s[12:15], s36 offen
    buffer_load_dword v32, v16, s[12:15], s37 offen
    ''')
    srd(a, 4, 's54', 's55', None, E*32)
    srd(a, 8, 's56', 's57', None, REC_BYTES)
    a(f'''
    v_mov_b32 v44, -1
    v_mov_b32 v45, 0
    v_mov_b32 v46, -1
    v_mov_b32 v47, 0
    v_mov_b32 v48, 0
    v_mov_b32 v49, 0
    v_mov_b32 v50, 0
    v_mov_b32 v51, 0
    v_add_u32 v17, {LIST}, v15
    v_add_u32 v18, {LIST + 8*8192}, v15
    ''')
    for k in range(13):
        a(f'ds_write_b128 v{17 if k < 8 else 18}, v[44:47] offset:{(k % 8)*8192}')
    for k in range(5): a(f'ds_write_b128 v15, v[48:51] offset:{PST + k*8192}')
    a(f'''
    s_movk_i32 s38, {LSTR}
    v_mov_b32 v17, {LIST}
    v_mad_u32_u24 v17, v0, s38, v17
    v_add_u32 v18, {LPAR}, v17
    v_cmp_gt_u32 vcc, 200, v0
    s_mov_b64 exec, vcc
    ds_write_b32 v16, v17 offset:{CNT}
    ds_write_b32 v16, v18 offset:{CNT+800}
    ds_write_b32 v48, v48 offset:{FLAG}
    s_mov_b64 exec, -1
    ''')
    a(f'''
    s_mov_b32 s{sSEL0}, 0x05040100
    s_mov_b32 s{sSEL1}, 0x07060302
    s_mov_b32 s{sNM32}, 0xffffffe0
    s_mov_b32 s{sLIM}, {32 << 19}
    s_mov_b32 s{sM19}, 0x7ffff
    s_mov_b32 s{s3FC}, 0x3fc
    s_mul_i32 s{sM0}, s3, 3072
    s_add_u32 s{sM0}, s{sM0}, {STG}
    s_add_u32 s{sM0+1}, s{sM0}, 1024
    s_add_u32 s{sM0+2}, s{sM0}, 2048
    s_mov_b32 s{sU}, 0
    s_mov_b32 s{sSP}, 0
    s_mov_b32 s{sRES}, 0
    s_mov_b64 {sp(sLIVE)}, -1
    s_mov_b64 {sp(sSKIP)}, 0
    s_mov_b32 s{sSW}, 0
    s_lshl_b32 s{sSPB}, s3, 10
    s_add_u32 s{sSPB}, s{sSPB}, {SPILL}
    s_mul_i32 s{sST}, s3, 25
    s_sub_i32 s36, s3, 4
    s_max_i32 s36, s36, 0
    s_sub_u32 s{sST}, s{sST}, s36
    s_cmp_lt_u32 s3, 4
    s_cselect_b32 s38, 25, 24
    s_cselect_b32 s37, s{sST}, {196 - 24}
    s_bfm_b32 s{sNG}, s38, 0
    s_mov_b32 s{sNG+1}, 0
    s_mul_i32 s36, s{sST}, {LSTR}
    s_mul_i32 s37, s37, {LSTR}
    s_add_u32 s36, s36, {LIST}
    s_add_u32 s37, s37, {LIST}
    v_and_b32 v17, 63, v0                        ; lane
    v_lshrrev_b32 v18, 1, v17                    ; k
    v_lshl_add_u32 v{vLB}, v18, 3, s36
    v_lshl_add_u32 v{vLB24}, v18, 3, s37
    v_and_b32 v{vHALF}, 1, v17
    v_lshlrev_b32 v{vHALF}, 4, v{vHALF}
    s_lshl_b32 s36, s3, 11
    s_add_u32 s36, s36, {PST}
    v_lshrrev_b32 v19, 2, v18
    v_lshl_add_u32 v19, v19, 8, s36
    v_and_b32 v20, 3, v18
    v_lshl_add_u32 v{vKC}, v20, 2, v19           ; P base + (k>>2)*256 + (k&3)*4
    v_lshrrev_b32 v19, 4, v17
    v_lshl_add_u32 v19, v19, 8, s36
    v_and_b32 v20, 15, v17
    v_lshl_add_u32 v{vPR}, v20, 4, v19           ; P base + q*256 + r*16
    v_lshl_add_u32 v{vTR}, v17, 3, s{sM0}
    v_add_u32 v{vTR+1}, 1024, v{vTR}
    v_add_u32 v{vTR+2}, 2048, v{vTR}
    v_mov_b32 v{vNEG}, -1
    v_mov_b32 v{vZ}, 0
    v_mov_b32 v{vINC}, {8 + (1 << 19)}
    v_and_b32 v{vK2}, 7, v17
    v_lshlrev_b32 v{vK2}, 1, v{vK2}
    v_lshrrev_b32 v19, 3, v17
    s_mul_i32 s36, s3, {32*24}
    s_add_u32 s36, s36, {TBL}
    v_mul_u32_u24 v19, 24, v19
    v_add_u32 v{vSB}, s36, v19
    ''')
    for k in range(200): a(f'v_mov_b32 v{56+k}, 0')
    B = 33
    a('s_waitcnt vmcnt(0)')
    a(f'''
    v_and_b32 v41, 0xffff, v28
    v_mov_b32 v42, v32
    v_and_b32 v43, 1, v0                         ; hh
    v_mov_b32_dpp v41, v41 quad_perm:[0,0,2,2] row_mask:0xf bank_mask:0xf   ; S
    v_mov_b32_dpp v42, v42 quad_perm:[1,1,3,3] row_mask:0xf bank_mask:0xf   ; END
    v_cmp_eq_u32 s[40:41], 0, v43
    v_lshlrev_b32 v43, 3, v43                    ; 8*hh
    v_and_b32 v44, -16, v41                      ; A0
    v_and_b32 v45, 15, v41                       ; lo
    v_sub_u32 v46, v42, v41                      ; n
    v_sub_u32 v47, v42, v44
    v_add_u32 v47, 15, v47
    v_lshrrev_b32 v47, 4, v47                    ; L
    v_subrev_u32 v48, {NPH-1}, v47               ; F
    v_sub_u32 v49, 7, v44                        ; K
    ''')
    for i in range(8):
        if i == 7: a(f'v_add_u32 v{B+i}, v32, v49')
        else:
            sel = 'WORD_1' if (i+1) % 2 else 'WORD_0'
            a(f'v_add_u32_sdwa v{B+i}, v49, v{28+(i+1)//2} dst_sel:DWORD dst_unused:UNUSED_PAD src0_sel:DWORD src1_sel:{sel}')
    for i in range(8): a(f'v_lshrrev_b32 v{B+i}, 4, v{B+i}')
    for i in range(8): a(f'v_sub_u32 v{B+i}, v{B+i}, v43')
    for i in range(1, 8): a(f'v_subrev_u32 v{B+i}, {i}, v{B+i}')
    a(f'''
    v_min3_i32 v50, v{B}, v{B+1}, 1
    v_min3_i32 v50, v{B+2}, v{B+3}, v50
    v_min3_i32 v50, v{B+4}, v{B+5}, v50
    v_min3_i32 v50, v{B+6}, v{B+7}, v50
    v_mov_b32_dpp v50, v50 quad_perm:[0,0,2,2] row_mask:0xf bank_mask:0xf
    v_cndmask_b32 v50, v50, 1, s[40:41]
    v_med3_i32 v51, v50, v48, 1                  ; Tprev
    v_mov_b32 v28, 0xff
    ''')
    for i in range(8):
        a(f'''
        v_min_i32 v50, v50, v{B+i}
        v_add3_u32 v29, v51, v43, {i-1}
        v_med3_i32 v30, v50, v48, 1
        v_cmp_eq_u32 vcc, v30, v51
        v_mov_b32 v51, v30
        v_cndmask_b32 v{B+i}, v28, v29, vcc
        ''')
    for w in range(2):
        a(f'''
        v_lshl_or_b32 v{B+4*w}, v{B+4*w+1}, 8, v{B+4*w}
        v_lshl_or_b32 v{B+4*w+2}, v{B+4*w+3}, 8, v{B+4*w+2}
        v_lshl_or_b32 v{28+w}, v{B+4*w+2}, 16, v{B+4*w}
        ''')
    a(f'''
    v_lshrrev_b32 v19, 1, v0                     ; j
    v_mul_u32_u24 v20, 24, v19
    v_add_u32 v30, v20, v43
    ds_write_b64 v30, v[28:29] offset:{TBL}
    s_mov_b32 s36, {TSTRIDE}
    v_lshlrev_b32 v44, 3, v44
    v_mad_u32_u24 v44, v19, s36, v44
    v_lshl_or_b32 v45, v45, 16, v46
    ds_write_b64 v20, v[44:45] offset:{TBL+16}
    ''')
    for sh in ('row_shr:1 row_mask:0xf', 'row_shr:2 row_mask:0xf', 'row_shr:4 row_mask:0xf', 'row_shr:8 row_mask:0xf', 'row_bcast:15 row_mask:0xa', 'row_bcast:31 row_mask:0xc'):
        a(f'v_max_u32_dpp v47, v47, v47 {sh} bank_mask:0xf')
    a(f'''
    v_readlane_b32 s{sUE}, v47, 63
    s_max_u32 s{sUE}, s{sUE}, {NPH}
    s_lshl_b32 s{sUE}, s{sUE}, 2
    s_waitcnt lgkmcnt(0)
    s_barrier
    ''')
    q = Seq()
    pq = lambda s: 28 + 4*s
    pm = lambda s: (60 + 4*s, 62 + 4*s)
    for s in range(NS):
        L1(q, s); L2(q, s, pq(s), *pm(s))
    for s in range(NS):
        q.wait('v', [('rec', s)])
        A1(q, s, pq(s), pm(s), 0)
        q('s_waitcnt lgkmcnt(0)')
        A2(q, s, pq(s), pm(s))
    for v in range(5): q(f'v_mov_b32 v{RING(v)}, v{vKC}\nv_mov_b32 v{RING(v)+1}, 0')
    sweep_end(q)
    q.resolve(a, False)

    q = Seq()
    q('B_loop:')
    for par in range(2):
        def G1(v):
            b = vLB24 if v == 24 else vLB
            q(f'ds_read_b64 {vp(RING(v))}, v{b} offset:{par*LPAR + v*LSTR}', tag=('lst', par, v))
            q(f'ds_write_b32 v{b}, v{vNEG} offset:{par*LPAR + v*LSTR}')
        reappend(q, 1-par)
        G1(0)
        q(f'ds_read_b32 v{vF}, v{vZ} offset:{FLAG}', tag=('flag', par))
        for v in range(NV):
            mv = (v - 3) % NV; mp = par if v >= 3 else 1-par
            r = RING(mv)
            q.wait('v', [('dma', mp, mv)])
            q(f'ds_write_b32 v{r}, v{r+1}')
            q(f'ds_read_b128 {vp(X,4)}, v{vPR}\nds_read_b128 {vp(X+4,4)}, v{vPR} offset:1024')
            q(f'ds_read_b64_tr_b16 {vp(M)}, v{vTR + v % 3}')
            q(f'ds_read_b64_tr_b16 {vp(M+2)}, v{vTR + v % 3} offset:512', tag=('ab', par, v))
            q(f'ds_write_b32 v{r}, v{vZ}')
            if v + 1 < NV: G1(v + 1)
            for s in range(NS):
                qd = Q0 + 4*(s % 2); mk = (40 + 4*(s % 2), 42 + 4*(s % 2))
                if v == APOS[s] + DA + 1:
                    q.wait('l', [('ret', s)]); A2(q, s, qd, mk)
            for s in range(NS):
                qd = Q0 + 4*(s % 2); mk = (40 + 4*(s % 2), 42 + 4*(s % 2))
                if v == APOS[s]: L1(q, s)
                if v == APOS[s] + 1: L2(q, s, qd, *mk)
                if v == APOS[s] + DA:
                    q.wait('v', [('rec', s)]); A1(q, s, qd, mk, 1-par)
            if v == 2:
                q(f'''
                v_mbcnt_lo_u32_b32 v{T0}, -1, 0
                v_mbcnt_hi_u32_b32 v{T0}, -1, v{T0}
                v_add_u32 v{T0}, s{sST}, v{T0}
                s_movk_i32 s36, {LSTR}
                v_mul_u32_u24 v{T1}, s36, v{T0}
                v_lshlrev_b32 v{T0}, 2, v{T0}
                v_add_u32 v{T1}, {LIST + par*LPAR}, v{T1}
                s_mov_b64 exec, {sp(sNG)}
                ds_write_b32 v{T0}, v{T1} offset:{CNT + 800*par}
                s_mov_b64 exec, -1
                ''')
            if v == 5:
                q(f's_cmp_eq_u32 s{sDID}, 0\ns_cbranch_scc1 B_nf{par}\nv_mov_b32 v{T0}, s{sSW}\ns_mov_b64 exec, 1')
                q(f'ds_max_u32 v{vZ}, v{T0} offset:{FLAG}', maybe=True)
                q(f's_mov_b64 exec, -1\nB_nf{par}:')
            r = RING(v)
            q.wait('l', [('lst', par, v)])
            q(f'''
            v_lshrrev_b32 v{T2}, 7, v{r}
            v_and_b32 v{r}, 15, v{r}
            v_and_or_b32 v{T2}, v{T2}, s{sNM32}, v{vHALF}
            v_lshl_add_u32 v{r}, v{r}, 4, v{vKC}
            s_mov_b32 m0, s{sM0 + v % 3}
            ''')
            q.wait('l', [('ab', par, v)])
            q(f'buffer_load_dwordx4 v{T2}, s[4:7], 0 offen lds', tag=('dma', par, v))
            for k in range(4):
                q(f'v_perm_b32 v{Y+k}, v{X+2*k+1}, v{X+2*k}, s{sSEL0}')
                q(f'v_perm_b32 v{X+k}, v{X+2*k+1}, v{X+2*k}, s{sSEL1}')
            q(f'v_mfma_f32_16x16x32_bf16 {vp(ACC(mv),4)}, {vp(M,4)}, {vp(Y,4)}, {vp(ACC(mv),4)}')
            q(f'v_mfma_f32_16x16x32_bf16 {vp(ACC(mv)+4,4)}, {vp(M,4)}, {vp(X,4)}, {vp(ACC(mv)+4,4)}')
            if v == 2:
                q(f'''
                v_readfirstlane_b32 s36, v{vF}
                s_add_u32 s36, s36, 1
                s_cmp_lt_u32 s36, s{sSW}
                s_cbranch_scc1 B_epi
                s_cmp_gt_u32 s{sSW}, {MAXSW}
                s_cbranch_scc1 B_epi
                ''')
        q(f'''
        s_mov_b32 s36, s{sM0}
        v_mov_b32 v{T0}, v{vTR}
        s_mov_b32 s{sM0}, s{sM0+1}
        v_mov_b32 v{vTR}, v{vTR+1}
        s_mov_b32 s{sM0+1}, s{sM0+2}
        v_mov_b32 v{vTR+1}, v{vTR+2}
        s_mov_b32 s{sM0+2}, s36
        v_mov_b32 v{vTR+2}, v{T0}
        ''')
        sweep_end(q)
    q('s_branch B_loop')
    q.resolve(a, True)

    a.label('B_epi')
    a(f'''
    s_load_dwordx2 s[58:59], s[0:1], {K_DIST}
    s_load_dwordx2 s[60:61], s[0:1], {K_CEN}
    s_load_dwordx4 s[64:67], s[0:1], {K_WRBF}
    s_load_dwordx4 s[68:71], s[0:1], {K_WD}
    s_load_dwordx2 s[62:63], s[0:1], {K_OUT}
    s_mul_i32 s36, s2, {EPC*32}
    s_mul_i32 s37, s2, {EPC*2}
    v_mbcnt_lo_u32_b32 v0, -1, 0
    v_mbcnt_hi_u32_b32 v0, -1, v0                ; lane
    s_waitcnt vmcnt(0) lgkmcnt(0)
    ''')
    srd(a, 4, 's54', 's55', 's36', EPC*32)
    srd(a, 8, 's62', 's63', 's36', EPC*32)
    srd(a, 12, 's58', 's59', 's37', EPC*2)
    srd(a, 72, 's64', 's65', None, 256)
    srd(a, 76, 's66', 's67', None, 512)
    srd(a, 80, 's68', 's69', None, 512)
    srd(a, 84, 's70', 's71', None, 512)
    srd(a, 88, 's60', 's61', None, 16)
    a(f'''
    s_lshl_b32 s38, s{sST}, 9
    s_mul_i32 s39, s{sST}, {LSTR}
    s_add_u32 s39, s39, {LIST + 8}
    s_and_b32 s39, s39, 0xfffffff0
    s_add_u32 s40, s39, {LPAR + 8}               ; piece 1
    s_mul_i32 s41, s3, 3072
    s_add_u32 s41, s41, {STG}                    ; piece 2
    v_lshlrev_b32 v1, 4, v0
    v_and_b32 v2, 15, v0                         ; e
    v_lshrrev_b32 v3, 4, v0                      ; q
    ''')
    piece = lambda pr: (39 + min(pr // 6, 2), (pr % 6)*1024)
    for pr in range(13):
        sg, off = piece(pr)
        a(f's_add_u32 m0, s{sg}, {off}\ns_add_u32 s42, s38, {pr*1024}\nbuffer_load_dwordx4 v1, s[4:7], s42 offen lds')
    D0 = 8
    a(f's_lshl_b32 s42, s{sST}, 5\nv_lshlrev_b32 v4, 1, v2')
    for v in range(NV): a(f'buffer_load_ushort v{D0+v}, v4, s[12:15], s42 offen offset:{v*32}')
    W = 33
    a(f'''
    v_lshl_add_u32 v5, v3, 7, v4                 ; (4q)*32 + n*2
    v_lshl_add_u32 v6, v3, 6, v4                 ; (2q)*32 + n*2
    v_lshlrev_b32 v7, 2, v3                      ; (2q)*2
    ''')
    for k in range(4): a(f'buffer_load_ushort v{W+k}, v5, s[80:83], 0 offen offset:{32*k}')
    for k in range(4): a(f'buffer_load_ushort v{W+4+k}, v5, s[84:87], 0 offen offset:{32*k}')
    for k in range(4): a(f'buffer_load_ushort v{W+8+k}, v5, s[76:79], 0 offen offset:{32*k}')
    for k in range(2): a(f'buffer_load_ushort v{W+12+k}, v6, s[72:75], 0 offen offset:{32*k}')
    for k in range(2): a(f'buffer_load_ushort v{W+14+k}, v7, s[88:91], 0 offen offset:{2*k}')
    WD, WU, W0, W1, WR = 34, 36, 38, 40, 42
    a(f'''
    v_lshlrev_b32 v4, 5, v2
    v_lshl_add_u32 v4, v3, 3, v4                 ; e*32 + q*8
    s_waitcnt vmcnt(0)
    v_lshl_or_b32 v49, v{W+1}, 16, v{W}
    v_lshl_or_b32 v50, v{W+3}, 16, v{W+2}
    v_lshl_or_b32 v51, v{W+5}, 16, v{W+4}
    v_lshl_or_b32 v52, v{W+7}, 16, v{W+6}
    v_lshl_or_b32 v53, v{W+10}, 16, v{W+8}
    v_lshl_or_b32 v54, v{W+11}, 16, v{W+9}
    v_lshl_or_b32 v55, v{W+13}, 16, v{W+12}
    v_lshlrev_b32 v5, 16, v{W+14}                ; center 2q
    v_lshlrev_b32 v6, 16, v{W+15}                ; center 2q+1
    v_mov_b32 v{WD}, v49
    v_mov_b32 v{WD+1}, v50
    v_mov_b32 v{WU}, v51
    v_mov_b32 v{WU+1}, v52
    v_mov_b32 v{W0}, v53
    v_mov_b32 v{W0+1}, 0
    v_mov_b32 v{W1}, v54
    v_mov_b32 v{W1+1}, 0
    v_mov_b32 v{WR}, v55
    v_mov_b32 v{WR+1}, 0
    v_mov_b32 v7, 0xc166d4ca                     ; -10*log2(e)
    v_add_u32 v2, s39, v4
    v_add_u32 v3, s40, v4
    v_add_u32 v4, s41, v4
    v_mov_b32 v45, 0
    s_mov_b32 s43, 0xffff0000
    ''')
    MF = 'v_mfma_f32_16x16x16_bf16'
    for v in range(NV):
        if v == 24: a('s_cmp_ge_u32 s3, 4\ns_cbranch_scc1 B_last')
        A = ACC(v)
        base = 2 + min(v // 12, 2); off = (v % 12)*512
        a(f'''
        ds_read_b64 v[46:47], v{base} offset:{off}
        v_lshlrev_b32 v{D0+v}, 16, v{D0+v}
        v_cvt_pk_bf16_f32 v48, v{A}, v{A+1}
        v_sub_f32 v33, v{D0+v}, v5
        v_sub_f32 v44, v{D0+v}, v6
        v_cvt_pk_bf16_f32 v49, v{A+2}, v{A+3}
        v_mul_f32 v33, v33, v33
        v_mul_f32 v44, v44, v44
        v_cvt_pk_bf16_f32 v50, v{A+4}, v{A+5}
        v_mul_f32 v33, v7, v33
        v_mul_f32 v44, v7, v44
        v_cvt_pk_bf16_f32 v51, v{A+6}, v{A+7}
        v_exp_f32 v33, v33
        v_exp_f32 v44, v44
        {MF} v[{A}:{A+3}], v[{WD}:{WD+1}], v[48:49], 0
        {MF} v[{A+4}:{A+7}], v[{WD}:{WD+1}], v[50:51], 0
        v_cvt_pk_bf16_f32 v44, v33, v44
        {MF} v[48:51], v[{W0}:{W0+1}], v[44:45], 0
        {MF} v[52:55], v[{W1}:{W1+1}], v[44:45], 0
        v_mul_f32 v{A}, v{A}, v48
        v_mul_f32 v{A+1}, v{A+1}, v49
        v_mul_f32 v{A+2}, v{A+2}, v50
        v_mul_f32 v{A+3}, v{A+3}, v51
        v_fmac_f32 v{A}, v{A+4}, v52
        v_fmac_f32 v{A+1}, v{A+5}, v53
        v_fmac_f32 v{A+2}, v{A+6}, v54
        v_fmac_f32 v{A+3}, v{A+7}, v55
        {MF} v[48:51], v[{WR}:{WR+1}], v[44:45], 0
        v_cvt_pk_bf16_f32 v{A}, v{A}, v{A+1}
        v_cvt_pk_bf16_f32 v{A+1}, v{A+2}, v{A+3}
        {MF} v[52:55], v[{WU}:{WU+1}], v[{A}:{A+1}], 0
        s_waitcnt lgkmcnt(0)
        v_lshlrev_b32 v{A+4}, 16, v46
        v_and_b32 v{A+5}, s43, v46
        v_lshlrev_b32 v{A+6}, 16, v47
        v_and_b32 v{A+7}, s43, v47
        v_fmac_f32 v{A+4}, v48, v52
        v_fmac_f32 v{A+5}, v49, v53
        v_fmac_f32 v{A+6}, v50, v54
        v_fmac_f32 v{A+7}, v51, v55
        v_cvt_pk_bf16_f32 v{A+4}, v{A+4}, v{A+5}
        v_cvt_pk_bf16_f32 v{A+5}, v{A+6}, v{A+7}
        ds_write_b64 v{base}, v[{A+4}:{A+5}] offset:{off}
        ''')
        if v % 2 == 1 or v == 24:
            pr = v // 2; sg, off2 = piece(pr)
            a(f'''
            s_add_u32 s42, s{sg}, {off2}
            v_add_u32 v33, s42, v1
            ds_read_b128 v[{A}:{A+3}], v33
            s_add_u32 s42, s38, {pr*1024}
            ''')
            if v == 24: a('s_mov_b32 exec_hi, 0')
            a(f's_waitcnt lgkmcnt(0)\nbuffer_store_dwordx4 v[{A}:{A+3}], v1, s[8:11], s42 offen')
    a.label('B_last')
    a.label('B_end')
    a('s_endpgm')
    out = a.l + stubs.l
    for l in late: out += l
    return out
```

```python
import sys
sys.path.insert(0, 'gen')
import build, passa, passb
passb.MAXSW = 0x7fffffff
hdr = ''.join(open('gather_scatter__molecular_angular_gemnet__graph.s.ref').readlines()[:15])
parts = [(passa.NAME, 512, passa.LDS, passa.gen(), 256, 80), (passb.NAME, 512, passb.LDS, passb.gen(), 256, 100)]
out = sys.argv[1] if len(sys.argv) > 1 else 'gather_scatter__molecular_angular_gemnet__graph.s'
open(out, 'w').write(hdr + build.source(parts))
```

```python
import sys, importlib
sys.path.insert(0, 'gen')
import common, lint, passa
def source(parts):
    src = ''
    for name, nthreads, lds, lines, vg, sg in parts:
        src += f'; @launch kernel={name} grid=(256,1,1) block=({nthreads},1,1) lds={lds}\n'
    src += '.amdgcn_target "amdgcn-amd-amdhsa--gfx950"\n.text\n'
    for name, nthreads, lds, lines, vg, sg in parts:
        lines, n = lint.fix(lines)
        print(name, 'instrs', len(lines), 'nop states inserted', n, file=sys.stderr)
        src += common.head(name) + '\n'.join(lines) + '\n' + common.KD.format(name=name, vgpr=vg, sgpr=sg, acc=vg)
    return src
if __name__ == '__main__':
    import passb
    sys.path.insert(0, 'scratch')
    import rt
    name = sys.argv[1]
    ka = eval('dict(%s)' % (sys.argv[2] if len(sys.argv) > 2 else ''))
    kb = eval('dict(%s)' % (sys.argv[3] if len(sys.argv) > 3 else ''))
    parts = []
    if name.startswith('A'): parts.append((passa.NAME, 512, passa.LDS, passa.gen(**ka), 256, 80))
    if name.startswith('B'): parts.append((passb.NAME, 512, passb.LDS, passb.gen(**ka), 256, 100))
    open(f'scratch/{name}.asm.txt', 'w').write(source(parts))
    rt.build(f'scratch/{name}.asm.txt', f'scratch/{name}.co', parts[0][0])
```

```python
E = 800000; T = 12800000; NCU = 256; TILE = 50000; EPC = 3125
TSTRIDE = 316928
REC_BYTES = NCU*TSTRIDE
NPH = 11
MPH = int((NPH - 0.5)*2**32) // E
TAB_OFF = REC_BYTES + 256
TAB_BYTES = 65536*48
K_M, K_II, K_IO, K_DIST, K_ANG, K_CEN, K_FREQ, K_WRBF, K_WSBF, K_WD, K_WU, K_OUT, K_DBG, K_WS = [8*i for i in range(14)]
class Asm:
    def __init__(s): s.l = []
    def __call__(s, t):
        for x in t.strip('\n').split('\n'):
            x = x.strip()
            if not x: continue
            s.l.append(x if x.endswith(':') else '    ' + x)
    def label(s, n): s.l.append(n + ':')
def srd(a, r, lo, hi, off_s, size):
    if off_s is None:
        a(f's_mov_b32 s{r}, {lo}\ns_mov_b32 s{r+1}, {hi}')
    else:
        a(f's_add_u32 s{r}, {lo}, {off_s}\ns_addc_u32 s{r+1}, {hi}, 0')
    a(f's_mov_b32 s{r+2}, {size}\ns_mov_b32 s{r+3}, 0x20000')
KD = """.section .rodata,"a"
.p2align 6
.amdhsa_kernel {name}
  .amdhsa_next_free_vgpr {vgpr}
  .amdhsa_next_free_sgpr {sgpr}
  .amdhsa_accum_offset {acc}
  .amdhsa_group_segment_fixed_size 0
  .amdhsa_kernarg_size 112
  .amdhsa_user_sgpr_count 2
  .amdhsa_user_sgpr_kernarg_segment_ptr 1
  .amdhsa_system_sgpr_workgroup_id_x 1
.end_amdhsa_kernel
.text
"""
def head(name):
    return f""".globl {name}
.p2align 8
.type {name},@function
"""
```

```python
from common import *
NAME = 'bin_kernel'
LDS = 152576
H = 25000
def gen(PF=8):
    a = Asm()
    NGR = 25
    R0 = lambda k: 56 + k
    R1 = lambda k: 156 + k
    TA = lambda q: 40 + 2*(q % PF)
    a.label(NAME)
    a(f'''
    s_cmp_ge_u32 s2, {NCU}
    s_cbranch_scc1 A_end
    s_load_dwordx4 s[36:39], s[0:1], {K_II}
    s_load_dwordx2 s[40:41], s[0:1], {K_ANG}
    s_load_dwordx2 s[42:43], s[0:1], {K_FREQ}
    s_load_dwordx2 s[44:45], s[0:1], {K_WS}
    s_mul_i32 s46, s2, {TILE*4}
    s_mul_i32 s47, s2, {TILE*2}
    s_mul_i32 s48, s2, {TSTRIDE}
    v_lshlrev_b32 v1, 4, v0                      ; x*16
    v_lshlrev_b32 v2, 3, v0                      ; x*8
    v_mov_b32 v3, 1
    v_mov_b32 v4, 0
    v_mov_b32 v5, 0
    v_mov_b32 v6, 0
    v_mov_b32 v7, 0
    s_waitcnt lgkmcnt(0)
    s_load_dword s49, s[42:43], 0
    ''')
    srd(a, 4, 's36', 's37', 's46', TILE*4)
    srd(a, 8, 's38', 's39', 's46', TILE*4)
    srd(a, 12, 's40', 's41', 's47', TILE*2)
    def loads(q):
        a(f's_mov_b32 s50, {q*8192}\ns_mov_b32 s51, {q*4096}')
        a(f'buffer_load_dwordx4 v[{R0(4*q)}:{R0(4*q+3)}], v1, s[4:7], s50 offen nt')
        a(f'buffer_load_dwordx4 v[{R1(4*q)}:{R1(4*q+3)}], v1, s[8:11], s50 offen nt')
        a(f'buffer_load_dwordx2 v[{TA(q)}:{TA(q)+1}], v2, s[12:15], s51 offen nt')
    for q in range(PF): loads(q)
    for k in range(2): a(f'ds_write_b128 v1, v[4:7] offset:{k*8192}')
    srd(a, 16, 's44', 's45', 's48', H*8)
    srd(a, 20, 's44', 's45', TAB_OFF, TAB_BYTES)
    a(f'''
    s_mov_b32 s24, 1374390
    s_mov_b32 s25, {-EPC}
    s_mov_b32 s26, {MPH}
    s_mov_b32 s27, 0xffff0000
    s_mov_b32 s28, 0xffff
    s_mov_b32 s29, {H}
    s_mov_b32 s32, {(TILE - 24*2048)//4}
    v_cmp_gt_u32 s[30:31], s32, v0
    v_lshrrev_b32 v8, 6, v0
    s_waitcnt lgkmcnt(0)
    v_readfirstlane_b32 s3, v8
    s_lshl_b32 s33, s49, 16
    s_and_b32 s34, s49, 0xffff0000
    v_mov_b32 v9, s33
    v_mov_b32 v10, s34
    v_mul_f32 v9, 0.15915494, v9                 ; f0/(2pi)
    v_mul_f32 v10, 0.15915494, v10               ; f1/(2pi)
    s_barrier
    ''')
    for q in range(NGR):
        issued = min(NGR, q + PF)
        a(f's_waitcnt vmcnt({3*(issued - q - 1)})')
        if q == NGR-1: a('s_mov_b64 exec, s[30:31]')
        td = [12, 13, 14, 15]; tp = [16, 17, 18, 19]; tl = [20, 21, 22, 23]
        for e in range(4): a(f'v_mul_hi_u32_u24 v{td[e]}, s24, v{R1(4*q+e)}')
        for e in range(4): a(f'v_mul_hi_u32_u24 v{tp[e]}, s26, v{R0(4*q+e)}')
        for e in range(4): a(f'v_mad_i32_i24 v{tl[e]}, v{td[e]}, s25, v{R1(4*q+e)}')
        for e in range(4): a(f'v_lshl_or_b32 v{tp[e]}, v{tp[e]}, 8, v{td[e]}')
        for e in range(4): a(f'v_lshlrev_b32 v{tp[e]}, 2, v{tp[e]}')
        for e in range(4):
            a(f'ds_add_u32 v{tp[e]}, v3')
            a(f'v_and_b32 v{td[e]}, 15, v{tl[e]}')
            a(f'v_lshrrev_b32 v{tl[e]}, 4, v{tl[e]}')
            a(f'v_lshl_or_b32 v{R0(4*q+e)}, v{R0(4*q+e)}, 4, v{td[e]}')
            a(f'v_lshl_or_b32 v{R0(4*q+e)}, v{R0(4*q+e)}, 8, v{tl[e]}')
            if e % 2 == 0: a(f'v_lshl_or_b32 v{R1(4*q+e)}, v{TA(q)+e//2}, 16, v{tp[e]}')
            else: a(f'v_and_or_b32 v{R1(4*q+e)}, v{TA(q)+e//2}, s27, v{tp[e]}')
        if q + PF < NGR: loads(q + PF)
    a('s_mov_b64 exec, -1\ns_waitcnt lgkmcnt(0)\ns_barrier')
    C = 12; Q = 28
    a('v_mul_u32_u24 v11, 24, v0')
    for k in range(3): a(f'ds_read_b64 v[{C+2*k}:{C+2*k+1}], v11 offset:{8*k}')
    a('s_waitcnt lgkmcnt(0)')
    for k in range(1, 6): a(f'v_add_u32 v{C+k}, v{C+k}, v{C+k-1}')
    a(f'v_mov_b32 v44, v{C+5}')
    for sh in ('row_shr:1 row_mask:0xf', 'row_shr:2 row_mask:0xf', 'row_shr:4 row_mask:0xf', 'row_shr:8 row_mask:0xf', 'row_bcast:15 row_mask:0xa', 'row_bcast:31 row_mask:0xc'):
        a(f'v_add_u32_dpp v44, v44, v44 {sh} bank_mask:0xf')
    a(f'''
    v_readlane_b32 s35, v44, 63
    s_lshl_b32 s50, s3, 2
    s_add_u32 s50, s50, 16384
    v_mov_b32 v45, s50
    v_mov_b32 v46, s35
    s_mov_b64 exec, 1
    ds_write_b32 v45, v46
    s_mov_b64 exec, -1
    v_sub_u32 v44, v44, v{C+5}
    v_mov_b32 v45, 16384
    s_waitcnt lgkmcnt(0)
    s_barrier
    ds_read_b128 v[48:51], v45
    ds_read_b128 v[52:55], v45 offset:16
    s_mov_b32 s35, 0
    s_waitcnt lgkmcnt(0)
    ''')
    for w in range(7):
        a(f'v_readfirstlane_b32 s50, v{48+w}\ns_cmp_gt_u32 s3, {w}\ns_cselect_b32 s50, s50, 0\ns_add_u32 s35, s35, s50')
    a(f'v_add_u32 v{Q}, s35, v44')
    for k in range(1, 7): a(f'v_add_u32 v{Q+k}, v{Q}, v{C+k-1}')
    for k in range(3): a(f'ds_write_b64 v11, v[{Q+2*k}:{Q+2*k+1}] offset:{8*k}')
    a(f'''
    v_cmp_eq_u32 vcc, 511, v0
    s_mov_b64 exec, vcc
    ds_write_b32 v11, v{Q+6} offset:24
    s_mov_b64 exec, -1
    v_and_b32 v45, 255, v0                       ; d
    v_lshrrev_b32 v46, 8, v0                     ; hh
    v_mul_u32_u24 v47, {6*1024}, v46
    v_lshl_add_u32 v47, v45, 2, v47
    v_mul_u32_u24 v45, {256*48}, v45
    v_mad_u32_u24 v45, v46, 24, v45
    s_mul_i32 s50, s2, 48
    s_waitcnt lgkmcnt(0)
    s_barrier
    ''')
    for k in range(6): a(f'ds_read_b32 v{C+k}, v47 offset:{1024*k}\nds_read_b32 v{Q+k}, v47 offset:{1024*k+4}')
    a('s_waitcnt lgkmcnt(0)\ns_barrier')
    for k in range(6): a(f'v_lshl_or_b32 v{48+k}, v{Q+k}, 16, v{C+k}')
    a('''
    buffer_store_dwordx4 v[48:51], v45, s[20:23], s50 offen
    buffer_store_dwordx2 v[52:53], v45, s[20:23], s50 offen offset:16
    ''')
    NR = 8
    ring = [12 + k for k in range(NR)]; rr = [20 + k for k in range(NR)]
    def fin(k):
        a(f'v_bfi_b32 v{R1(k)}, s28, v{rr[k % NR]}, v{R1(k)}')
    for k in range(96):
        if k >= NR:
            a(f's_waitcnt lgkmcnt({NR-1})'); fin(k - NR)
        a(f'v_and_b32 v{ring[k % NR]}, s28, v{R1(k)}')
        a(f'ds_add_rtn_u32 v{rr[k % NR]}, v{ring[k % NR]}, v3')
    a('s_waitcnt lgkmcnt(0)')
    for k in range(96 - NR, 96): fin(k)
    a('s_mov_b64 exec, s[30:31]')
    for k in range(96, 100):
        a(f'v_and_b32 v{ring[k % NR]}, s28, v{R1(k)}')
        a(f'ds_add_rtn_u32 v{rr[k % NR]}, v{ring[k % NR]}, v3')
    a('s_waitcnt lgkmcnt(0)')
    for k in range(96, 100): fin(k)
    a('s_mov_b64 exec, -1')
    a('s_not_b64 s[52:53], s[30:31]\ns_mov_b64 exec, s[52:53]')
    for k in range(96, 100): a(f'v_mov_b32 v{R1(k)}, -1')
    a(f'''
    s_mov_b64 exec, -1
    v_lshlrev_b32 v4, 2, v0
    v_add_u32 v5, {2*H}, v2
    v_add_u32 v6, {2*H + 65536}, v2
    s_barrier
    ''')
    for c in range(2):
        for k0 in range(0, 100, 4):
            t = [12, 13, 14, 15]; a2 = [16, 17, 18, 19]; a4 = [20, 21, 22, 23]
            for e in range(4):
                if c == 0: a(f'v_and_b32 v{t[e]}, s28, v{R1(k0+e)}')
                else: a(f'v_subrev_u32_sdwa v{t[e]}, s29, v{R1(k0+e)} dst_sel:DWORD dst_unused:UNUSED_PAD src0_sel:DWORD src1_sel:WORD_0')
            for e in range(4): a(f'v_cmp_gt_u32 s[{54+2*e}:{55+2*e}], s29, v{t[e]}')
            for e in range(4): a(f'v_add_u32 v{a2[e]}, v{t[e]}, v{t[e]}')
            for e in range(4): a(f'v_add_u32 v{a4[e]}, v{a2[e]}, v{a2[e]}')
            for e in range(4):
                a(f's_mov_b64 exec, s[{54+2*e}:{55+2*e}]')
                a(f'ds_write_b32 v{a4[e]}, v{R0(k0+e)} offset:{2*H}')
                a(f'ds_write_b16_d16_hi v{a2[e]}, v{R1(k0+e)}')
            a('s_mov_b64 exec, -1')
        a('s_waitcnt lgkmcnt(0)\ns_barrier')
        if c == 1: a(f's_mov_b32 s18, {2*H*8}')
        NI = 25; RD = 3
        QD = lambda it: 24 + 4*(it % 4)
        AR = lambda it: 40 + (it % 4)
        def rd(it):
            base, off = (5, it*4096) if it < 16 else (6, (it-16)*4096)
            a(f'ds_read_b64 v[{QD(it)}:{QD(it)+1}], v{base} offset:{off}')
            a(f'ds_read_b32 v{AR(it)}, v4 offset:{it*2048}')
        for it in range(RD-1): rd(it)
        for it in range(NI):
            if it + RD - 1 < NI: rd(it + RD - 1)
            a(f's_waitcnt lgkmcnt({2*min(RD-1, NI-1-it)})')
            q = QD(it); ar = AR(it)
            a(f'''
            v_lshlrev_b32 v12, 16, v{ar}
            v_and_b32 v13, s27, v{ar}
            v_mov_b32 v{q+2}, v{q+1}
            v_mul_f32 v14, v9, v12
            v_mul_f32 v15, v10, v12
            v_mul_f32 v16, v9, v13
            v_mul_f32 v17, v10, v13
            v_fract_f32 v14, v14
            v_fract_f32 v15, v15
            v_fract_f32 v16, v16
            v_fract_f32 v17, v17
            v_cos_f32 v14, v14
            v_cos_f32 v15, v15
            v_cos_f32 v16, v16
            v_cos_f32 v17, v17
            s_mov_b32 s50, {c*H*8 + it*8192}
            v_cvt_pk_bf16_f32 v{q+1}, v14, v15
            v_cvt_pk_bf16_f32 v{q+3}, v16, v17
            buffer_store_dwordx4 v[{q}:{q+3}], v1, s[16:19], s50 offen
            ''')
        if c == 0: a('s_barrier')
    a.label('A_end')
    a('s_endpgm')
    return a.l
```

```python
from common import *
NAME = 'agg_kernel'
CNT = 0; FLAG = 1600; L0 = 1664; L1 = L0 + 196*256
PST = L1 + 196*256; PIMM = 65280
NXMAX = 7
TSZ = (NXMAX + 8*NPH + 1)*32
TBL = PST + 8*2048
SPILL = TBL + 8*TSZ; SPCAP = 128
DST = SPILL + 8*SPCAP*8
WST = DST + 8192
LDS = 163840
assert WST + 2048 <= LDS and TSZ <= 4096
NV = 25
MAXSW = 20000
T0, vLB, vHALF, vKC, vPR, vX, T1 = range(7)
W = 8; G = 16; LP = 28; U = 30; XB = 38; Q0 = 42; Q1 = 46; vP2 = 50
PK = lambda v: [7, 52, 53, 54, 55][v % 5]
vF = Q1
ACC = lambda v: 56 + 8*v
sEPC, sEP24, sNM32, sLIM, sF8, sEPA, sFFFF = 16, 17, 18, 19, 20, 21, 22
sROW, sNX, sU, sUE, sSP, sRES, sDID = 23, 24, 25, 26, 27, 28, 29
sLIVE, sSKIP, sSW, sD, sSPB, sFAR, sST = 30, 32, 34, 35, 48, 49, 51
sNG = 52
sW24 = 50
MK = lambda v: 60 + 2*(v % 5)
INC = 8 + (1 << 16)
def sp(r): return f's[{r}:{r+1}]'
def vp(r, n=2): return f'v[{r}:{r+n-1}]'
SD = 'dst_sel:DWORD dst_unused:UNUSED_PAD src0_sel:DWORD'

class Seq:
    def __init__(s): s.o = []
    def __call__(s, t, tag=None, maybe=False, drop=False):
        ls = [x.strip() for x in t.strip('\n').split('\n') if x.strip()]
        for x in ls:
            c = 'v' if x.startswith('buffer_') else ('l' if x.startswith('ds_') else None)
            s.o.append(dict(t='' if drop else x, c=c, tag=tag if c else None, maybe=maybe or drop))
    def wait(s, c, tags): s.o.append(dict(t=None, c=None, w=c, tags=tags))
    def resolve(s, a, cyclic):
        n = len(s.o)
        for k, x in enumerate(s.o):
            if x['t'] is not None: a(x['t']); continue
            cnt = 0; found = None; j = k - 1; steps = 0
            while steps < n:
                if j < 0:
                    if not cyclic: break
                    j += n
                y = s.o[j]
                if y['c'] == x['w']:
                    if y['tag'] in x['tags']: found = cnt; break
                    if not y['maybe']: cnt += 1
                j -= 1; steps += 1
            assert found is not None, x
            a(f's_waitcnt vmcnt({min(found,63)})' if x['w'] == 'v' else f's_waitcnt lgkmcnt({min(found,15)})')

def gen(APOS=(2,4,7,9,12,14,17,19), DA=3, recflags='', diag=()):
    NS = 8
    a = Asm(); stubs = Asm(); late = []
    uid = [0]
    def nid(): uid[0] += 1; return uid[0]
    def stamp(q, real=False):
        if 'stamp' not in diag: return
        q(f'''
        {'s_memrealtime' if real else 's_memtime'} s[96:97]
        s_waitcnt lgkmcnt(0)
        v_mov_b32 v{T0}, s96
        v_mov_b32 v{T1}, 0
        s_mov_b64 exec, 1
        ''')
        t = f'buffer_store_dword v{T0}, v{T1}, s[92:95], s98 offen'
        q(t, maybe=True) if isinstance(q, Seq) else q(t)
        q('s_mov_b64 exec, -1\ns_add_u32 s98, s98, 4')
    def k2(q, extra='0'):
        q(f'''
        v_mbcnt_lo_u32_b32 v{T0}, -1, 0
        v_mbcnt_hi_u32_b32 v{T0}, -1, v{T0}
        v_and_b32 v{T0}, 15, v{T0}
        v_lshl_add_u32 v{T0}, v{T0}, 1, {extra}
        v_mov_b32_sdwa v{vX}, v{T0} dst_sel:WORD_1 dst_unused:UNUSED_PRESERVE src0_sel:WORD_0
        ''')
    def L1s(q, sig, p2=vP2):
        k = nid()
        q(f'''
        s_add_u32 s36, s{sU}, {32*sig}
        s_cmp_ge_u32 s36, s{sFAR}
        s_cbranch_scc1 B_far{k}
        B_farb{k}:
        v_add_u32_sdwa v{T0}, s36, v{vX} {SD} src1_sel:WORD_0
        ''')
        q(f'ds_read_b64 {vp(p2)}, v{T0}', tag=('ent', sig))
        stubs(f'''
        B_far{k}:
        s_cmp_ge_u32 s36, s{sUE}
        s_cselect_b32 s36, s{sFAR}, s36
        s_cbranch_scc1 B_farb{k}
        s_sub_u32 s37, s36, s{sROW}
        s_lshr_b32 s37, s37, 5
        s_mov_b32 s38, {-(-(1 << 32) // (8*NPH))}
        s_mul_hi_u32 s37, s37, s38
        s_mul_i32 s38, s37, {8*NPH*32}
        s_sub_u32 s36, s36, s38
        s_lshl_b32 s37, s37, 5
        ''')
        k2(stubs, 's37'); stubs(f's_branch B_farb{k}')
    def L2s(q, sig, quad, m0, m1, p2=vP2, wait=True):
        if wait: q.wait('l', [('ent', sig)])
        q(f'''
        v_cmp_lt_u32_sdwa {sp(m1)}, v{vX}, v{p2+1} src0_sel:WORD_1 src1_sel:WORD_1
        v_mad_u32_u16 v{T0}, v{vX}, 8, v{p2} op_sel:[1,0,0,0]
        v_cmpx_lt_u32_sdwa {sp(m0)}, v{vX}, v{p2+1} src0_sel:WORD_1 src1_sel:WORD_0
        ''')
        q(f'buffer_load_dwordx4 {vp(quad,4)}, v{T0}, s[8:11], 0 offen {recflags}', tag=('rec', sig))
        q('s_mov_b64 exec, -1')
        if sig == 0: q(f's_andn2_b64 {sp(m0)}, {sp(m0)}, {sp(sSKIP)}')
    def A1(q, sig, quad, masks, par, live=True, p2=vP2):
        q(f'v_mov_b32 v{p2+1}, {INC}')
        for h in range(2):
            q(f'v_lshlrev_b32_sdwa v{[T0,T1][h]}, 2, v{quad+2*h} {SD} src1_sel:BYTE_0')
        for h in range(2):
            q(f's_and_b64 exec, {sp(masks[h])}, {sp(sLIVE)}' if live else f's_mov_b64 exec, {sp(masks[h])}')
            q(f'ds_add_rtn_u32 v{p2+h}, v{[T0,T1][h]}, v{p2+1} offset:{CNT+800*par}', tag=('ret', sig))
        q('s_mov_b64 exec, -1')
    def A2(q, sig, quad, masks, par, live=True, p2=vP2):
        for h in range(2):
            k = nid()
            q(f's_and_b64 exec, {sp(masks[h])}, {sp(sLIVE)}' if live else f's_mov_b64 exec, {sp(masks[h])}')
            q(f'''
            v_lshlrev_b32_sdwa v{T0}, 8, v{quad+2*h} {SD} src1_sel:BYTE_0
            v_cmp_le_u32 vcc, s{sLIM}, v{p2+h}
            v_and_or_b32 v{T0}, v{p2+h}, s{sF8}, v{T0}
            s_cbranch_vccnz B_sp{k}
            B_spb{k}:
            v_mov_b32_sdwa v{quad+2*h}, s{sEPA} dst_sel:BYTE_0 dst_unused:UNUSED_PRESERVE src0_sel:BYTE_0
            ''')
            q(f'ds_write_b64 v{T0}, {vp(quad+2*h)} offset:{[L0, L1][par]}')
            stubs(f'''
            B_sp{k}:
            v_mbcnt_lo_u32_b32 v{T1}, vcc_lo, 0
            v_mbcnt_hi_u32_b32 v{T1}, vcc_hi, v{T1}
            s_lshl_b32 s36, s{sSP}, 3
            s_add_u32 s36, s36, s{sSPB}
            v_lshl_add_u32 v{T1}, v{T1}, 3, s36
            s_bcnt1_i32_b64 s37, vcc
            s_add_u32 s{sSP}, s{sSP}, s37
            s_andn2_b64 s[36:37], exec, vcc
            s_mov_b64 exec, vcc
            ds_write_b64 v{T1}, {vp(quad+2*h)}
            s_mov_b64 exec, s[36:37]
            ''')
            if live:
                stubs(f'''
                s_cmp_le_u32 s{sSP}, {SPCAP-64}
                s_cbranch_scc1 B_spb{k}
                s_mov_b64 {sp(sLIVE)}, 0
                s_add_u32 s{sRES}, s{sU}, {32*sig + 16*(h+1)}
                ''')
            stubs(f's_branch B_spb{k}')
        q('s_mov_b64 exec, -1')
    def sweep_end(q, par):
        k = nid()
        q(f'''
        s_add_u32 s{sU}, s{sU}, {32*NS}
        s_mov_b64 {sp(sSKIP)}, 0
        s_cmp_eq_u32 s{sLIVE}, 0
        s_cbranch_scc1 B_st{k}
        B_stb{k}:
        s_add_u32 s{sSW}, s{sSW}, 1
        ''')
        if par is not None:
            q(f's_and_b32 s36, s{sSW}, 126\ns_cbranch_scc0 B_cl{k}\nB_clb{k}:')
            stubs(f'B_cl{k}:\nv_mov_b32 v{Q1}, s{sEPC}\nv_mov_b32 v{Q1+1}, 0\ns_waitcnt lgkmcnt(0)')
            for v in range(24): stubs(f'ds_write_b64 v{vLB}, {vp(Q1)} offset:{[L0, L1][par] + v*256}')
            stubs(f's_cmp_lg_u32 s{sW24}, 0\ns_cbranch_scc1 B_clb{k}')
            stubs(f'ds_write_b64 v{vLB}, {vp(Q1)} offset:{[L0, L1][par] + 24*256}\ns_branch B_clb{k}')
        q(f'''
        s_mov_b32 s{sEPC}, s{sEPA}
        s_add_u32 s{sEPA}, s{sEPA}, 1
        s_and_b32 s{sEPA}, s{sEPA}, 255
        s_or_b32 s{sEP24}, s{sEPC}, s{sW24}
        s_waitcnt lgkmcnt(0)
        s_barrier
        ''')
        stamp(q)
        stubs(f'''
        B_st{k}:
        s_and_b32 s{sU}, s{sRES}, 0xffffffe0
        s_bitcmp1_b32 s{sRES}, 4
        s_cselect_b64 {sp(sSKIP)}, -1, 0
        s_mov_b64 {sp(sLIVE)}, -1
        ''')
        k2(stubs); stubs(f's_branch B_stb{k}')
    def reappend(q, par):
        k = nid()
        q(f'''
        s_cmp_lt_u32 s{sU}, s{sUE}
        s_cselect_b32 s{sDID}, 1, 0
        s_cmp_lg_u32 s{sSP}, 0
        s_cbranch_scc1 B_ra{k}
        B_rab{k}:
        ''')
        r = Seq()
        r(f'''
        B_ra{k}:
        s_mov_b32 s{sDID}, 1
        v_mbcnt_lo_u32_b32 v{T0}, -1, 0
        v_mbcnt_hi_u32_b32 v{T0}, -1, v{T0}
        v_lshl_add_u32 v{T1}, v{T0}, 3, s{sSPB}
        ds_read_b64 {vp(Q1)}, v{T1}
        ds_read_b64 {vp(Q1+2)}, v{T1} offset:512
        v_cmp_gt_u32 s[40:41], s{sSP}, v{T0}
        v_add_u32 v{T0}, 64, v{T0}
        v_cmp_gt_u32 s[42:43], s{sSP}, v{T0}
        s_mov_b32 s{sSP}, 0
        s_waitcnt lgkmcnt(0)
        ''')
        A1(r, 99, Q1, (40, 42), par, live=False)
        r('s_waitcnt lgkmcnt(0)')
        A2(r, 99, Q1, (40, 42), par, live=False)
        r(f'''
        s_waitcnt lgkmcnt(0)
        s_cmp_le_u32 s{sSP}, {SPCAP-64}
        s_cbranch_scc1 B_rab{k}
        s_mov_b64 {sp(sLIVE)}, 0
        s_and_b32 s36, s{sSKIP}, 16
        s_add_u32 s{sRES}, s{sU}, s36
        s_branch B_rab{k}
        ''')
        tmp = Asm(); r.resolve(tmp, False); late.append(tmp.l)

    a.label(NAME)
    a(f'''
    s_cmp_ge_u32 s2, {NCU}
    s_cbranch_scc1 B_end
    s_load_dwordx2 s[56:57], s[0:1], {K_WS}
    s_load_dwordx2 s[54:55], s[0:1], {K_M}
    s_load_dwordx2 s[58:59], s[0:1], {K_DIST}
    s_load_dwordx2 s[60:61], s[0:1], {K_CEN}
    s_load_dwordx8 s[64:71], s[0:1], {K_WRBF}
    s_and_b32 s{sD}, s2, 7
    s_lshl_b32 s{sD}, s{sD}, 5
    s_lshr_b32 s36, s2, 3
    s_add_u32 s{sD}, s{sD}, s36
    v_lshrrev_b32 v34, 6, v0
    v_mul_u32_u24 v35, 24, v0
    v_lshlrev_b32 v36, 2, v0                     ; x*4
    v_readfirstlane_b32 s3, v34
    s_mul_i32 s36, s{sD}, {256*48}
    v_and_b32 v37, 63, v0                        ; lane
    v_and_b32 v38, 15, v0                        ; n
    v_lshrrev_b32 v39, 5, v37                    ; h
    v_lshrrev_b32 v33, 4, v37                    ; q
    v_lshlrev_b32 v41, 1, v38
    v_lshl_add_u32 v40, v39, 8, v41              ; (8h)*32 + n*2
    s_mul_i32 s{sST}, s3, 25
    s_sub_i32 s37, s3, 4
    s_max_i32 s37, s37, 0
    s_sub_u32 s{sST}, s{sST}, s37
    s_mul_i32 s37, s{sD}, {EPC*2}
    s_and_b32 s38, s37, 2
    s_sub_u32 s37, s37, s38
    s_waitcnt lgkmcnt(0)
    ''')
    srd(a, 12, 's56', 's57', TAB_OFF, TAB_BYTES)
    a(f'''
    buffer_load_dwordx4 v[46:49], v35, s[12:15], s36 offen
    buffer_load_dwordx2 v[50:51], v35, s[12:15], s36 offen offset:16
    ''')
    srd(a, 76, 's68', 's69', None, 512)
    for k in range(8): a(f'buffer_load_ushort v{16+k}, v40, s[76:79], 0 offen offset:{32*k}')
    srd(a, 80, 's58', 's59', 's37', EPC*2 + 2)
    a(f'''
    s_lshl_b32 s36, s{sST}, 5
    v_lshlrev_b32 v32, 4, v37                    ; lane*16
    buffer_load_dwordx4 v[56:59], v32, s[80:83], s36 offen
    v_lshl_add_u32 v42, v33, 7, v41              ; (4q)*32 + n*2
    v_lshl_add_u32 v43, v33, 6, v41              ; (2q)*32 + n*2
    v_lshlrev_b32 v44, 2, v33                    ; (2q)*2
    ''')
    R = 60
    srd(a, 84, 's70', 's71', None, 512)
    for k in range(4): a(f'buffer_load_ushort v{R+k}, v42, s[84:87], 0 offen offset:{32*k}')
    srd(a, 88, 's66', 's67', None, 512)
    for k in range(4): a(f'buffer_load_ushort v{R+4+k}, v42, s[88:91], 0 offen offset:{32*k}')
    srd(a, 72, 's64', 's65', None, 256)
    for k in range(2): a(f'buffer_load_ushort v{R+8+k}, v43, s[72:75], 0 offen offset:{32*k}')
    srd(a, 44, 's60', 's61', None, 16)
    for k in range(2): a(f'buffer_load_ushort v{R+10+k}, v44, s[44:47], 0 offen offset:{2*k}')
    srd(a, 4, 's54', 's55', None, 0 if 'nogather' in diag else E*32)
    srd(a, 8, 's56', 's57', None, REC_BYTES + 16)
    if 'stamp' in diag:
        srd(a, 92, 's56', 's57', 200000000, 1 << 20)
        a('s_lshl_b32 s98, s2, 3\ns_add_u32 s98, s98, s3\ns_lshl_b32 s98, s98, 7\nv_mov_b32 v42, v0')
        stamp(a, True); stamp(a); a('v_mov_b32 v0, v42')
    a(f'''
    v_lshlrev_b32 v41, 4, v0
    v_mov_b32 v42, 0
    v_mov_b32 v43, 0
    v_mov_b32 v44, 0
    v_mov_b32 v45, 0
    v_add_u32 v52, {L0}, v41
    v_add_u32 v53, {L0 + 8*8192}, v41
    s_mul_i32 s39, s3, {TSZ}
    s_add_u32 s39, s39, {TBL}
    v_add_u32 v54, s39, v32
    ''')
    nz = (TBL - L0) // 8192; rest = (TBL - L0) % 8192
    for k in range(nz): a(f'ds_write_b128 v{[52,53][k // 8]}, v[42:45] offset:{(k % 8)*8192}')
    for k in range(TSZ // 1024): a(f'ds_write_b128 v54, v[42:45] offset:{k*1024}')
    assert TSZ % 1024 == 0
    a(f'''
    v_cmp_gt_u32 vcc, {rest // 16}, v0
    s_mov_b64 exec, vcc
    ds_write_b128 v{[52,53][nz // 8]}, v[42:45] offset:{(nz % 8)*8192}
    s_mov_b64 exec, -1
    v_and_b32 v52, 31, v0
    v_lshlrev_b32 v52, 3, v52
    v_cmp_gt_u32 vcc, 200, v0
    s_mov_b64 exec, vcc
    ds_write_b32 v36, v52 offset:{CNT}
    ds_write_b32 v36, v52 offset:{CNT+800}
    ds_write_b32 v42, v42 offset:{FLAG}
    s_mov_b64 exec, -1
    s_mov_b32 s{sEPC}, 0
    s_mov_b32 s{sEPA}, 1
    s_mov_b32 s{sNM32}, 0xffffffe0
    s_mov_b32 s{sLIM}, {32 << 16}
    s_mov_b32 s{sF8}, 0xf8
    s_mov_b32 s{sFFFF}, 0xffff
    s_mov_b32 s{sSP}, 0
    s_mov_b32 s{sRES}, 0
    s_mov_b64 {sp(sLIVE)}, -1
    s_mov_b64 {sp(sSKIP)}, 0
    s_mov_b32 s{sSW}, 0
    s_mul_i32 s{sSPB}, s3, {SPCAP*8}
    s_add_u32 s{sSPB}, s{sSPB}, {SPILL}
    s_cmp_lt_u32 s3, 4
    s_cselect_b32 s37, 25, 24
    s_cselect_b32 s{sW24}, 0, 0x100
    s_bfm_b32 s{sNG}, s37, 0
    s_mov_b32 s{sNG+1}, 0
    s_lshl_b32 s36, s{sST}, 8
    v_and_b32 v52, 31, v37
    v_lshl_add_u32 v{vLB}, v52, 3, s36
    v_lshlrev_b32 v{vHALF}, 4, v39
    s_lshl_b32 s36, s3, 11
    s_add_u32 s36, s36, {PST}
    s_sub_u32 s37, s36, {PIMM}
    v_lshl_add_u32 v53, v39, 10, s37
    v_bfe_u32 v54, v52, 2, 2
    v_lshl_add_u32 v53, v54, 8, v53              ; + q*256
    v_lshrrev_b32 v54, 4, v52
    v_lshl_add_u32 v53, v54, 3, v53              ; + j*8
    v_and_b32 v54, 3, v52
    v_lshl_add_u32 v{vKC}, v54, 1, v53           ; + r*2
    v_lshl_add_u32 v54, v33, 8, s36
    v_lshl_add_u32 v{vPR}, v38, 4, v54           ; P base + q*256 + e*16
    v_lshlrev_b32 v{vX}, 3, v33
    v_lshl_or_b32 v{vX}, v38, 17, v{vX}          ; q*8 | (2e << 16)
    s_add_u32 s{sROW}, s39, {NXMAX*32}
    s_add_u32 s{sFAR}, s{sROW}, {8*NPH*32}
    v_and_b32 v53, 1, v33
    v_cmp_eq_u32 s[40:41], 0, v53
    v_lshrrev_b32 v52, 1, v0                     ; tile j
    s_mov_b32 s36, {TSTRIDE}
    v_mul_u32_u24 v52, s36, v52
    v_and_b32 v53, 1, v0                         ; hh
    v_mul_u32_u24 v54, {6*256}, v53
    v_lshrrev_b32 v55, 1, v37
    v_lshl_add_u32 v54, v55, 3, v54
    v_add_u32 v54, s{sROW}, v54
    v_mov_b32 v55, 0
    s_mov_b32 s{sNX}, 0
    s_waitcnt vmcnt(21)
    ''')
    for k in range(6):
        e = 46 + k
        a(f'''
        v_sub_u32_sdwa v35, v{e}, v{e} dst_sel:DWORD dst_unused:UNUSED_PAD src0_sel:WORD_1 src1_sel:WORD_0
        v_and_b32 v34, s{sFFFF}, v{e}
        v_max_u32 v36, 1, v35
        v_lshl_add_u32 v34, v34, 3, v52
        v_subrev_u32 v36, 1, v36
        v_cmp_lt_u32 vcc, 32, v35
        v_max_u32 v55, v55, v35
        v_lshl_or_b32 v35, v36, 16, v35
        ''')
        if 6 + k >= NPH: a('s_mov_b32 exec_lo, 0x55555555\ns_mov_b32 exec_hi, 0x55555555')
        a(f'ds_write_b64 v54, v[34:35] offset:{k*256}')
        if 6 + k >= NPH: a('s_mov_b64 exec, -1')
        a(f's_cbranch_vccnz B_x{k}\nB_xb{k}:')
        stubs(f'''
        B_x{k}:
        v_mbcnt_lo_u32_b32 v36, vcc_lo, 0
        v_mbcnt_hi_u32_b32 v36, vcc_hi, v36
        s_bcnt1_i32_b64 s37, vcc
        v_add_u32 v36, s{sNX}, v36
        s_add_u32 s{sNX}, s{sNX}, s37
        s_cmp_gt_u32 s{sNX}, {4*NXMAX}
        s_cbranch_scc1 B_xb{k}
        v_add_u32 v34, 256, v34
        v_subrev_u32 v35, {32 + (32 << 16)}, v35
        s_sub_u32 s37, s{sROW}, 8
        v_lshlrev_b32 v36, 3, v36
        v_sub_u32 v36, s37, v36
        s_mov_b64 exec, vcc
        ds_write_b64 v36, v[34:35]
        s_mov_b64 exec, -1
        s_branch B_xb{k}
        ''')
    for sh in ('row_shr:1 row_mask:0xf', 'row_shr:2 row_mask:0xf', 'row_shr:4 row_mask:0xf', 'row_shr:8 row_mask:0xf', 'row_bcast:15 row_mask:0xa', 'row_bcast:31 row_mask:0xc'):
        a(f'v_max_u32_dpp v55, v55, v55 {sh} bank_mask:0xf')
    a(f'''
    v_readlane_b32 s36, v55, 63
    s_add_u32 s37, s{sNX}, 3
    s_lshr_b32 s37, s37, 2
    s_lshl_b32 s37, s37, 5
    s_sub_u32 s{sU}, s{sROW}, s37
    s_mov_b32 s{sUE}, s{sFAR}
    s_cmp_gt_u32 s{sNX}, {4*NXMAX}
    s_cselect_b32 s37, 65, 0
    s_max_u32 s37, s37, s36
    s_cmp_gt_u32 s37, 64
    s_cbranch_scc0 B_nofb
    s_mov_b32 s{sU}, s{sROW}
    s_add_u32 s36, s36, 31
    s_lshr_b32 s36, s36, 5
    s_mul_i32 s36, s36, {8*NPH*32}
    s_add_u32 s{sUE}, s{sROW}, s36
    B_nofb:
    s_waitcnt vmcnt(0)
    ''')
    for k in range(4):
        a(f'''
        v_lshl_or_b32 v{16+2*k}, v{17+2*k}, 16, v{16+2*k}
        v_cndmask_b32 v{W+4+k}, v{16+2*k}, 0, s[40:41]
        v_cndmask_b32 v{W+k}, 0, v{16+2*k}, s[40:41]
        ''')
    SQ = 0x40731700
    import struct, math
    SQ = struct.unpack('<I', struct.pack('<f', math.sqrt(10*math.log2(math.e))))[0]
    a(f'''
    s_lshl_b32 s36, s3, 10
    s_add_u32 s36, s36, {DST}
    v_add_u32 v33, s36, v32
    ds_write_b128 v33, v[56:59]
    v_lshl_or_b32 v56, v{R+1}, 16, v{R}          ; w_up
    v_lshl_or_b32 v57, v{R+3}, 16, v{R+2}
    v_lshl_or_b32 v58, v{R+6}, 16, v{R+4}
    v_lshl_or_b32 v59, v{R+7}, 16, v{R+5}
    v_lshl_or_b32 v60, v{R+9}, 16, v{R+8}        ; w_rbf
    v_mov_b32 v61, 0
    v_lshlrev_b32 v62, 16, v{R+10}
    v_lshlrev_b32 v63, 16, v{R+11}
    v_mul_f32 v62, {(SQ | 0x80000000):#x}, v62   ; -center*s
    v_mul_f32 v63, {(SQ | 0x80000000):#x}, v63
    v_add_u32 v33, {WST}, v32
    ds_write_b128 v33, v[56:59]
    ds_write_b128 v33, v[60:63] offset:1024
    s_waitcnt lgkmcnt(0)
    s_barrier
    ''')
    stamp(a)
    q = Seq()
    q(f'B_xl:\ns_cmp_ge_u32 s{sU}, s{sROW}\ns_cbranch_scc1 B_xe')
    L1s(q, 0); L2s(q, 0, Q0, 40, 42)
    q('s_waitcnt vmcnt(0)'); A1(q, 0, Q0, (40, 42), 0)
    q('s_waitcnt lgkmcnt(0)'); A2(q, 0, Q0, (40, 42), 0)
    q(f's_cmp_eq_u32 s{sLIVE}, 0\ns_cbranch_scc1 B_pz\ns_add_u32 s{sU}, s{sU}, 32\ns_branch B_xl\nB_xe:')
    pq = lambda s: 16 + 4*s
    pm = lambda s: (58 + 4*s, 60 + 4*s)
    pp = lambda s: 56 + 2*s
    for s in range(NS): L1s(q, s, pp(s))
    for s in range(NS): L2s(q, s, pq(s), *pm(s), pp(s))
    for k in range(72, 256): q(f'v_mov_b32 v{k}, 0')
    for s in range(NS):
        q.wait('v', [('rec', s)])
        A1(q, s, pq(s), pm(s), 0, p2=pp(s))
        if s >= 1:
            q.wait('l', [('ret', s-1)]); A2(q, s-1, pq(s-1), pm(s-1), 0, p2=pp(s-1))
    q.wait('l', [('ret', NS-1)]); A2(q, NS-1, pq(NS-1), pm(NS-1), 0, p2=pp(NS-1))
    q('s_branch B_pe\nB_pz:')
    for k in range(72, 256): q(f'v_mov_b32 v{k}, 0')
    q('B_pe:')
    for v in range(5): q(f'v_mov_b32 v{PK(v)}, v{vKC}\ns_mov_b64 {sp(MK(v))}, 0')
    for k in list(range(G, G+12)) + list(range(U, U+16)) + list(range(56, 72)): q(f'v_mov_b32 v{k}, 0')
    sweep_end(q, None)
    q.resolve(a, False)

    MF = 'v_mfma_f32_16x16x32_bf16'
    GS = lambda v: Q0 if v == 24 else G + 4*(v % 3)
    q = Seq()
    q('B_loop:')
    for par in range(2):
        LB = [L0, L1][par]
        reappend(q, 1-par)
        q(f'ds_read_b64 {vp(LP)}, v{vLB} offset:{LB}', tag=('lst', par, 0))
        q(f'v_mov_b32 v{T0}, 0')
        q(f'ds_read_b32 v{vF}, v{T0} offset:{FLAG}', tag=('flag', par))
        for v in range(NV):
            av = (v - 3) % NV; ap = par if v >= 3 else 1-par
            bv = (v - 4) % NV
            if v: q.wait('l', [('pr', par, v - 1)])
            q(f'{MF} {vp(ACC(bv),4)}, {vp(XB,4)}, {vp(U,4)}, {vp(ACC(bv),4)}', drop='nomfma' in diag)
            q(f'{MF} {vp(ACC(bv)+4,4)}, {vp(XB,4)}, {vp(U+4,4)}, {vp(ACC(bv)+4,4)}', drop='nomfma' in diag)
            if v == 3:
                q(f'''
                v_readfirstlane_b32 s36, v{vF}
                s_add_u32 s36, s36, 1
                s_cmp_lt_u32 s36, s{sSW}
                s_cbranch_scc1 B_epi
                s_cmp_gt_u32 s{sSW}, {MAXSW}
                s_cbranch_scc1 B_epi
                ''')
            if v == 0: q.wait('l', [('lst', par, 0)])
            q(f'''
            v_bfe_u32 v{T0}, v{LP}, 8, 4
            v_and_b32 v{T1}, s{sFFFF}, v{PK(av)}
            v_lshl_add_u32 v{PK(v)}, v{T0}, 4, v{vKC}
            v_and_b32 v{T0}, s{sFFFF}, v{PK(bv)}
            v_cmpx_eq_u32_sdwa {sp(MK(v))}, s{sEP24 if v == 24 else sEPC}, v{LP} src0_sel:DWORD src1_sel:BYTE_0
            v_lshrrev_b32 v{LP}, 7, v{LP}
            v_lshrrev_b32_sdwa v{PK(v)}, v{vHALF}, v{LP+1} dst_sel:WORD_1 dst_unused:UNUSED_PRESERVE src0_sel:DWORD src1_sel:DWORD
            v_and_or_b32 v{LP}, v{LP}, s{sNM32}, v{vHALF}
            ''')
            q.wait('v', [('gat', ap, av)])
            q(f'{MF} {vp(U,4)}, {vp(GS(av),4)}, {vp(W,4)}, 0', drop='nomfma' in diag)
            q(f'{MF} {vp(U+4,4)}, {vp(GS(av),4)}, {vp(W+4,4)}, 0', drop='nomfma' in diag)
            q(f'buffer_load_dwordx4 {vp(GS(v),4)}, v{LP}, s[4:7], 0 offen', tag=('gat', par, v), drop='nodma' in diag)
            q(f's_mov_b64 exec, {sp(MK(bv))}')
            q(f'ds_write_b16_d16_hi v{T0}, v{vHALF} offset:{PIMM}', drop='nopw' in diag)
            q(f's_mov_b64 exec, {sp(MK(av))}')
            q(f'ds_write_b16_d16_hi v{T1}, v{PK(av)} offset:{PIMM}', drop='nopw' in diag)
            q('s_mov_b64 exec, -1')
            if v + 1 < NV: q(f'ds_read_b64 {vp(LP)}, v{vLB} offset:{LB + (v+1)*256}', tag=('lst', par, v+1))
            for k in range(4): q(f'v_cvt_pk_bf16_f32 v{XB+k}, v{U+2*k}, v{U+2*k+1}')
            q(f'ds_read_b128 {vp(U,4)}, v{vPR}', drop='nopr' in diag)
            q(f'ds_read_b128 {vp(U+4,4)}, v{vPR} offset:1024', tag=('pr', par, v), drop='nopr' in diag)
            qd = lambda s: Q0 + 4*(s % 2); mk = lambda s: (40 + 4*(s % 2), 42 + 4*(s % 2))
            for s in range(NS):
                if v == APOS[s] + DA + 1: q.wait('l', [('ret', s)]); A2(q, s, qd(s), mk(s), 1-par)
            for s in range(NS):
                if v == APOS[s]: L2s(q, s, qd(s), *mk(s))
            for s in range(NS):
                if v == APOS[s] - 1: L1s(q, s)
                if v == APOS[s] + DA: q.wait('v', [('rec', s)]); A1(q, s, qd(s), mk(s), 1-par)
            if v == 23:
                for k in range(4): q(f'v_mov_b32 v{Q0+k}, 0')
            if v == 0:
                q(f'''
                v_mbcnt_lo_u32_b32 v{T0}, -1, 0
                v_mbcnt_hi_u32_b32 v{T0}, -1, v{T0}
                v_add_u32 v{T0}, s{sST}, v{T0}
                v_and_b32 v{T1}, 31, v{T0}
                v_lshlrev_b32 v{T0}, 2, v{T0}
                v_lshlrev_b32 v{T1}, 3, v{T1}
                s_mov_b64 exec, {sp(sNG)}
                ds_write_b32 v{T0}, v{T1} offset:{CNT + 800*par}
                s_cmp_eq_u32 s{sDID}, 0
                s_cbranch_scc1 B_nf{par}
                s_mov_b64 exec, 1
                v_mov_b32 v{T0}, s{sSW}
                v_mov_b32 v{T1}, 0
                ''')
                q(f'ds_max_u32 v{T1}, v{T0} offset:{FLAG}', maybe=True)
                q(f'B_nf{par}:\ns_mov_b64 exec, -1')
        sweep_end(q, par)
    q('s_branch B_loop')
    fixL2(q)
    q.resolve(a, True)

    a.label('B_epi')
    stamp(a)
    a(f'''
    s_load_dwordx2 s[62:63], s[0:1], {K_OUT}
    s_mul_i32 s36, s{sD}, {EPC*32}
    v_mbcnt_lo_u32_b32 v0, -1, 0
    v_mbcnt_hi_u32_b32 v0, -1, v0                ; lane
    s_lshl_b32 s38, s{sST}, 9
    s_lshl_b32 s39, s{sST}, 8
    s_add_u32 s40, s39, {L1}                     ; piece 1
    s_add_u32 s39, s39, {L0}                     ; piece 0
    s_mul_i32 s41, s3, {TSZ}
    s_add_u32 s41, s41, {TBL}                    ; piece 2
    v_lshlrev_b32 v1, 4, v0
    v_and_b32 v2, 15, v0                         ; e
    v_lshrrev_b32 v3, 4, v0                      ; q
    s_waitcnt vmcnt(0) lgkmcnt(0)
    ''')
    srd(a, 4, 's54', 's55', 's36', EPC*32)
    piece = lambda pr: (39 + min(pr // 6, 2), (pr % 6)*1024)
    q = Seq()
    for pr in range(13):
        sg, off = piece(pr)
        q(f's_add_u32 m0, s{sg}, {off}\ns_add_u32 s42, s38, {pr*1024}')
        q('buffer_load_dwordx4 v1, s[4:7], s42 offen lds', tag=('m', pr))
    t = Asm(); srd(t, 8, 's62', 's63', 's36', EPC*32); q('\n'.join(t.l))
    WU, W0, W1, WR, CS, KS, RB, TT, DD, MM, A0, A1_, VV = 8, 10, 12, 14, 16, 18, 20, 22, 24, 28, 32, 36, 40
    q(f'''
    v_add_u32 v5, {WST}, v1
    ds_read_b128 v[44:47], v5
    ds_read_b128 v[48:51], v5 offset:1024
    s_mul_i32 s37, s{sD}, {EPC*2}
    s_and_b32 s37, s37, 2
    s_lshl_b32 s42, s3, 10
    s_add_u32 s37, s37, s42
    s_add_u32 s37, s37, {DST}
    v_lshl_add_u32 v5, v2, 1, s37
    v_lshlrev_b32 v4, 5, v2
    v_lshl_add_u32 v4, v3, 3, v4                 ; e*32 + q*8
    v_add_u32 v2, s39, v4
    v_add_u32 v3, s40, v4
    v_add_u32 v4, s41, v4
    s_mov_b32 s43, 0xffff0000
    v_mov_b32 v{KS}, {SQ:#x}
    v_mov_b32 v{RB+1}, 0
    v_mov_b32 v{W0+1}, 0
    v_mov_b32 v{W1+1}, 0
    v_mov_b32 v{WR+1}, 0
    ''')
    q(f'ds_read_u16 v{DD}, v5', tag=('d', 0))
    q(f'ds_read_u16 v{DD+2}, v5 offset:32', tag=('d', 1))
    q(f'''
    s_waitcnt lgkmcnt(2)
    v_mov_b32 v{WU}, v44
    v_mov_b32 v{WU+1}, v45
    v_mov_b32 v{W0}, v46
    v_mov_b32 v{W1}, v47
    v_mov_b32 v{WR}, v48
    v_mov_b32 v{CS}, v50
    v_mov_b32 v{CS+1}, v51
    ''')
    MF = 'v_mfma_f32_16x16x16_bf16'
    def E1(v):
        d = DD + 2*(v % 2); V = VV + 4*(v % 2)
        q.wait('l', [('d', v)])
        q(f'''
        v_lshlrev_b32 v{d}, 16, v{d}
        v_pk_fma_f32 {vp(TT)}, {vp(d)}, {vp(KS)}, {vp(CS)} op_sel_hi:[0,0,1]
        ''')
        if v + 2 < NV: q(f'ds_read_u16 v{d}, v5 offset:{32*(v+2)}', tag=('d', v+2))
        q(f'''
        v_pk_mul_f32 {vp(TT)}, {vp(TT)}, {vp(TT)} neg_lo:[0,1] neg_hi:[0,1]
        v_exp_f32 v{TT}, v{TT}
        v_exp_f32 v{TT+1}, v{TT+1}
        ''')
        base = 2 + min(v // 12, 2); off = (v % 12)*512
        if v % 2 == 0: q.wait('v', [('m', v // 2)])
        q(f'ds_read_b64 {vp(MM + 2*(v % 2))}, v{base} offset:{off}', tag=('mm', v))
        q(f'''
        v_cvt_pk_bf16_f32 v{RB}, v{TT}, v{TT+1}
        {MF} {vp(A0,4)}, {vp(W0)}, {vp(RB)}, 0
        {MF} {vp(A1_,4)}, {vp(W1)}, {vp(RB)}, 0
        {MF} {vp(V,4)}, {vp(WR)}, {vp(RB)}, 0
        ''')
    def E2(v):
        A = ACC(v)
        q(f'''
        v_pk_mul_f32 {vp(A)}, {vp(A)}, {vp(A0)}
        v_pk_mul_f32 {vp(A+2)}, {vp(A+2)}, {vp(A0+2)}
        v_pk_fma_f32 {vp(A)}, {vp(A+4)}, {vp(A1_)}, {vp(A)}
        v_pk_fma_f32 {vp(A+2)}, {vp(A+6)}, {vp(A1_+2)}, {vp(A+2)}
        v_cvt_pk_bf16_f32 v{A}, v{A}, v{A+1}
        v_cvt_pk_bf16_f32 v{A+1}, v{A+2}, v{A+3}
        {MF} {vp(A+4,4)}, {vp(WU)}, {vp(A)}, 0
        ''')
    def E3(v):
        A = ACC(v); V = VV + 4*(v % 2); m = MM + 2*(v % 2)
        base = 2 + min(v // 12, 2); off = (v % 12)*512
        q.wait('l', [('mm', v)])
        q(f'''
        v_lshlrev_b32 v48, 16, v{m}
        v_and_b32 v49, s43, v{m}
        v_lshlrev_b32 v50, 16, v{m+1}
        v_and_b32 v51, s43, v{m+1}
        v_pk_fma_f32 v[48:49], {vp(A+4)}, {vp(V)}, v[48:49]
        v_pk_fma_f32 v[50:51], {vp(A+6)}, {vp(V+2)}, v[50:51]
        v_cvt_pk_bf16_f32 v52, v48, v49
        v_cvt_pk_bf16_f32 v53, v50, v51
        ds_write_b64 v{base}, v[52:53] offset:{off}
        ''')
        if v % 2 == 1 or v == 24:
            pr = v // 2; sg, off2 = piece(pr)
            q(f's_add_u32 s42, s{sg}, {off2}\nv_add_u32 v6, s42, v1')
            q(f'ds_read_b128 {vp(A,4)}, v6', tag=('o', pr))
    def ST(pr):
        A = ACC(min(2*pr + 1, 24))
        q(f's_add_u32 s42, s38, {pr*1024}')
        q.wait('l', [('o', pr)])
        q(f'buffer_store_dwordx4 {vp(A,4)}, v1, s[8:11], s42 offen')
    E1(0)
    for v in range(NV - 1):
        E2(v); E1(v + 1)
        if v % 2 == 0 and v >= 2: ST(v // 2 - 1)
        E3(v)
    ST(11)
    q('s_cmp_ge_u32 s3, 4\ns_cbranch_scc1 B_last')
    E2(24); E3(24)
    q('s_mov_b32 exec_hi, 0')
    ST(12)
    q.resolve(a, False)
    a.label('B_last')
    if 'stamp' in diag:
        a('s_mov_b64 exec, -1\ns_waitcnt vmcnt(0)')
        stamp(a); stamp(a, True)
    a.label('B_end')
    a('s_endpgm')
    out = a.l + stubs.l
    for l in late: out += l
    return out
def fixL2(q):
    pass
```

```python
from common import *
NAME = 'bin_kernel'
LDS = 163840
H = 17616; SB = 12416; WT = 12352
assert 3*H >= TILE + 256*NPH and (TILE + 256*NPH)*6 <= TSTRIDE
SD = 'dst_sel:DWORD dst_unused:UNUSED_PAD src0_sel:DWORD'
def gen(PF=8, ldf='nt', mpf=0, stag=0, diag=()):
    a = Asm()
    def stamp(real=False):
        if 'stamp' not in diag: return
        a(f'''
        {'s_memrealtime' if real else 's_memtime'} s[76:77]
        s_waitcnt lgkmcnt(0)
        v_mov_b32 v22, s76
        v_mov_b32 v23, 0
        s_mov_b64 exec, 1
        buffer_store_dword v22, v23, s[72:75], s78 offen
        s_mov_b64 exec, -1
        s_add_u32 s78, s78, 4
        ''')
    NGR = 25
    RG = lambda q: 56 + 8*q
    R0 = lambda k: 56 + 2*k
    R1 = lambda k: 57 + 2*k
    TA = lambda q: 56 - 2*PF + 2*(q % PF)
    a.label(NAME)
    a(f'''
    s_cmp_ge_u32 s2, {NCU}
    s_cbranch_scc1 A_end
    s_load_dwordx4 s[36:39], s[0:1], {K_II}
    s_load_dwordx2 s[40:41], s[0:1], {K_ANG}
    s_load_dwordx2 s[44:45], s[0:1], {K_WS}
    s_load_dwordx2 s[42:43], s[0:1], {K_M}
    s_load_dwordx2 s[62:63], s[0:1], {K_DIST}
    s_mul_i32 s46, s2, {TILE*4}
    s_mul_i32 s47, s2, {TILE*2}
    s_mul_i32 s48, s2, {TSTRIDE}
    v_lshlrev_b32 v1, 4, v0                      ; x*16
    v_lshlrev_b32 v2, 3, v0                      ; x*8
    v_mov_b32 v3, 1
    v_mov_b32 v4, 0
    v_mov_b32 v5, 0
    v_mov_b32 v6, 0
    v_mov_b32 v7, 0
    s_waitcnt lgkmcnt(0)
    ''')
    srd(a, 4, 's36', 's37', 's46', TILE*4)
    srd(a, 8, 's38', 's39', 's46', TILE*4)
    srd(a, 12, 's40', 's41', 's47', TILE*2)
    def loads(q):
        a(f's_mov_b32 s50, {q*8192}\ns_mov_b32 s51, {q*4096}')
        a(f'buffer_load_dwordx4 v[{RG(q)}:{RG(q)+3}], v1, s[4:7], s50 offen {ldf}')
        a(f'buffer_load_dwordx4 v[{RG(q)+4}:{RG(q)+7}], v1, s[8:11], s50 offen {ldf}')
        a(f'buffer_load_dwordx2 v[{TA(q)}:{TA(q)+1}], v2, s[12:15], s51 offen {ldf}')
    if 'stamp' in diag:
        srd(a, 72, 's44', 's45', 200000000, 1 << 20)
        a('v_lshrrev_b32 v8, 6, v0\ns_nop 1\nv_readfirstlane_b32 s3, v8\ns_lshl_b32 s78, s2, 3\ns_add_u32 s78, s78, s3\ns_lshl_b32 s78, s78, 8')
        stamp(True); stamp(); a('s_waitcnt vmcnt(0)')
    def slow(tag):
        a(f's_bitcmp1_b32 s2, 3\ns_cbranch_scc0 A_f{tag}\ns_waitcnt vmcnt(0)\nA_f{tag}:')
    for q in range(PF):
        loads(q)
        if q < stag: slow(q)
    for k in range(2): a(f'ds_write_b128 v1, v[4:7] offset:{k*8192}')
    srd(a, 16, 's44', 's45', 's48', H*6)
    srd(a, 20, 's44', 's45', TAB_OFF, TAB_BYTES)
    srd(a, 64, 's42', 's43', None, E*32)
    srd(a, 68, 's62', 's63', None, E*2)
    a(f'''
    s_mov_b32 s24, 1374390
    s_mov_b32 s25, {-EPC}
    s_mov_b32 s26, {MPH}
    s_mov_b32 s27, 0xffff0000
    s_mov_b32 s28, 0xffff
    s_mov_b32 s29, {H}
    s_mov_b32 s33, 0x07060302
    s_mov_b32 s32, {(TILE - 24*2048)//4}
    v_cmp_gt_u32 s[30:31], s32, v0
    v_lshrrev_b32 v8, 6, v0
    s_waitcnt lgkmcnt(0)
    v_readfirstlane_b32 s3, v8
    s_barrier
    ''')
    def prefetch(pos):
        if mpf != pos: return
        a(f'''
        v_lshlrev_b32 v9, 7, v0
        s_mul_i32 s50, s2, {EPC*32}
        s_and_b32 s50, s50, 0xffffff80
        s_add_u32 s51, s50, 65536
        s_mul_i32 s52, s2, {EPC*2}
        buffer_load_dword v10, v9, s[64:67], s50 offen
        v_cmp_gt_u32 vcc, {(EPC*32 + 127 + 127)//128 - 512}, v0
        s_mov_b64 exec, vcc
        buffer_load_dword v10, v9, s[64:67], s51 offen
        s_mov_b64 exec, -1
        v_cmp_gt_u32 vcc, 50, v0
        s_mov_b64 exec, vcc
        buffer_load_ushort v10, v9, s[68:71], s52 offen
        s_mov_b64 exec, -1
        ''')
    for q in range(NGR):
        issued = min(NGR, q + PF)
        a(f's_waitcnt vmcnt({3*(issued - q - 1)})')
        if q == NGR-1: a('s_mov_b64 exec, s[30:31]')
        td = [12, 13, 14, 15]; tp = [16, 17, 18, 19]; tl = [20, 21, 22, 23]
        I = lambda e: RG(q) + e; O = lambda e: RG(q) + 4 + e
        for e in range(4): a(f'v_mul_hi_u32_u24 v{td[e]}, s24, v{O(e)}')
        for e in range(4): a(f'v_mul_hi_u32_u24 v{tp[e]}, s26, v{I(e)}')
        for e in range(4): a(f'v_mad_i32_i24 v{tl[e]}, v{td[e]}, s25, v{O(e)}')
        for e in range(4): a(f'v_lshl_or_b32 v{tp[e]}, v{tp[e]}, 8, v{td[e]}')
        for e in range(4): a(f'v_lshlrev_b32 v{tp[e]}, 2, v{tp[e]}')
        for e in range(4): a(f'v_and_b32 v{td[e]}, 15, v{tl[e]}')
        for e in range(4):
            a(f'ds_add_u32 v{tp[e]}, v3')
            a(f'v_lshrrev_b32 v{tl[e]}, 4, v{tl[e]}')
            a(f'v_lshl_or_b32 v{td[e]}, v{I(e)}, 4, v{td[e]}')
        for e in range(4):
            k = 4*q + e
            a(f'v_lshl_or_b32 v{R0(k)}, v{td[e]}, 8, v{tl[e]}')
            if e % 2 == 0: a(f'v_lshl_or_b32 v{R1(k)}, v{TA(q)+e//2}, 16, v{tp[e]}')
            else: a(f'v_and_or_b32 v{R1(k)}, v{TA(q)+e//2}, s27, v{tp[e]}')
        if q + PF < NGR: loads(q + PF)
    a('s_mov_b64 exec, -1')
    prefetch(1)
    a('s_waitcnt lgkmcnt(0)')
    stamp()
    a('s_barrier')
    stamp()
    C = 12; Q = 28; PB = 40
    a('v_mul_u32_u24 v11, 24, v0')
    for k in range(3): a(f'ds_read_b64 v[{C+2*k}:{C+2*k+1}], v11 offset:{8*k}')
    a('s_waitcnt lgkmcnt(0)')
    for k in range(6): a(f'v_and_b32 v{PB+k}, 1, v{C+k}')
    for k in range(6): a(f'v_add_u32 v{C+k}, v{C+k}, v{PB+k}')
    for k in range(1, 6): a(f'v_add_u32 v{C+k}, v{C+k}, v{C+k-1}')
    a(f'v_mov_b32 v46, v{C+5}')
    for sh in ('row_shr:1 row_mask:0xf', 'row_shr:2 row_mask:0xf', 'row_shr:4 row_mask:0xf', 'row_shr:8 row_mask:0xf', 'row_bcast:15 row_mask:0xa', 'row_bcast:31 row_mask:0xc'):
        a(f'v_add_u32_dpp v46, v46, v46 {sh} bank_mask:0xf')
    a(f'''
    v_readlane_b32 s35, v46, 63
    s_lshl_b32 s50, s3, 2
    s_add_u32 s50, s50, {WT}
    v_mov_b32 v47, s50
    v_mov_b32 v48, s35
    s_mov_b64 exec, 1
    ds_write_b32 v47, v48
    s_mov_b64 exec, -1
    v_sub_u32 v46, v46, v{C+5}
    v_mov_b32 v47, {WT}
    s_waitcnt lgkmcnt(0)
    s_barrier
    ds_read_b128 v[48:51], v47
    ds_read_b128 v[52:55], v47 offset:16
    s_mov_b32 s35, 0
    s_mov_b32 s34, 0
    s_waitcnt lgkmcnt(0)
    ''')
    for w in range(8):
        a(f'v_readfirstlane_b32 s50, v{48+w}\ns_add_u32 s34, s34, s50\ns_cmp_eq_u32 s3, {w+1}\ns_cselect_b32 s35, s34, s35')
    a(f'v_add_u32 v{Q}, s35, v46')
    for k in range(1, 7): a(f'v_add_u32 v{Q+k}, v{Q}, v{C+k-1}')
    for k in range(6): a(f'v_lshl_or_b32 v{Q+k}, v{PB+k}, 16, v{Q+k}')
    for k in range(3): a(f'ds_write_b64 v11, v[{Q+2*k}:{Q+2*k+1}] offset:{8*k}')
    a(f'''
    v_cmp_eq_u32 vcc, 511, v0
    s_mov_b64 exec, vcc
    ds_write_b32 v11, v{Q+6} offset:24
    s_mov_b64 exec, -1
    s_mul_i32 s34, s34, 6
    v_and_b32 v45, 255, v0                       ; d
    v_lshrrev_b32 v46, 8, v0                     ; hh
    v_mul_u32_u24 v47, {6*1024}, v46
    v_lshl_add_u32 v47, v45, 2, v47
    v_mul_u32_u24 v45, {256*48}, v45
    v_mad_u32_u24 v45, v46, 24, v45
    s_mul_i32 s50, s2, 48
    s_waitcnt lgkmcnt(0)
    s_barrier
    ''')
    for k in range(6): a(f'ds_read_b32 v{C+k}, v47 offset:{1024*k}\nds_read_u16 v{Q+k}, v47 offset:{1024*k+4}')
    a('s_waitcnt lgkmcnt(0)\ns_barrier')
    for k in range(6): a(f'v_sub_u32_sdwa v{Q+k}, v{Q+k}, v{C+k} {SD} src1_sel:WORD_0')
    for k in range(6): a(f'v_sub_u32_sdwa v{Q+k}, v{Q+k}, v{C+k} {SD} src1_sel:WORD_1')
    for k in range(6): a(f'v_perm_b32 v{48+k}, v{Q+k}, v{C+k}, s{79}'.replace('s79', 's53'))
    a.l.insert(len(a.l) - 18, '    s_mov_b32 s53, 0x05040100')
    a('''
    buffer_store_dwordx4 v[48:51], v45, s[20:23], s50 offen
    buffer_store_dwordx2 v[52:53], v45, s[20:23], s50 offen offset:16
    ''')
    stamp()
    prefetch(2)
    NR = 8
    ad = [12 + k for k in range(NR)]; rr = [20 + k for k in range(NR)]
    def issue(k0):
        if k0 == 96:
            for k in range(k0, k0+4): a(f'v_mov_b32 v{rr[k % NR]}, -1')
            a('s_mov_b64 exec, s[30:31]')
        for k in range(k0, k0+4): a(f'v_and_b32 v{ad[k % NR]}, s28, v{R1(k)}')
        for k in range(k0, k0+4): a(f'ds_add_rtn_u32 v{rr[k % NR]}, v{ad[k % NR]}, v3')
        if k0 == 96: a('s_mov_b64 exec, -1')
    def scat(k0, c):
        t = [28, 29, 30, 31]
        if c == 0:
            for e in range(4): a(f'v_cmp_gt_u32_sdwa s[{54+2*e}:{55+2*e}], s29, v{R1(k0+e)} src0_sel:DWORD src1_sel:WORD_0')
            for e in range(4): a(f'v_lshlrev_b32_sdwa v{t[e]}, 3, v{R1(k0+e)} {SD} src1_sel:WORD_0')
        else:
            for e in range(4): a(f'v_subrev_u32_sdwa v{t[e]}, s32, v{R1(k0+e)} {SD} src1_sel:WORD_0')
            for e in range(4): a(f'v_cmp_gt_u32 s[{54+2*e}:{55+2*e}], s29, v{t[e]}')
            for e in range(4): a(f'v_lshlrev_b32 v{t[e]}, 3, v{t[e]}')
        for e in range(4):
            a(f's_mov_b64 exec, s[{54+2*e}:{55+2*e}]')
            a(f'ds_write_b64 v{t[e]}, v[{R0(k0+e)}:{R1(k0+e)}] offset:{SB}')
        a('s_mov_b64 exec, -1')
    issue(0)
    for k0 in range(0, 100, 4):
        if k0 + 4 < 100: issue(k0 + 4)
        a(f's_waitcnt lgkmcnt({4 if k0 in (0, 96) else 8})')
        for k in range(k0, k0+4): a(f'v_bfi_b32 v{R1(k)}, s28, v{rr[k % NR]}, v{R1(k)}')
        scat(k0, 0)
    a(f'''
    v_add_u32 v5, {SB}, v1
    v_add_u32 v6, {SB + 65536}, v1
    v_add_u32 v7, {SB + 131072}, v1
    v_mul_u32_u24 v4, 12, v0
    ''')
    for c in range(3):
        if c:
            a(f's_mov_b32 s32, {c*H}')
            for k0 in range(0, 100, 4): scat(k0, c)
        a('s_waitcnt lgkmcnt(0)\ns_barrier')
        stamp()
        prefetch(3 + c)
        a(f's_min_u32 s18, s34, {(c+1)*H*6}')
        NI = -(-H // 1024); RD = 4
        QD = lambda it: 32 + 4*(it % 6)
        def rd(it):
            a(f'ds_read_b128 v[{QD(it)}:{QD(it)+3}], v{5 + it // 8} offset:{(it % 8)*8192}')
        for it in range(RD-1): rd(it)
        for it in range(NI):
            if it + RD - 1 < NI: rd(it + RD - 1)
            q = QD(it)
            a(f'''
            s_mov_b32 s50, {c*H*6 + it*6144}
            s_waitcnt lgkmcnt({min(RD-1, NI-1-it)})
            v_perm_b32 v{q+1}, v{q+3}, v{q+1}, s33
            buffer_store_dwordx3 v[{q}:{q+2}], v4, s[16:19], s50 offen
            ''')
        if c < 2: a('s_barrier')
        stamp()
    if 'stamp' in diag:
        a('s_waitcnt vmcnt(0)'); stamp(); stamp(True)
    a.label('A_end')
    a('s_endpgm')
    return a.l
```

```python
from common import *
NAME = 'agg_kernel'
CNT = 0; FLAG = 1600; L0 = 1664; L1 = L0 + 196*256
PST = L1 + 196*256; PIMM = 65280
NXMAX = 7
TSZ = (NXMAX + 8*NPH + 1)*32
TBL = PST + 8*2048
SPILL = TBL + 8*TSZ; SPCAP = 128
DST = SPILL + 8*SPCAP*8
WST = DST + 8192
LDS = 163840
assert WST + 2048 <= LDS and TSZ <= 4096
NV = 25
MAXSW = 20000
T0, T1, vLB, vHALF, vKC, vPR, vX = range(7)
W = 8; G = 16; LP = 28; U = 30; XB = 38; Q0 = 42; Q1 = 46; vP2 = 50
PK = lambda v: [7, 52, 53, 54, 55][v % 5]
vF = Q1
ACC = lambda v: 56 + 8*v
sEPC, sEP24, sNM32, sLIM, sF8, sEPA, sFFFF = 16, 17, 18, 19, 20, 21, 22
sROW, sNX, sU, sUE, sSP, sRES, sDID = 23, 24, 25, 26, 27, 28, 29
sLIVE, sSKIP, sSW, sD, sSPB, sFAR, sST = 30, 32, 34, 35, 48, 49, 51
sKF = 70
sNG = 52
sW24 = 50
MK = lambda v: 60 + 2*(v % 5)
INC = 8 + (1 << 16)
def sp(r): return f's[{r}:{r+1}]'
def vp(r, n=2): return f'v[{r}:{r+n-1}]'
SD = 'dst_sel:DWORD dst_unused:UNUSED_PAD src0_sel:DWORD'

class Seq:
    def __init__(s): s.o = []
    def __call__(s, t, tag=None, maybe=False, drop=False):
        ls = [x.strip() for x in t.strip('\n').split('\n') if x.strip()]
        for x in ls:
            c = 'v' if x.startswith('buffer_') else ('l' if x.startswith('ds_') else None)
            s.o.append(dict(t='' if drop else x, c=c, tag=tag if c else None, maybe=maybe or drop))
    def wait(s, c, tags): s.o.append(dict(t=None, c=None, w=c, tags=tags))
    def resolve(s, a, cyclic):
        n = len(s.o)
        for k, x in enumerate(s.o):
            if x['t'] is not None: a(x['t']); continue
            cnt = 0; found = None; j = k - 1; steps = 0
            while steps < n:
                if j < 0:
                    if not cyclic: break
                    j += n
                y = s.o[j]
                if y['c'] == x['w']:
                    if y['tag'] in x['tags']: found = cnt; break
                    if not y['maybe']: cnt += 1
                j -= 1; steps += 1
            assert found is not None, x
            a(f's_waitcnt vmcnt({min(found,63)})' if x['w'] == 'v' else f's_waitcnt lgkmcnt({min(found,15)})')

def gen(APOS=(2,4,7,9,12,14,17,19), DA=3, recflags='', diag=()):
    NS = 8
    a = Asm(); stubs = Asm(); late = []
    uid = [0]
    def nid(): uid[0] += 1; return uid[0]
    def stamp(q, real=False):
        if 'stamp' not in diag: return
        q(f'''
        {'s_memrealtime' if real else 's_memtime'} s[96:97]
        s_waitcnt lgkmcnt(0)
        v_mov_b32 v{T0}, s96
        v_mov_b32 v{T1}, 0
        s_mov_b64 exec, 1
        ''')
        t = f'buffer_store_dword v{T0}, v{T1}, s[92:95], s98 offen'
        q(t, maybe=True) if isinstance(q, Seq) else q(t)
        q('s_mov_b64 exec, -1\ns_add_u32 s98, s98, 4')
    def k2(q, extra='0'):
        q(f'''
        v_mbcnt_lo_u32_b32 v{T0}, -1, 0
        v_mbcnt_hi_u32_b32 v{T0}, -1, v{T0}
        v_and_b32 v{T0}, 15, v{T0}
        v_lshl_add_u32 v{T0}, v{T0}, 1, {extra}
        v_mov_b32_sdwa v{vX}, v{T0} dst_sel:WORD_1 dst_unused:UNUSED_PRESERVE src0_sel:WORD_0
        ''')
    def L1s(q, sig, p2=vP2):
        k = nid()
        q(f'''
        s_add_u32 s36, s{sU}, {32*sig}
        s_cmp_ge_u32 s36, s{sFAR}
        s_cbranch_scc1 B_far{k}
        B_farb{k}:
        v_add_u32_sdwa v{T0}, s36, v{vX} {SD} src1_sel:WORD_0
        ''')
        q(f'ds_read_b64 {vp(p2)}, v{T0}', tag=('ent', sig))
        stubs(f'''
        B_far{k}:
        s_cmp_ge_u32 s36, s{sUE}
        s_cselect_b32 s36, s{sFAR}, s36
        s_cbranch_scc1 B_farb{k}
        s_sub_u32 s37, s36, s{sROW}
        s_lshr_b32 s37, s37, 5
        s_mov_b32 s38, {-(-(1 << 32) // (8*NPH))}
        s_mul_hi_u32 s37, s37, s38
        s_mul_i32 s38, s37, {8*NPH*32}
        s_sub_u32 s36, s36, s38
        s_lshl_b32 s37, s37, 5
        ''')
        k2(stubs, 's37'); stubs(f's_branch B_farb{k}')
    def L2s(q, sig, quad, m0, m1, p2=vP2, wait=True):
        if wait: q.wait('l', [('ent', sig)])
        q(f'''
        v_cmp_lt_u32_sdwa {sp(m1)}, v{vX}, v{p2+1} src0_sel:WORD_1 src1_sel:WORD_1
        v_mad_u32_u16 v{T0}, v{vX}, 6, v{p2} op_sel:[1,0,0,0]
        v_cmpx_lt_u32_sdwa {sp(m0)}, v{vX}, v{p2+1} src0_sel:WORD_1 src1_sel:WORD_0
        ''')
        q(f'buffer_load_dwordx3 {vp(quad,3)}, v{T0}, s[8:11], 0 offen {recflags}', tag=('rec', sig))
        q('s_mov_b64 exec, -1')
        if sig == 0: q(f's_andn2_b64 {sp(m0)}, {sp(m0)}, {sp(sSKIP)}')
    def COS(q, quad):
        for h in (1, 0):
            q(f'''
            v_cvt_f32_bf16_sdwa v{T0}, v{quad+1} dst_sel:DWORD dst_unused:UNUSED_PAD src0_sel:WORD_{h}
            v_pk_mul_f32 {vp(T0)}, {vp(T0)}, {sp(sKF)} op_sel_hi:[0,1]
            ''')
            if 'nofract' not in diag: q(f'v_fract_f32 v{T0}, v{T0}\nv_fract_f32 v{T1}, v{T1}')
            q(f'''
            v_cos_f32 v{T0}, v{T0}
            v_cos_f32 v{T1}, v{T1}
            v_cvt_pk_bf16_f32 v{quad+1+2*h}, v{T0}, v{T1}
            ''')
    def A1(q, sig, quad, masks, par, live=True, p2=vP2):
        q(f'v_mov_b32 v{p2+1}, {INC}')
        for h in range(2):
            q(f'v_lshlrev_b32_sdwa v{[T0,T1][h]}, 2, v{quad+2*h} {SD} src1_sel:BYTE_0')
        for h in range(2):
            q(f's_and_b64 exec, {sp(masks[h])}, {sp(sLIVE)}' if live else f's_mov_b64 exec, {sp(masks[h])}')
            q(f'ds_add_rtn_u32 v{p2+h}, v{[T0,T1][h]}, v{p2+1} offset:{CNT+800*par}', tag=('ret', sig))
        q('s_mov_b64 exec, -1')
        if live: COS(q, quad)
    def A2(q, sig, quad, masks, par, live=True, p2=vP2):
        for h in range(2):
            k = nid()
            q(f's_and_b64 exec, {sp(masks[h])}, {sp(sLIVE)}' if live else f's_mov_b64 exec, {sp(masks[h])}')
            q(f'''
            v_lshlrev_b32_sdwa v{T0}, 8, v{quad+2*h} {SD} src1_sel:BYTE_0
            v_cmp_le_u32 vcc, s{sLIM}, v{p2+h}
            v_and_or_b32 v{T0}, v{p2+h}, s{sF8}, v{T0}
            s_cbranch_vccnz B_sp{k}
            B_spb{k}:
            v_mov_b32_sdwa v{quad+2*h}, s{sEPA} dst_sel:BYTE_0 dst_unused:UNUSED_PRESERVE src0_sel:BYTE_0
            ''')
            q(f'ds_write_b64 v{T0}, {vp(quad+2*h)} offset:{[L0, L1][par]}')
            stubs(f'''
            B_sp{k}:
            v_mbcnt_lo_u32_b32 v{T1}, vcc_lo, 0
            v_mbcnt_hi_u32_b32 v{T1}, vcc_hi, v{T1}
            s_lshl_b32 s36, s{sSP}, 3
            s_add_u32 s36, s36, s{sSPB}
            v_lshl_add_u32 v{T1}, v{T1}, 3, s36
            s_bcnt1_i32_b64 s37, vcc
            s_add_u32 s{sSP}, s{sSP}, s37
            s_andn2_b64 s[36:37], exec, vcc
            s_mov_b64 exec, vcc
            ds_write_b64 v{T1}, {vp(quad+2*h)}
            s_mov_b64 exec, s[36:37]
            ''')
            if live:
                stubs(f'''
                s_cmp_le_u32 s{sSP}, {SPCAP-64}
                s_cbranch_scc1 B_spb{k}
                s_mov_b64 {sp(sLIVE)}, 0
                s_add_u32 s{sRES}, s{sU}, {32*sig + 16*(h+1)}
                ''')
            stubs(f's_branch B_spb{k}')
        q('s_mov_b64 exec, -1')
    def sweep_end(q, par):
        k = nid()
        q(f'''
        s_add_u32 s{sU}, s{sU}, {32*NS}
        s_mov_b64 {sp(sSKIP)}, 0
        s_cmp_eq_u32 s{sLIVE}, 0
        s_cbranch_scc1 B_st{k}
        B_stb{k}:
        s_add_u32 s{sSW}, s{sSW}, 1
        ''')
        if par is not None:
            q(f's_and_b32 s36, s{sSW}, 126\ns_cbranch_scc0 B_cl{k}\nB_clb{k}:')
            stubs(f'B_cl{k}:\nv_mov_b32 v{Q1}, s{sEPC}\nv_mov_b32 v{Q1+1}, 0\ns_waitcnt lgkmcnt(0)')
            for v in range(24): stubs(f'ds_write_b64 v{vLB}, {vp(Q1)} offset:{[L0, L1][par] + v*256}')
            stubs(f's_cmp_lg_u32 s{sW24}, 0\ns_cbranch_scc1 B_clb{k}')
            stubs(f'ds_write_b64 v{vLB}, {vp(Q1)} offset:{[L0, L1][par] + 24*256}\ns_branch B_clb{k}')
        q(f'''
        s_mov_b32 s{sEPC}, s{sEPA}
        s_add_u32 s{sEPA}, s{sEPA}, 1
        s_and_b32 s{sEPA}, s{sEPA}, 255
        s_or_b32 s{sEP24}, s{sEPC}, s{sW24}
        s_waitcnt lgkmcnt(0)
        s_barrier
        ''')
        stamp(q)
        stubs(f'''
        B_st{k}:
        s_and_b32 s{sU}, s{sRES}, 0xffffffe0
        s_bitcmp1_b32 s{sRES}, 4
        s_cselect_b64 {sp(sSKIP)}, -1, 0
        s_mov_b64 {sp(sLIVE)}, -1
        ''')
        k2(stubs); stubs(f's_branch B_stb{k}')
    def reappend(q, par):
        k = nid()
        q(f'''
        s_cmp_lt_u32 s{sU}, s{sUE}
        s_cselect_b32 s{sDID}, 1, 0
        s_cmp_lg_u32 s{sSP}, 0
        s_cbranch_scc1 B_ra{k}
        B_rab{k}:
        ''')
        r = Seq()
        r(f'''
        B_ra{k}:
        s_mov_b32 s{sDID}, 1
        v_mbcnt_lo_u32_b32 v{T0}, -1, 0
        v_mbcnt_hi_u32_b32 v{T0}, -1, v{T0}
        v_lshl_add_u32 v{T1}, v{T0}, 3, s{sSPB}
        ds_read_b64 {vp(Q1)}, v{T1}
        ds_read_b64 {vp(Q1+2)}, v{T1} offset:512
        v_cmp_gt_u32 s[40:41], s{sSP}, v{T0}
        v_add_u32 v{T0}, 64, v{T0}
        v_cmp_gt_u32 s[42:43], s{sSP}, v{T0}
        s_mov_b32 s{sSP}, 0
        s_waitcnt lgkmcnt(0)
        ''')
        A1(r, 99, Q1, (40, 42), par, live=False)
        r('s_waitcnt lgkmcnt(0)')
        A2(r, 99, Q1, (40, 42), par, live=False)
        r(f'''
        s_waitcnt lgkmcnt(0)
        s_cmp_le_u32 s{sSP}, {SPCAP-64}
        s_cbranch_scc1 B_rab{k}
        s_mov_b64 {sp(sLIVE)}, 0
        s_and_b32 s36, s{sSKIP}, 16
        s_add_u32 s{sRES}, s{sU}, s36
        s_branch B_rab{k}
        ''')
        tmp = Asm(); r.resolve(tmp, False); late.append(tmp.l)

    a.label(NAME)
    a(f'''
    s_cmp_ge_u32 s2, {NCU}
    s_cbranch_scc1 B_end
    s_load_dwordx2 s[56:57], s[0:1], {K_WS}
    s_load_dwordx2 s[54:55], s[0:1], {K_M}
    s_load_dwordx2 s[58:59], s[0:1], {K_DIST}
    s_load_dwordx4 s[60:63], s[0:1], {K_CEN}
    s_load_dwordx8 s[64:71], s[0:1], {K_WRBF}
    s_and_b32 s{sD}, s2, 7
    s_lshl_b32 s{sD}, s{sD}, 5
    s_lshr_b32 s36, s2, 3
    s_add_u32 s{sD}, s{sD}, s36
    v_lshrrev_b32 v34, 6, v0
    v_mul_u32_u24 v35, 24, v0
    v_lshlrev_b32 v36, 2, v0                     ; x*4
    v_readfirstlane_b32 s3, v34
    s_mul_i32 s36, s{sD}, {256*48}
    v_and_b32 v37, 63, v0                        ; lane
    v_and_b32 v38, 15, v0                        ; n
    v_lshrrev_b32 v39, 5, v37                    ; h
    v_lshrrev_b32 v33, 4, v37                    ; q
    v_lshlrev_b32 v41, 1, v38
    v_lshl_add_u32 v40, v39, 8, v41              ; (8h)*32 + n*2
    s_mul_i32 s{sST}, s3, 25
    s_sub_i32 s37, s3, 4
    s_max_i32 s37, s37, 0
    s_sub_u32 s{sST}, s{sST}, s37
    s_mul_i32 s37, s{sD}, {EPC*2}
    s_and_b32 s38, s37, 2
    s_sub_u32 s37, s37, s38
    s_waitcnt lgkmcnt(0)
    ''')
    srd(a, 12, 's56', 's57', TAB_OFF, TAB_BYTES)
    a(f'''
    s_load_dword s99, s[62:63], 0
    buffer_load_dwordx4 v[46:49], v35, s[12:15], s36 offen
    buffer_load_dwordx2 v[50:51], v35, s[12:15], s36 offen offset:16
    ''')
    srd(a, 76, 's68', 's69', None, 512)
    for k in range(8): a(f'buffer_load_ushort v{16+k}, v40, s[76:79], 0 offen offset:{32*k}')
    srd(a, 80, 's58', 's59', 's37', EPC*2 + 2)
    a(f'''
    s_lshl_b32 s36, s{sST}, 5
    v_lshlrev_b32 v32, 4, v37                    ; lane*16
    buffer_load_dwordx4 v[56:59], v32, s[80:83], s36 offen
    v_lshl_add_u32 v42, v33, 7, v41              ; (4q)*32 + n*2
    v_lshl_add_u32 v43, v33, 6, v41              ; (2q)*32 + n*2
    v_lshlrev_b32 v44, 2, v33                    ; (2q)*2
    ''')
    R = 60
    srd(a, 84, 's70', 's71', None, 512)
    for k in range(4): a(f'buffer_load_ushort v{R+k}, v42, s[84:87], 0 offen offset:{32*k}')
    srd(a, 88, 's66', 's67', None, 512)
    for k in range(4): a(f'buffer_load_ushort v{R+4+k}, v42, s[88:91], 0 offen offset:{32*k}')
    srd(a, 72, 's64', 's65', None, 256)
    for k in range(2): a(f'buffer_load_ushort v{R+8+k}, v43, s[72:75], 0 offen offset:{32*k}')
    srd(a, 44, 's60', 's61', None, 16)
    for k in range(2): a(f'buffer_load_ushort v{R+10+k}, v44, s[44:47], 0 offen offset:{2*k}')
    srd(a, 4, 's54', 's55', None, 0 if 'nogather' in diag else E*32)
    srd(a, 8, 's56', 's57', None, REC_BYTES + 16)
    if 'stamp' in diag:
        srd(a, 92, 's56', 's57', 200000000, 1 << 20)
        a('s_lshl_b32 s98, s2, 3\ns_add_u32 s98, s98, s3\ns_lshl_b32 s98, s98, 7\nv_mov_b32 v42, v0')
        stamp(a, True); stamp(a); a('v_mov_b32 v0, v42')
    a(f'''
    v_lshlrev_b32 v41, 4, v0
    v_mov_b32 v42, 0
    v_mov_b32 v43, 0
    v_mov_b32 v44, 0
    v_mov_b32 v45, 0
    v_add_u32 v52, {L0}, v41
    v_add_u32 v53, {L0 + 8*8192}, v41
    s_mul_i32 s39, s3, {TSZ}
    s_add_u32 s39, s39, {TBL}
    v_add_u32 v54, s39, v32
    ''')
    nz = (TBL - L0) // 8192; rest = (TBL - L0) % 8192
    for k in range(nz): a(f'ds_write_b128 v{[52,53][k // 8]}, v[42:45] offset:{(k % 8)*8192}')
    for k in range(TSZ // 1024): a(f'ds_write_b128 v54, v[42:45] offset:{k*1024}')
    assert TSZ % 1024 == 0
    a(f'''
    v_cmp_gt_u32 vcc, {rest // 16}, v0
    s_mov_b64 exec, vcc
    ds_write_b128 v{[52,53][nz // 8]}, v[42:45] offset:{(nz % 8)*8192}
    s_mov_b64 exec, -1
    v_and_b32 v52, 31, v0
    v_lshlrev_b32 v52, 3, v52
    v_cmp_gt_u32 vcc, 200, v0
    s_mov_b64 exec, vcc
    ds_write_b32 v36, v52 offset:{CNT}
    ds_write_b32 v36, v52 offset:{CNT+800}
    ds_write_b32 v42, v42 offset:{FLAG}
    s_mov_b64 exec, -1
    s_mov_b32 s{sEPC}, 0
    s_mov_b32 s{sEPA}, 1
    s_mov_b32 s{sNM32}, 0xffffffe0
    s_mov_b32 s{sLIM}, {32 << 16}
    s_mov_b32 s{sF8}, 0xf8
    s_mov_b32 s{sFFFF}, 0xffff
    s_mov_b32 s{sSP}, 0
    s_mov_b32 s{sRES}, 0
    s_mov_b64 {sp(sLIVE)}, -1
    s_mov_b64 {sp(sSKIP)}, 0
    s_mov_b32 s{sSW}, 0
    s_mul_i32 s{sSPB}, s3, {SPCAP*8}
    s_add_u32 s{sSPB}, s{sSPB}, {SPILL}
    s_cmp_lt_u32 s3, 4
    s_cselect_b32 s37, 25, 24
    s_cselect_b32 s{sW24}, 0, 0x100
    s_bfm_b32 s{sNG}, s37, 0
    s_mov_b32 s{sNG+1}, 0
    s_lshl_b32 s36, s{sST}, 8
    v_and_b32 v52, 31, v37
    v_lshl_add_u32 v{vLB}, v52, 3, s36
    v_lshlrev_b32 v{vHALF}, 4, v39
    s_lshl_b32 s36, s3, 11
    s_add_u32 s36, s36, {PST}
    s_sub_u32 s37, s36, {PIMM}
    v_lshl_add_u32 v53, v39, 10, s37
    v_bfe_u32 v54, v52, 2, 2
    v_lshl_add_u32 v53, v54, 8, v53              ; + q*256
    v_lshrrev_b32 v54, 4, v52
    v_lshl_add_u32 v53, v54, 3, v53              ; + j*8
    v_and_b32 v54, 3, v52
    v_lshl_add_u32 v{vKC}, v54, 1, v53           ; + r*2
    v_lshl_add_u32 v54, v33, 8, s36
    v_lshl_add_u32 v{vPR}, v38, 4, v54           ; P base + q*256 + e*16
    v_lshlrev_b32 v{vX}, 3, v33
    v_lshl_or_b32 v{vX}, v38, 17, v{vX}          ; q*8 | (2e << 16)
    s_add_u32 s{sROW}, s39, {NXMAX*32}
    s_add_u32 s{sFAR}, s{sROW}, {8*NPH*32}
    v_and_b32 v53, 1, v33
    v_cmp_eq_u32 s[40:41], 0, v53
    v_lshrrev_b32 v52, 1, v0                     ; tile j
    s_mov_b32 s36, {TSTRIDE}
    v_mul_u32_u24 v52, s36, v52
    v_and_b32 v53, 1, v0                         ; hh
    v_mul_u32_u24 v54, {6*256}, v53
    v_lshrrev_b32 v55, 1, v37
    v_lshl_add_u32 v54, v55, 3, v54
    v_add_u32 v54, s{sROW}, v54
    v_mov_b32 v55, 0
    s_mov_b32 s{sNX}, 0
    s_waitcnt vmcnt(21)
    ''')
    for k in range(6):
        e = 46 + k
        a(f'''
        v_lshrrev_b32 v35, 16, v{e}
        v_mad_u32_u16 v34, v{e}, 6, v52
        v_max_u32 v36, 1, v35
        v_subrev_u32 v36, 1, v36
        v_cmp_lt_u32 vcc, 32, v35
        v_max_u32 v55, v55, v35
        v_lshl_or_b32 v35, v36, 16, v35
        ''')
        if 6 + k >= NPH: a('s_mov_b32 exec_lo, 0x55555555\ns_mov_b32 exec_hi, 0x55555555')
        a(f'ds_write_b64 v54, v[34:35] offset:{k*256}')
        if 6 + k >= NPH: a('s_mov_b64 exec, -1')
        a(f's_cbranch_vccnz B_x{k}\nB_xb{k}:')
        stubs(f'''
        B_x{k}:
        v_mbcnt_lo_u32_b32 v36, vcc_lo, 0
        v_mbcnt_hi_u32_b32 v36, vcc_hi, v36
        s_bcnt1_i32_b64 s37, vcc
        v_add_u32 v36, s{sNX}, v36
        s_add_u32 s{sNX}, s{sNX}, s37
        s_cmp_gt_u32 s{sNX}, {4*NXMAX}
        s_cbranch_scc1 B_xb{k}
        v_add_u32 v34, 192, v34
        v_subrev_u32 v35, {32 + (32 << 16)}, v35
        s_sub_u32 s37, s{sROW}, 8
        v_lshlrev_b32 v36, 3, v36
        v_sub_u32 v36, s37, v36
        s_mov_b64 exec, vcc
        ds_write_b64 v36, v[34:35]
        s_mov_b64 exec, -1
        s_branch B_xb{k}
        ''')
    for sh in ('row_shr:1 row_mask:0xf', 'row_shr:2 row_mask:0xf', 'row_shr:4 row_mask:0xf', 'row_shr:8 row_mask:0xf', 'row_bcast:15 row_mask:0xa', 'row_bcast:31 row_mask:0xc'):
        a(f'v_max_u32_dpp v55, v55, v55 {sh} bank_mask:0xf')
    a(f'''
    v_readlane_b32 s36, v55, 63
    s_add_u32 s37, s{sNX}, 3
    s_lshr_b32 s37, s37, 2
    s_lshl_b32 s37, s37, 5
    s_sub_u32 s{sU}, s{sROW}, s37
    s_mov_b32 s{sUE}, s{sFAR}
    s_cmp_gt_u32 s{sNX}, {4*NXMAX}
    s_cselect_b32 s37, 65, 0
    s_max_u32 s37, s37, s36
    s_cmp_gt_u32 s37, 64
    s_cbranch_scc0 B_nofb
    s_mov_b32 s{sU}, s{sROW}
    s_add_u32 s36, s36, 31
    s_lshr_b32 s36, s36, 5
    s_mul_i32 s36, s36, {8*NPH*32}
    s_add_u32 s{sUE}, s{sROW}, s36
    B_nofb:
    s_waitcnt vmcnt(0)
    ''')
    for k in range(4):
        a(f'''
        v_lshl_or_b32 v{16+2*k}, v{17+2*k}, 16, v{16+2*k}
        v_cndmask_b32 v{W+4+k}, v{16+2*k}, 0, s[40:41]
        v_cndmask_b32 v{W+k}, 0, v{16+2*k}, s[40:41]
        ''')
    SQ = 0x40731700
    import struct, math
    SQ = struct.unpack('<I', struct.pack('<f', math.sqrt(10*math.log2(math.e))))[0]
    a(f'''
    s_lshl_b32 s36, s3, 10
    s_add_u32 s36, s36, {DST}
    v_add_u32 v33, s36, v32
    ds_write_b128 v33, v[56:59]
    v_lshl_or_b32 v56, v{R+1}, 16, v{R}          ; w_up
    v_lshl_or_b32 v57, v{R+3}, 16, v{R+2}
    v_lshl_or_b32 v58, v{R+6}, 16, v{R+4}
    v_lshl_or_b32 v59, v{R+7}, 16, v{R+5}
    v_lshl_or_b32 v60, v{R+9}, 16, v{R+8}        ; w_rbf
    v_mov_b32 v61, 0
    v_lshlrev_b32 v62, 16, v{R+10}
    v_lshlrev_b32 v63, 16, v{R+11}
    v_mul_f32 v62, {(SQ | 0x80000000):#x}, v62   ; -center*s
    v_mul_f32 v63, {(SQ | 0x80000000):#x}, v63
    v_add_u32 v33, {WST}, v32
    ds_write_b128 v33, v[56:59]
    ds_write_b128 v33, v[60:63] offset:1024
    s_waitcnt lgkmcnt(0)
    s_lshl_b32 s36, s99, 16
    s_and_b32 s37, s99, 0xffff0000
    v_mov_b32 v56, s36
    v_mov_b32 v57, s37
    v_mul_f32 v56, 0.15915494, v56
    v_mul_f32 v57, 0.15915494, v57
    v_readfirstlane_b32 s{sKF}, v56
    v_readfirstlane_b32 s{sKF+1}, v57
    s_barrier
    ''')
    stamp(a)
    q = Seq()
    q(f'B_xl:\ns_cmp_ge_u32 s{sU}, s{sROW}\ns_cbranch_scc1 B_xe')
    L1s(q, 0); L2s(q, 0, Q0, 40, 42)
    q('s_waitcnt vmcnt(0)'); A1(q, 0, Q0, (40, 42), 0)
    q('s_waitcnt lgkmcnt(0)'); A2(q, 0, Q0, (40, 42), 0)
    q(f's_cmp_eq_u32 s{sLIVE}, 0\ns_cbranch_scc1 B_pz\ns_add_u32 s{sU}, s{sU}, 32\ns_branch B_xl\nB_xe:')
    pq = lambda s: 16 + 4*s
    pm = lambda s: (58 + 4*s, 60 + 4*s) if s < 3 else (60 + 4*s, 62 + 4*s)
    pp = lambda s: 56 + 2*s
    for s in range(NS): L1s(q, s, pp(s))
    for s in range(NS): L2s(q, s, pq(s), *pm(s), pp(s))
    for k in range(72, 256): q(f'v_mov_b32 v{k}, 0')
    for s in range(NS):
        q.wait('v', [('rec', s)])
        A1(q, s, pq(s), pm(s), 0, p2=pp(s))
        if s >= 1:
            q.wait('l', [('ret', s-1)]); A2(q, s-1, pq(s-1), pm(s-1), 0, p2=pp(s-1))
    q.wait('l', [('ret', NS-1)]); A2(q, NS-1, pq(NS-1), pm(NS-1), 0, p2=pp(NS-1))
    q('s_branch B_pe\nB_pz:')
    for k in range(72, 256): q(f'v_mov_b32 v{k}, 0')
    q('B_pe:')
    for v in range(5): q(f'v_mov_b32 v{PK(v)}, v{vKC}\ns_mov_b64 {sp(MK(v))}, 0')
    for k in list(range(G, G+12)) + list(range(U, U+16)) + list(range(56, 72)): q(f'v_mov_b32 v{k}, 0')
    sweep_end(q, None)
    q.resolve(a, False)

    MF = 'v_mfma_f32_16x16x32_bf16'
    GS = lambda v: Q0 if v == 24 else G + 4*(v % 3)
    q = Seq()
    q('B_loop:')
    for par in range(2):
        LB = [L0, L1][par]
        reappend(q, 1-par)
        q(f'ds_read_b64 {vp(LP)}, v{vLB} offset:{LB}', tag=('lst', par, 0))
        q(f'v_mov_b32 v{T0}, 0')
        q(f'ds_read_b32 v{vF}, v{T0} offset:{FLAG}', tag=('flag', par))
        for v in range(NV):
            av = (v - 3) % NV; ap = par if v >= 3 else 1-par
            bv = (v - 4) % NV
            if v: q.wait('l', [('pr', par, v - 1)])
            q(f'{MF} {vp(ACC(bv),4)}, {vp(XB,4)}, {vp(U,4)}, {vp(ACC(bv),4)}', drop='nomfma' in diag)
            q(f'{MF} {vp(ACC(bv)+4,4)}, {vp(XB,4)}, {vp(U+4,4)}, {vp(ACC(bv)+4,4)}', drop='nomfma' in diag)
            if v == 3:
                q(f'''
                v_readfirstlane_b32 s36, v{vF}
                s_add_u32 s36, s36, 1
                s_cmp_lt_u32 s36, s{sSW}
                s_cbranch_scc1 B_epi
                s_cmp_gt_u32 s{sSW}, {MAXSW}
                s_cbranch_scc1 B_epi
                ''')
            if v == 0: q.wait('l', [('lst', par, 0)])
            q(f'''
            v_bfe_u32 v{T0}, v{LP}, 8, 4
            v_and_b32 v{T1}, s{sFFFF}, v{PK(av)}
            v_lshl_add_u32 v{PK(v)}, v{T0}, 4, v{vKC}
            v_and_b32 v{T0}, s{sFFFF}, v{PK(bv)}
            v_cmpx_eq_u32_sdwa {sp(MK(v))}, s{sEP24 if v == 24 else sEPC}, v{LP} src0_sel:DWORD src1_sel:BYTE_0
            v_lshrrev_b32 v{LP}, 7, v{LP}
            v_lshrrev_b32_sdwa v{PK(v)}, v{vHALF}, v{LP+1} dst_sel:WORD_1 dst_unused:UNUSED_PRESERVE src0_sel:DWORD src1_sel:DWORD
            v_and_or_b32 v{LP}, v{LP}, s{sNM32}, v{vHALF}
            ''')
            q.wait('v', [('gat', ap, av)])
            q(f'{MF} {vp(U,4)}, {vp(GS(av),4)}, {vp(W,4)}, 0', drop='nomfma' in diag)
            q(f'{MF} {vp(U+4,4)}, {vp(GS(av),4)}, {vp(W+4,4)}, 0', drop='nomfma' in diag)
            q(f'buffer_load_dwordx4 {vp(GS(v),4)}, v{LP}, s[4:7], 0 offen', tag=('gat', par, v), drop='nodma' in diag)
            q(f's_mov_b64 exec, {sp(MK(bv))}')
            q(f'ds_write_b16_d16_hi v{T0}, v{vHALF} offset:{PIMM}', drop='nopw' in diag)
            q(f's_mov_b64 exec, {sp(MK(av))}')
            q(f'ds_write_b16_d16_hi v{T1}, v{PK(av)} offset:{PIMM}', drop='nopw' in diag)
            q('s_mov_b64 exec, -1')
            if v + 1 < NV: q(f'ds_read_b64 {vp(LP)}, v{vLB} offset:{LB + (v+1)*256}', tag=('lst', par, v+1))
            for k in range(4): q(f'v_cvt_pk_bf16_f32 v{XB+k}, v{U+2*k}, v{U+2*k+1}')
            q(f'ds_read_b128 {vp(U,4)}, v{vPR}', drop='nopr' in diag)
            q(f'ds_read_b128 {vp(U+4,4)}, v{vPR} offset:1024', tag=('pr', par, v), drop='nopr' in diag)
            qd = lambda s: Q0 + 4*(s % 2); mk = lambda s: (40 + 4*(s % 2), 42 + 4*(s % 2))
            for s in range(NS):
                if v == APOS[s] + DA + 1: q.wait('l', [('ret', s)]); A2(q, s, qd(s), mk(s), 1-par)
            for s in range(NS):
                if v == APOS[s]: L2s(q, s, qd(s), *mk(s))
            for s in range(NS):
                if v == APOS[s] - 1: L1s(q, s)
                if v == APOS[s] + DA: q.wait('v', [('rec', s)]); A1(q, s, qd(s), mk(s), 1-par)
            if v == 23:
                for k in range(4): q(f'v_mov_b32 v{Q0+k}, 0')
            if v == 0:
                q(f'''
                v_mbcnt_lo_u32_b32 v{T0}, -1, 0
                v_mbcnt_hi_u32_b32 v{T0}, -1, v{T0}
                v_add_u32 v{T0}, s{sST}, v{T0}
                v_and_b32 v{T1}, 31, v{T0}
                v_lshlrev_b32 v{T0}, 2, v{T0}
                v_lshlrev_b32 v{T1}, 3, v{T1}
                s_mov_b64 exec, {sp(sNG)}
                ds_write_b32 v{T0}, v{T1} offset:{CNT + 800*par}
                s_cmp_eq_u32 s{sDID}, 0
                s_cbranch_scc1 B_nf{par}
                s_mov_b64 exec, 1
                v_mov_b32 v{T0}, s{sSW}
                v_mov_b32 v{T1}, 0
                ''')
                q(f'ds_max_u32 v{T1}, v{T0} offset:{FLAG}', maybe=True)
                q(f'B_nf{par}:\ns_mov_b64 exec, -1')
        sweep_end(q, par)
    q('s_branch B_loop')
    fixL2(q)
    q.resolve(a, True)

    a.label('B_epi')
    stamp(a)
    a(f'''
    s_load_dwordx2 s[62:63], s[0:1], {K_OUT}
    s_mul_i32 s36, s{sD}, {EPC*32}
    v_mbcnt_lo_u32_b32 v0, -1, 0
    v_mbcnt_hi_u32_b32 v0, -1, v0                ; lane
    s_lshl_b32 s38, s{sST}, 9
    s_lshl_b32 s39, s{sST}, 8
    s_add_u32 s40, s39, {L1}                     ; piece 1
    s_add_u32 s39, s39, {L0}                     ; piece 0
    s_mul_i32 s41, s3, {TSZ}
    s_add_u32 s41, s41, {TBL}                    ; piece 2
    v_lshlrev_b32 v1, 4, v0
    v_and_b32 v2, 15, v0                         ; e
    v_lshrrev_b32 v3, 4, v0                      ; q
    s_waitcnt vmcnt(0) lgkmcnt(0)
    ''')
    srd(a, 4, 's54', 's55', 's36', EPC*32)
    piece = lambda pr: (39 + min(pr // 6, 2), (pr % 6)*1024)
    q = Seq()
    for pr in range(13):
        sg, off = piece(pr)
        q(f's_add_u32 m0, s{sg}, {off}\ns_add_u32 s42, s38, {pr*1024}')
        q('buffer_load_dwordx4 v1, s[4:7], s42 offen lds', tag=('m', pr))
    t = Asm(); srd(t, 8, 's62', 's63', 's36', EPC*32); q('\n'.join(t.l))
    WU, W0, W1, WR, CS, KS, RB, TT, DD, MM, A0, A1_, VV = 8, 10, 12, 14, 16, 18, 20, 22, 24, 28, 32, 36, 40
    q(f'''
    v_add_u32 v5, {WST}, v1
    ds_read_b128 v[44:47], v5
    ds_read_b128 v[48:51], v5 offset:1024
    s_mul_i32 s37, s{sD}, {EPC*2}
    s_and_b32 s37, s37, 2
    s_lshl_b32 s42, s3, 10
    s_add_u32 s37, s37, s42
    s_add_u32 s37, s37, {DST}
    v_lshl_add_u32 v5, v2, 1, s37
    v_lshlrev_b32 v4, 5, v2
    v_lshl_add_u32 v4, v3, 3, v4                 ; e*32 + q*8
    v_add_u32 v2, s39, v4
    v_add_u32 v3, s40, v4
    v_add_u32 v4, s41, v4
    s_mov_b32 s43, 0xffff0000
    v_mov_b32 v{KS}, {SQ:#x}
    v_mov_b32 v{RB+1}, 0
    v_mov_b32 v{W0+1}, 0
    v_mov_b32 v{W1+1}, 0
    v_mov_b32 v{WR+1}, 0
    ''')
    q(f'ds_read_u16 v{DD}, v5', tag=('d', 0))
    q(f'ds_read_u16 v{DD+2}, v5 offset:32', tag=('d', 1))
    q(f'''
    s_waitcnt lgkmcnt(2)
    v_mov_b32 v{WU}, v44
    v_mov_b32 v{WU+1}, v45
    v_mov_b32 v{W0}, v46
    v_mov_b32 v{W1}, v47
    v_mov_b32 v{WR}, v48
    v_mov_b32 v{CS}, v50
    v_mov_b32 v{CS+1}, v51
    ''')
    MF = 'v_mfma_f32_16x16x16_bf16'
    def E1(v):
        d = DD + 2*(v % 2); V = VV + 4*(v % 2)
        q.wait('l', [('d', v)])
        q(f'''
        v_lshlrev_b32 v{d}, 16, v{d}
        v_pk_fma_f32 {vp(TT)}, {vp(d)}, {vp(KS)}, {vp(CS)} op_sel_hi:[0,0,1]
        ''')
        if v + 2 < NV: q(f'ds_read_u16 v{d}, v5 offset:{32*(v+2)}', tag=('d', v+2))
        q(f'''
        v_pk_mul_f32 {vp(TT)}, {vp(TT)}, {vp(TT)} neg_lo:[0,1] neg_hi:[0,1]
        v_exp_f32 v{TT}, v{TT}
        v_exp_f32 v{TT+1}, v{TT+1}
        ''')
        base = 2 + min(v // 12, 2); off = (v % 12)*512
        if v % 2 == 0: q.wait('v', [('m', v // 2)])
        q(f'ds_read_b64 {vp(MM + 2*(v % 2))}, v{base} offset:{off}', tag=('mm', v))
        q(f'''
        v_cvt_pk_bf16_f32 v{RB}, v{TT}, v{TT+1}
        {MF} {vp(A0,4)}, {vp(W0)}, {vp(RB)}, 0
        {MF} {vp(A1_,4)}, {vp(W1)}, {vp(RB)}, 0
        {MF} {vp(V,4)}, {vp(WR)}, {vp(RB)}, 0
        ''')
    def E2(v):
        A = ACC(v)
        q(f'''
        v_pk_mul_f32 {vp(A)}, {vp(A)}, {vp(A0)}
        v_pk_mul_f32 {vp(A+2)}, {vp(A+2)}, {vp(A0+2)}
        v_pk_fma_f32 {vp(A)}, {vp(A+4)}, {vp(A1_)}, {vp(A)}
        v_pk_fma_f32 {vp(A+2)}, {vp(A+6)}, {vp(A1_+2)}, {vp(A+2)}
        v_cvt_pk_bf16_f32 v{A}, v{A}, v{A+1}
        v_cvt_pk_bf16_f32 v{A+1}, v{A+2}, v{A+3}
        {MF} {vp(A+4,4)}, {vp(WU)}, {vp(A)}, 0
        ''')
    def E3(v):
        A = ACC(v); V = VV + 4*(v % 2); m = MM + 2*(v % 2)
        base = 2 + min(v // 12, 2); off = (v % 12)*512
        q.wait('l', [('mm', v)])
        q(f'''
        v_lshlrev_b32 v48, 16, v{m}
        v_and_b32 v49, s43, v{m}
        v_lshlrev_b32 v50, 16, v{m+1}
        v_and_b32 v51, s43, v{m+1}
        v_pk_fma_f32 v[48:49], {vp(A+4)}, {vp(V)}, v[48:49]
        v_pk_fma_f32 v[50:51], {vp(A+6)}, {vp(V+2)}, v[50:51]
        v_cvt_pk_bf16_f32 v52, v48, v49
        v_cvt_pk_bf16_f32 v53, v50, v51
        ds_write_b64 v{base}, v[52:53] offset:{off}
        ''')
        if v % 2 == 1 or v == 24:
            pr = v // 2; sg, off2 = piece(pr)
            q(f's_add_u32 s42, s{sg}, {off2}\nv_add_u32 v6, s42, v1')
            q(f'ds_read_b128 {vp(A,4)}, v6', tag=('o', pr))
    def ST(pr):
        A = ACC(min(2*pr + 1, 24))
        q(f's_add_u32 s42, s38, {pr*1024}')
        q.wait('l', [('o', pr)])
        q(f'buffer_store_dwordx4 {vp(A,4)}, v1, s[8:11], s42 offen')
    E1(0)
    for v in range(NV - 1):
        E2(v); E1(v + 1)
        if v % 2 == 0 and v >= 2: ST(v // 2 - 1)
        E3(v)
    ST(11)
    q('s_cmp_ge_u32 s3, 4\ns_cbranch_scc1 B_last')
    E2(24); E3(24)
    q('s_mov_b32 exec_hi, 0')
    ST(12)
    q.resolve(a, False)
    a.label('B_last')
    if 'stamp' in diag:
        a('s_mov_b64 exec, -1\ns_waitcnt vmcnt(0)')
        stamp(a); stamp(a, True)
    a.label('B_end')
    a('s_endpgm')
    out = a.l + stubs.l
    for l in late: out += l
    return out
def fixL2(q):
    pass
```

```python
import sys
sys.path.insert(0, 'gen')
import build, passa, passb
passb.MAXSW = 0x7fffffff
hdr = ''.join(open('gather_scatter__molecular_angular_gemnet__graph.s.ref').readlines()[:15])
out = sys.argv[1] if len(sys.argv) > 1 else 'gather_scatter__molecular_angular_gemnet__graph.s'
ka = eval('dict(%s)' % (sys.argv[2] if len(sys.argv) > 2 else ''))
kb = eval('dict(%s)' % (sys.argv[3] if len(sys.argv) > 3 else ''))
parts = [(passa.NAME, 512, passa.LDS, passa.gen(**ka), 256, 80), (passb.NAME, 512, passb.LDS, passb.gen(**kb), 256, 102)]
open(out, 'w').write(hdr + build.source(parts))
```

```python
import sys, importlib
sys.path.insert(0, 'gen')
import common, lint, passa
def source(parts):
    src = ''
    for name, nthreads, lds, lines, vg, sg in parts:
        src += f'; @launch kernel={name} grid=(256,1,1) block=({nthreads},1,1) lds={lds}\n'
    src += '.amdgcn_target "amdgcn-amd-amdhsa--gfx950"\n.text\n'
    for name, nthreads, lds, lines, vg, sg in parts:
        lines, n = lint.fix(lines)
        print(name, 'instrs', len(lines), 'nop states inserted', n, file=sys.stderr)
        src += common.head(name) + '\n'.join(lines) + '\n' + common.KD.format(name=name, vgpr=vg, sgpr=sg, acc=vg)
    return src
if __name__ == '__main__':
    import passb
    sys.path.insert(0, 'scratch')
    import rt
    name = sys.argv[1]
    ka = eval('dict(%s)' % (sys.argv[2] if len(sys.argv) > 2 else ''))
    kb = eval('dict(%s)' % (sys.argv[3] if len(sys.argv) > 3 else ''))
    parts = []
    if 'mod' in ka:
        m = importlib.import_module(ka.pop('mod'))
        if name.startswith('A'): passa = m
        else: passb = m
    if name.startswith('A'): parts.append((passa.NAME, 512, passa.LDS, passa.gen(**ka), 256, 80))
    if name.startswith('F'): parts.append((common.FNAME, 512, 163840, passa.gen(fused=True, **ka) + passb.gen(fused=True, **kb), 256, 102))
    if name.startswith('B'): parts.append((passb.NAME, 512, passb.LDS, passb.gen(**ka), 256, 102))
    open(f'scratch/{name}.asm.txt', 'w').write(source(parts))
    rt.build(f'scratch/{name}.asm.txt', f'scratch/{name}.co', parts[0][0])
```

```python
from common import *
NAME = 'agg_kernel'
CNT = 0; FLAG = 1600; L0 = 1664; L1 = L0 + 196*256
PST = L1 + 196*256; PIMM = 65280
NXMAX = 7
TSZ = (NXMAX + 8*NPH + 1)*32
TBL = PST + 8*2048
SPILL = TBL + 8*TSZ; SPCAP = 128
DST = SPILL + 8*SPCAP*8
WST = DST + 8192
LDS = 163840
assert WST + 2048 + 256 <= LDS and TSZ <= 4096
NV = 25
MAXSW = 20000
T0, T1, vLB, vHALF, vKC, vPR, vX = range(7)
W = 8; G = 16; LP = 28; U = 30; XB = 38; Q0 = 42; Q1 = 46; vP2 = 50
PK = lambda v: [7, 52, 53, 54, 55][v % 5]
vF = Q1
ACC = lambda v: 56 + 8*v
sEPC, sEP24, sNM32, sLIM, sF8, sEPA, sFFFF = 16, 17, 18, 19, 20, 21, 22
sROW, sNX, sU, sUE, sSP, sRES, sDID = 23, 24, 25, 26, 27, 28, 29
sLIVE, sSKIP, sSW, sD, sSPB, sFAR, sST = 30, 32, 34, 35, 48, 49, 51
sKF = 70
sNG = 52
sW24 = 50
MK = lambda v: 60 + 2*(v % 5)
INC = 8 + (1 << 16)
def sp(r): return f's[{r}:{r+1}]'
def vp(r, n=2): return f'v[{r}:{r+n-1}]'
SD = 'dst_sel:DWORD dst_unused:UNUSED_PAD src0_sel:DWORD'

class Seq:
    def __init__(s): s.o = []
    def __call__(s, t, tag=None, maybe=False, drop=False):
        ls = [x.strip() for x in t.strip('\n').split('\n') if x.strip()]
        for x in ls:
            c = 'v' if x.startswith('buffer_') else ('l' if x.startswith('ds_') else None)
            s.o.append(dict(t='' if drop else x, c=c, tag=tag if c else None, maybe=maybe or drop))
    def wait(s, c, tags): s.o.append(dict(t=None, c=None, w=c, tags=tags))
    def resolve(s, a, cyclic):
        n = len(s.o)
        for k, x in enumerate(s.o):
            if x['t'] is not None: a(x['t']); continue
            cnt = 0; found = None; j = k - 1; steps = 0
            while steps < n:
                if j < 0:
                    if not cyclic: break
                    j += n
                y = s.o[j]
                if y['c'] == x['w']:
                    if y['tag'] in x['tags']: found = cnt; break
                    if not y['maybe']: cnt += 1
                j -= 1; steps += 1
            assert found is not None, x
            a(f's_waitcnt vmcnt({min(found,63)})' if x['w'] == 'v' else f's_waitcnt lgkmcnt({min(found,15)})')

def gen(APOS=(2,4,7,9,12,14,17,19), DA=3, recflags='', prio=(0,12), wpf=False, EDM=2, diag=()):
    NS = 8
    a = Asm(); stubs = Asm(); late = []
    uid = [0]
    def nid(): uid[0] += 1; return uid[0]
    def stamp(q, real=False, T0=T0, T1=T1):
        if 'stamp' not in diag: return
        q(f'''
        {'s_memrealtime' if real else 's_memtime'} s[96:97]
        s_waitcnt lgkmcnt(0)
        v_mov_b32 v{T0}, s96
        v_mov_b32 v{T1}, 0
        s_mov_b64 exec, 1
        ''')
        t = f'buffer_store_dword v{T0}, v{T1}, s[92:95], s98 offen'
        q(t, maybe=True) if isinstance(q, Seq) else q(t)
        q('s_mov_b64 exec, -1\ns_add_u32 s98, s98, 4')
    def k2(q, extra='0'):
        q(f'''
        v_mbcnt_lo_u32_b32 v{T0}, -1, 0
        v_mbcnt_hi_u32_b32 v{T0}, -1, v{T0}
        v_and_b32 v{T0}, 15, v{T0}
        v_lshl_add_u32 v{T0}, v{T0}, 1, {extra}
        v_mov_b32_sdwa v{vX}, v{T0} dst_sel:WORD_1 dst_unused:UNUSED_PRESERVE src0_sel:WORD_0
        ''')
    def L1s(q, sig, p2=vP2):
        k = nid()
        q(f'''
        s_add_u32 s36, s{sU}, {32*sig}
        s_cmp_ge_u32 s36, s{sFAR}
        s_cbranch_scc1 B_far{k}
        B_farb{k}:
        v_add_u32_sdwa v{T0}, s36, v{vX} {SD} src1_sel:WORD_0
        ''')
        q(f'ds_read_b64 {vp(p2)}, v{T0}', tag=('ent', sig))
        stubs(f'''
        B_far{k}:
        s_cmp_ge_u32 s36, s{sUE}
        s_cselect_b32 s36, s{sFAR}, s36
        s_cbranch_scc1 B_farb{k}
        s_sub_u32 s37, s36, s{sROW}
        s_lshr_b32 s37, s37, 5
        s_mov_b32 s38, {-(-(1 << 32) // (8*NPH))}
        s_mul_hi_u32 s37, s37, s38
        s_mul_i32 s38, s37, {8*NPH*32}
        s_sub_u32 s36, s36, s38
        s_lshl_b32 s37, s37, 5
        ''')
        k2(stubs, 's37'); stubs(f's_branch B_farb{k}')
    def L2s(q, sig, quad, m0, m1, p2=vP2, wait=True):
        if wait: q.wait('l', [('ent', sig)])
        q(f'''
        v_cmp_lt_u32_sdwa {sp(m1)}, v{vX}, v{p2+1} src0_sel:WORD_1 src1_sel:WORD_1
        v_mad_u32_u16 v{T0}, v{vX}, 6, v{p2} op_sel:[1,0,0,0]
        v_cmpx_lt_u32_sdwa {sp(m0)}, v{vX}, v{p2+1} src0_sel:WORD_1 src1_sel:WORD_0
        ''')
        q(f'buffer_load_dwordx3 {vp(quad,3)}, v{T0}, s[8:11], 0 offen {recflags}', tag=('rec', sig))
        q('s_mov_b64 exec, -1')
        if sig == 0: q(f's_andn2_b64 {sp(m0)}, {sp(m0)}, {sp(sSKIP)}')
    def COS(q, quad, h, filler):
        q(f'''
        v_cvt_f32_bf16_sdwa v{T0}, v{quad+1} dst_sel:DWORD dst_unused:UNUSED_PAD src0_sel:WORD_{h}
        v_pk_mul_f32 {vp(T0)}, {vp(T0)}, {sp(sKF)} op_sel_hi:[0,1]
        ''')
        if 'nofract' not in diag: q(f'v_fract_f32 v{T0}, v{T0}\nv_fract_f32 v{T1}, v{T1}')
        q(f'''
        v_cos_f32 v{T0}, v{T0}
        v_cos_f32 v{T1}, v{T1}
        {filler}
        v_cvt_pk_bf16_f32 v{quad+1+2*h}, v{T0}, v{T1}
        ''')
    def A1(q, sig, quad, masks, par, live=True, p2=vP2):
        ex = lambda h: f's_and_b64 exec, {sp(masks[h])}, {sp(sLIVE)}' if live else f's_mov_b64 exec, {sp(masks[h])}'
        if live:
            COS(q, quad, 1, f'v_mov_b32 v{p2+1}, {INC}'); COS(q, quad, 0, ex(0))
        else: q(f'v_mov_b32 v{p2+1}, {INC}\n{ex(0)}')
        for h in range(2):
            if h: q(ex(1))
            q(f'v_lshlrev_b32_sdwa v{T0}, 2, v{quad+2*h} {SD} src1_sel:BYTE_0')
            q(f'ds_add_rtn_u32 v{p2+h}, v{T0}, v{p2+1} offset:{CNT+800*par}', tag=('ret', sig))
        q('s_mov_b64 exec, -1')
    def A2(q, sig, quad, masks, par, live=True, p2=vP2):
        for h in range(2):
            k = nid()
            q(f's_and_b64 exec, {sp(masks[h])}, {sp(sLIVE)}' if live else f's_mov_b64 exec, {sp(masks[h])}')
            q(f'''
            v_lshlrev_b32_sdwa v{T0}, 8, v{quad+2*h} {SD} src1_sel:BYTE_0
            v_cmp_le_u32 vcc, s{sLIM}, v{p2+h}
            v_and_or_b32 v{T0}, v{p2+h}, s{sF8}, v{T0}
            s_cbranch_vccnz B_sp{k}
            B_spb{k}:
            v_mov_b32_sdwa v{quad+2*h}, s{sEPA} dst_sel:BYTE_0 dst_unused:UNUSED_PRESERVE src0_sel:BYTE_0
            ''')
            q(f'ds_write_b64 v{T0}, {vp(quad+2*h)} offset:{[L0, L1][par]}')
            stubs(f'''
            B_sp{k}:
            v_mbcnt_lo_u32_b32 v{T1}, vcc_lo, 0
            v_mbcnt_hi_u32_b32 v{T1}, vcc_hi, v{T1}
            s_lshl_b32 s36, s{sSP}, 3
            s_add_u32 s36, s36, s{sSPB}
            v_lshl_add_u32 v{T1}, v{T1}, 3, s36
            s_bcnt1_i32_b64 s37, vcc
            s_add_u32 s{sSP}, s{sSP}, s37
            s_andn2_b64 s[36:37], exec, vcc
            s_mov_b64 exec, vcc
            ds_write_b64 v{T1}, {vp(quad+2*h)}
            s_mov_b64 exec, s[36:37]
            ''')
            if live:
                stubs(f'''
                s_cmp_le_u32 s{sSP}, {SPCAP-64}
                s_cbranch_scc1 B_spb{k}
                s_mov_b64 {sp(sLIVE)}, 0
                s_add_u32 s{sRES}, s{sU}, {32*sig + 16*(h+1)}
                ''')
            stubs(f's_branch B_spb{k}')
        q('s_mov_b64 exec, -1')
    def sweep_end(q, par, adv=True):
        k = nid()
        if adv: q(f'''
        s_add_u32 s{sU}, s{sU}, {32*NS}
        s_mov_b64 {sp(sSKIP)}, 0
        s_cmp_eq_u32 s{sLIVE}, 0
        s_cbranch_scc1 B_st{k}
        B_stb{k}:
        ''')
        q(f's_add_u32 s{sSW}, s{sSW}, 1')
        if par is not None:
            q(f's_and_b32 s36, s{sSW}, 126\ns_cbranch_scc0 B_cl{k}\nB_clb{k}:')
            stubs(f'B_cl{k}:\nv_mov_b32 v{Q1}, s{sEPC}\nv_mov_b32 v{Q1+1}, 0\ns_waitcnt lgkmcnt(0)')
            for v in range(24): stubs(f'ds_write_b64 v{vLB}, {vp(Q1)} offset:{[L0, L1][par] + v*256}')
            stubs(f's_cmp_lg_u32 s{sW24}, 0\ns_cbranch_scc1 B_clb{k}')
            stubs(f'ds_write_b64 v{vLB}, {vp(Q1)} offset:{[L0, L1][par] + 24*256}\ns_branch B_clb{k}')
        q(f'''
        s_mov_b32 s{sEPC}, s{sEPA}
        s_add_u32 s{sEPA}, s{sEPA}, 1
        s_and_b32 s{sEPA}, s{sEPA}, 255
        s_or_b32 s{sEP24}, s{sEPC}, s{sW24}
        s_waitcnt lgkmcnt(0)
        ''')
        if 'prebar' in diag: stamp(q)
        q('s_barrier')
        stamp(q)
        if not adv: return
        stubs(f'''
        B_st{k}:
        s_and_b32 s{sU}, s{sRES}, 0xffffffe0
        s_bitcmp1_b32 s{sRES}, 4
        s_cselect_b64 {sp(sSKIP)}, -1, 0
        s_mov_b64 {sp(sLIVE)}, -1
        ''')
        k2(stubs); stubs(f's_branch B_stb{k}')
    def reappend(q, par):
        k = nid()
        q(f'''
        s_cmp_lg_u32 s{sSP}, 0
        s_cbranch_scc1 B_ra{k}
        s_cmp_ge_u32 s{sU}, s{sUE}
        s_cbranch_scc1 B_free{1-par}
        B_rab{k}:
        ''')
        r = Seq()
        r(f'''
        B_ra{k}:
        v_mbcnt_lo_u32_b32 v{T0}, -1, 0
        v_mbcnt_hi_u32_b32 v{T0}, -1, v{T0}
        v_lshl_add_u32 v{T1}, v{T0}, 3, s{sSPB}
        ds_read_b64 {vp(Q1)}, v{T1}
        ds_read_b64 {vp(Q1+2)}, v{T1} offset:512
        v_cmp_gt_u32 s[40:41], s{sSP}, v{T0}
        v_add_u32 v{T0}, 64, v{T0}
        v_cmp_gt_u32 s[42:43], s{sSP}, v{T0}
        s_mov_b32 s{sSP}, 0
        s_waitcnt lgkmcnt(0)
        ''')
        A1(r, 99, Q1, (40, 42), par, live=False)
        r('s_waitcnt lgkmcnt(0)')
        A2(r, 99, Q1, (40, 42), par, live=False)
        r(f'''
        s_waitcnt lgkmcnt(0)
        s_cmp_le_u32 s{sSP}, {SPCAP-64}
        s_cbranch_scc1 B_rab{k}
        s_mov_b64 {sp(sLIVE)}, 0
        s_and_b32 s36, s{sSKIP}, 16
        s_add_u32 s{sRES}, s{sU}, s36
        s_branch B_rab{k}
        ''')
        tmp = Asm(); r.resolve(tmp, False); late.append(tmp.l)

    a.label(NAME)
    a(f'''
    s_cmp_ge_u32 s2, {NCU}
    s_cbranch_scc1 B_end
    s_load_dwordx2 s[56:57], s[0:1], {K_WS}
    s_load_dwordx2 s[54:55], s[0:1], {K_M}
    s_load_dwordx2 s[58:59], s[0:1], {K_DIST}
    s_load_dwordx4 s[60:63], s[0:1], {K_CEN}
    s_load_dwordx8 s[64:71], s[0:1], {K_WRBF}
    s_and_b32 s{sD}, s2, 7
    s_lshl_b32 s{sD}, s{sD}, 5
    s_lshr_b32 s36, s2, 3
    s_add_u32 s{sD}, s{sD}, s36
    v_lshrrev_b32 v34, 6, v0
    v_mul_u32_u24 v35, 24, v0
    v_lshlrev_b32 v36, 2, v0                     ; x*4
    v_readfirstlane_b32 s3, v34
    s_mul_i32 s36, s{sD}, {256*48}
    v_and_b32 v37, 63, v0                        ; lane
    v_and_b32 v38, 15, v0                        ; n
    v_lshrrev_b32 v39, 5, v37                    ; h
    v_lshrrev_b32 v33, 4, v37                    ; q
    v_lshlrev_b32 v41, 1, v38
    v_lshl_add_u32 v40, v39, 8, v41              ; (8h)*32 + n*2
    s_mul_i32 s{sST}, s3, 25
    s_sub_i32 s37, s3, 4
    s_max_i32 s37, s37, 0
    s_sub_u32 s{sST}, s{sST}, s37
    s_mul_i32 s37, s{sD}, {EPC*2}
    s_and_b32 s38, s37, 2
    s_sub_u32 s37, s37, s38
    s_waitcnt lgkmcnt(0)
    ''')
    srd(a, 12, 's56', 's57', TAB_OFF, TAB_BYTES)
    a(f'''
    s_load_dword s99, s[62:63], 0
    buffer_load_dwordx4 v[46:49], v35, s[12:15], s36 offen
    buffer_load_dwordx2 v[50:51], v35, s[12:15], s36 offen offset:16
    ''')
    srd(a, 76, 's68', 's69', None, 512)
    for k in range(8): a(f'buffer_load_ushort v{72+k}, v40, s[76:79], 0 offen offset:{32*k}')
    srd(a, 80, 's58', 's59', 's37', EPC*2 + 2)
    a(f'''
    s_lshl_b32 s36, s{sST}, 5
    v_lshlrev_b32 v32, 4, v37                    ; lane*16
    v_mov_b32 v96, v32
    buffer_load_dwordx4 v[80:83], v32, s[80:83], s36 offen
    v_lshl_add_u32 v42, v33, 7, v41              ; (4q)*32 + n*2
    v_lshl_add_u32 v43, v33, 6, v41              ; (2q)*32 + n*2
    v_lshlrev_b32 v44, 2, v33                    ; (2q)*2
    ''')
    R = 84
    srd(a, 84, 's70', 's71', None, 512)
    for k in range(4): a(f'buffer_load_ushort v{R+k}, v42, s[84:87], 0 offen offset:{32*k}')
    srd(a, 88, 's66', 's67', None, 512)
    for k in range(4): a(f'buffer_load_ushort v{R+4+k}, v42, s[88:91], 0 offen offset:{32*k}')
    srd(a, 72, 's64', 's65', None, 256)
    for k in range(2): a(f'buffer_load_ushort v{R+8+k}, v43, s[72:75], 0 offen offset:{32*k}')
    srd(a, 44, 's60', 's61', None, 16)
    for k in range(2): a(f'buffer_load_ushort v{R+10+k}, v44, s[44:47], 0 offen offset:{2*k}')
    srd(a, 4, 's54', 's55', None, 0 if 'nogather' in diag else E*32)
    srd(a, 8, 's56', 's57', None, REC_BYTES + 16)
    if 'stamp' in diag:
        srd(a, 92, 's56', 's57', 200000000, 1 << 20)
        a('s_lshl_b32 s98, s2, 3\ns_add_u32 s98, s98, s3\ns_lshl_b32 s98, s98, 8\nv_mov_b32 v42, v0')
        stamp(a, True); stamp(a); a('v_mov_b32 v0, v42')
    a(f'''
    v_lshlrev_b32 v41, 4, v0
    v_mov_b32 v42, 0
    v_mov_b32 v43, 0
    v_mov_b32 v44, 0
    v_mov_b32 v45, 0
    v_add_u32 v52, {L0}, v41
    v_add_u32 v53, {L1}, v41
    s_mul_i32 s39, s3, {TSZ}
    s_add_u32 s39, s39, {TBL}
    v_add_u32 v54, s39, v32
    ''')
    for k in range(6): a(f'ds_write_b128 v52, v[42:45] offset:{k*8192}')
    for k in range(TSZ // 1024): a(f'ds_write_b128 v54, v[42:45] offset:{k*1024}')
    assert TSZ % 1024 == 0 and L1 - L0 == 6*8192 + 1024 and TBL - L1 == 8*8192 + 1024
    a(f'''
    v_mov_b32 v98, v53
    v_cmp_gt_u32 s[14:15], 64, v0
    s_mov_b64 exec, s[14:15]
    ds_write_b128 v52, v[42:45] offset:{6*8192}
    s_mov_b64 exec, -1
    v_and_b32 v52, 31, v0
    v_lshlrev_b32 v52, 3, v52
    v_cmp_gt_u32 vcc, 200, v0
    s_mov_b64 exec, vcc
    ds_write_b32 v36, v52 offset:{CNT}
    ds_write_b32 v36, v52 offset:{CNT+800}
    ds_write_b32 v42, v42 offset:{FLAG}
    s_mov_b64 exec, -1
    s_mov_b32 s{sEPC}, 0
    s_mov_b32 s{sEPA}, 1
    s_mov_b32 s{sNM32}, 0xffffffe0
    s_mov_b32 s{sLIM}, {32 << 16}
    s_mov_b32 s{sF8}, 0xf8
    s_mov_b32 s{sFFFF}, 0xffff
    s_mov_b32 s{sSP}, 0
    s_mov_b32 s{sRES}, 0
    s_mov_b64 {sp(sLIVE)}, -1
    s_mov_b64 {sp(sSKIP)}, 0
    s_mov_b32 s{sSW}, 0
    s_mul_i32 s{sSPB}, s3, {SPCAP*8}
    s_add_u32 s{sSPB}, s{sSPB}, {SPILL}
    s_cmp_lt_u32 s3, 4
    s_cselect_b32 s37, 25, 24
    s_cselect_b32 s{sW24}, 0, 0x100
    s_bfm_b32 s{sNG}, s37, 0
    s_mov_b32 s{sNG+1}, 0
    s_lshl_b32 s36, s{sST}, 8
    v_and_b32 v52, 31, v37
    v_lshl_add_u32 v{vLB}, v52, 3, s36
    v_lshlrev_b32 v{vHALF}, 4, v39
    s_lshl_b32 s36, s3, 11
    s_add_u32 s36, s36, {PST}
    s_sub_u32 s37, s36, {PIMM}
    v_lshl_add_u32 v53, v39, 10, s37
    v_bfe_u32 v54, v52, 2, 2
    v_lshl_add_u32 v53, v54, 8, v53              ; + q*256
    v_lshrrev_b32 v54, 4, v52
    v_lshl_add_u32 v53, v54, 3, v53              ; + j*8
    v_and_b32 v54, 3, v52
    v_lshl_add_u32 v{vKC}, v54, 1, v53           ; + r*2
    v_lshl_add_u32 v54, v33, 8, s36
    v_lshl_add_u32 v{vPR}, v38, 4, v54           ; P base + q*256 + e*16
    v_lshlrev_b32 v{vX}, 3, v33
    v_lshl_or_b32 v{vX}, v38, 17, v{vX}          ; q*8 | (2e << 16)
    s_add_u32 s{sROW}, s39, {NXMAX*32}
    s_add_u32 s{sFAR}, s{sROW}, {8*NPH*32}
    v_and_b32 v53, 1, v33
    v_cmp_eq_u32 s[56:57], 0, v53
    v_lshrrev_b32 v52, 1, v0                     ; tile j
    s_mov_b32 s36, {TSTRIDE}
    v_mul_u32_u24 v52, s36, v52
    v_and_b32 v53, 1, v0                         ; hh
    v_mul_u32_u24 v54, {6*256}, v53
    v_lshrrev_b32 v55, 1, v37
    v_lshl_add_u32 v54, v55, 3, v54
    v_add_u32 v54, s{sROW}, v54
    v_mov_b32 v55, 0
    s_mov_b32 s{sNX}, 0
    ''')
    if 'pro' in diag: stamp(a, T0=56, T1=57)
    a('s_waitcnt vmcnt(21)')
    if 'pro' in diag: stamp(a, T0=56, T1=57)
    for k in range(6):
        e = 46 + k
        a(f'''
        v_lshrrev_b32 v35, 16, v{e}
        v_mad_u32_u16 v34, v{e}, 6, v52
        v_max_u32 v36, 1, v35
        v_subrev_u32 v36, 1, v36
        v_cmp_lt_u32 vcc, 32, v35
        v_max_u32 v55, v55, v35
        v_lshl_or_b32 v35, v36, 16, v35
        ''')
        if 6 + k >= NPH: a('s_mov_b32 exec_lo, 0x55555555\ns_mov_b32 exec_hi, 0x55555555')
        a(f'ds_write_b64 v54, v[34:35] offset:{k*256}')
        if 6 + k >= NPH: a('s_mov_b64 exec, -1')
        a(f's_cbranch_vccnz B_x{k}\nB_xb{k}:')
        stubs(f'''
        B_x{k}:
        v_mbcnt_lo_u32_b32 v36, vcc_lo, 0
        v_mbcnt_hi_u32_b32 v36, vcc_hi, v36
        s_bcnt1_i32_b64 s37, vcc
        v_add_u32 v36, s{sNX}, v36
        s_add_u32 s{sNX}, s{sNX}, s37
        s_cmp_gt_u32 s{sNX}, {4*NXMAX}
        s_cbranch_scc1 B_xb{k}
        v_add_u32 v34, 192, v34
        v_subrev_u32 v35, {32 + (32 << 16)}, v35
        s_sub_u32 s37, s{sROW}, 8
        v_lshlrev_b32 v36, 3, v36
        v_sub_u32 v36, s37, v36
        s_mov_b64 exec, vcc
        ds_write_b64 v36, v[34:35]
        s_mov_b64 exec, -1
        s_branch B_xb{k}
        ''')
    for sh in ('row_shr:1 row_mask:0xf', 'row_shr:2 row_mask:0xf', 'row_shr:4 row_mask:0xf', 'row_shr:8 row_mask:0xf', 'row_bcast:15 row_mask:0xa', 'row_bcast:31 row_mask:0xc'):
        a(f'v_max_u32_dpp v55, v55, v55 {sh} bank_mask:0xf')
    a(f'''
    v_readlane_b32 s36, v55, 63
    s_add_u32 s37, s{sNX}, 3
    s_lshr_b32 s37, s37, 2
    s_lshl_b32 s37, s37, 5
    s_sub_u32 s{sU}, s{sROW}, s37
    s_mov_b32 s{sUE}, s{sFAR}
    s_sub_u32 s13, s{sROW}, 32
    s_cmp_gt_u32 s{sNX}, {4*NXMAX}
    s_cselect_b32 s37, 65, 0
    s_max_u32 s37, s37, s36
    s_cmp_gt_u32 s37, 64
    s_cbranch_scc0 B_nofb
    s_mov_b32 s{sU}, s{sROW}
    s_add_u32 s36, s36, 31
    s_lshr_b32 s36, s36, 5
    s_mul_i32 s36, s36, {8*NPH*32}
    s_add_u32 s{sUE}, s{sROW}, s36
    s_mov_b32 s13, s{sFAR}
    B_nofb:
    s_waitcnt lgkmcnt(0)
    s_lshl_b32 s36, s99, 16
    s_and_b32 s37, s99, 0xffff0000
    v_mov_b32 v56, s36
    v_mov_b32 v57, s37
    v_mul_f32 v56, 0.15915494, v56
    v_mul_f32 v57, 0.15915494, v57
    v_readfirstlane_b32 s{sKF}, v56
    v_readfirstlane_b32 s{sKF+1}, v57
    s_barrier
    ''')
    stamp(a)
    import struct, math
    SQ = struct.unpack('<I', struct.pack('<f', math.sqrt(10*math.log2(math.e))))[0]
    def operands(q):
        for k in range(4):
            q(f'''
            v_lshl_or_b32 v{72+2*k}, v{73+2*k}, 16, v{72+2*k}
            v_cndmask_b32 v{W+4+k}, v{72+2*k}, 0, s[56:57]
            v_cndmask_b32 v{W+k}, 0, v{72+2*k}, s[56:57]
            ''')
        q(f'''
        s_lshl_b32 s36, s3, 10
        s_add_u32 s36, s36, {DST}
        v_add_u32 v97, s36, v96
        ds_write_b128 v97, v[80:83]
        v_lshl_or_b32 v72, v{R+1}, 16, v{R}          ; w_up
        v_lshl_or_b32 v73, v{R+3}, 16, v{R+2}
        v_lshl_or_b32 v74, v{R+6}, 16, v{R+4}
        v_lshl_or_b32 v75, v{R+7}, 16, v{R+5}
        v_lshl_or_b32 v76, v{R+9}, 16, v{R+8}        ; w_rbf
        v_mov_b32 v77, 0
        v_lshlrev_b32 v78, 16, v{R+10}
        v_lshlrev_b32 v79, 16, v{R+11}
        v_mul_f32 v78, {(SQ | 0x80000000):#x}, v78   ; -center*s
        v_mul_f32 v79, {(SQ | 0x80000000):#x}, v79
        v_add_u32 v97, {WST}, v96
        ds_write_b128 v97, v[72:75]
        ds_write_b128 v97, v[76:79] offset:1024
        ''')
        for k in range(100, 104): q(f'v_mov_b32 v{k}, 0')
        for k in range(8):
            q(f'ds_write_b128 v98, v[100:103] offset:{k*8192}')
            for r in range(104 + 19*k, 104 + 19*k + 19): q(f'v_mov_b32 v{r}, 0')
        q(f'v_add_u32 v98, {8*8192}, v98\ns_mov_b64 exec, s[14:15]\nds_write_b128 v98, v[100:103]\ns_mov_b64 exec, -1')
    q = Seq()
    q(f'B_xl:\ns_add_u32 s36, s{sU}, 32\ns_cmp_ge_u32 s36, s{sROW}\ns_cbranch_scc1 B_xe')
    L1s(q, 0); L2s(q, 0, Q0, 40, 42)
    q('s_waitcnt vmcnt(0)'); A1(q, 0, Q0, (40, 42), 0)
    q('s_waitcnt lgkmcnt(0)'); A2(q, 0, Q0, (40, 42), 0)
    q(f's_cmp_eq_u32 s{sLIVE}, 0\ns_cbranch_scc1 B_pz\ns_add_u32 s{sU}, s{sU}, 32\ns_branch B_xl\nB_xe:')
    q(f's_mov_b32 s{sU}, s{sROW}')
    SL = list(range(-1, NS))
    pq = lambda s: 20 + 4*s
    pm = lambda s: (40, 42) if s < 0 else ((58 + 4*s, 60 + 4*s) if s < 3 else (60 + 4*s, 62 + 4*s))
    pp = lambda s: 54 + 2*(s + 1)
    for s in SL:
        q(f's_add_u32 s36, s{sU}, {32*s}' if s >= 0 else 's_mov_b32 s36, s13')
        q(f'v_add_u32_sdwa v{T0}, s36, v{vX} {SD} src1_sel:WORD_0')
        q(f'ds_read_b64 {vp(pp(s))}, v{T0}', tag=('ent', s))
    for s in SL: L2s(q, s, pq(s), *pm(s), pp(s))
    if 'pro' in diag: stamp(q)
    q(f's_waitcnt vmcnt({len(SL)})')
    operands(q)
    if 'pro' in diag: stamp(q)
    TP = lambda s, h: 72 + 4*((s + 1) % 3) + 2*h
    def cos2(s):
        for st in range(5):
            for h in (1, 0):
                t = TP(s, h)
                q([f'v_cvt_f32_bf16_sdwa v{t}, v{pq(s)+1} dst_sel:DWORD dst_unused:UNUSED_PAD src0_sel:WORD_{h}',
                   f'v_pk_mul_f32 {vp(t)}, {vp(t)}, {sp(sKF)} op_sel_hi:[0,1]',
                   f'v_fract_f32 v{t}, v{t}\nv_fract_f32 v{t+1}, v{t+1}',
                   f'v_cos_f32 v{t}, v{t}\nv_cos_f32 v{t+1}, v{t+1}',
                   f'v_cvt_pk_bf16_f32 v{pq(s)+1+2*h}, v{t}, v{t+1}'][st])
    for s in SL:
        q.wait('v', [('rec', s)])
        A1(q, s, pq(s), pm(s), 0, live=False, p2=pp(s))
        cos2(s)
    for s in SL:
        q.wait('l', [('ret', s)]); A2(q, s, pq(s), pm(s), 0, p2=pp(s))
    if 'pro' in diag: stamp(q)
    q('s_branch B_pe\nB_pz:')
    operands(q)
    q('B_pe:')
    for v in range(5): q(f'v_mov_b32 v{PK(v)}, v{vKC}\ns_mov_b64 {sp(MK(v))}, 0')
    for k in list(range(G, G+12)) + list(range(U, U+16)) + list(range(56, 100)): q(f'v_mov_b32 v{k}, 0')
    sweep_end(q, None)
    q.resolve(a, False)

    MF = 'v_mfma_f32_16x16x32_bf16'
    GS = lambda v: Q0 if v == 24 else G + 4*(v % 3)
    def setprio(q, v, tag):
        if v in prio:
            if prio.index(v) % 2 == 0:
                q(f's_cmp_eq_u32 s{sW24}, 0\ns_cbranch_scc1 B_pr{tag}_{v}\ns_setprio 1\nB_pr{tag}_{v}:')
            else: q('s_setprio 0')
    def step(q, par, v, LB, visit=True):
        av = (v - 3) % NV; ap = par if v >= 3 else 1-par
        bv = (v - 4) % NV
        if v: q.wait('l', [('pr', par, v - 1)])
        q(f'{MF} {vp(ACC(bv),4)}, {vp(XB,4)}, {vp(U,4)}, {vp(ACC(bv),4)}', drop='nomfma' in diag)
        q(f'{MF} {vp(ACC(bv)+4,4)}, {vp(XB,4)}, {vp(U+4,4)}, {vp(ACC(bv)+4,4)}', drop='nomfma' in diag)
        if not visit and v == 3: return
        if visit:
            if v == 0: q.wait('l', [('lst', par, 0)])
            q(f'''
            v_bfe_u32 v{T0}, v{LP}, 8, 4
            v_and_b32 v{T1}, s{sFFFF}, v{PK(av)}
            v_lshl_add_u32 v{PK(v)}, v{T0}, 4, v{vKC}
            v_and_b32 v{T0}, s{sFFFF}, v{PK(bv)}
            v_cmpx_eq_u32_sdwa {sp(MK(v))}, s{sEP24 if v == 24 else sEPC}, v{LP} src0_sel:DWORD src1_sel:BYTE_0
            v_lshrrev_b32 v{LP}, 7, v{LP}
            v_lshrrev_b32_sdwa v{PK(v)}, v{vHALF}, v{LP+1} dst_sel:WORD_1 dst_unused:UNUSED_PRESERVE src0_sel:DWORD src1_sel:DWORD
            v_and_or_b32 v{LP}, v{LP}, s{sNM32}, v{vHALF}
            ''')
        else: q(f'v_and_b32 v{T1}, s{sFFFF}, v{PK(av)}\nv_and_b32 v{T0}, s{sFFFF}, v{PK(bv)}')
        q.wait('v', [('gat', ap, av)])
        q(f'{MF} {vp(U,4)}, {vp(GS(av),4)}, {vp(W,4)}, 0', drop='nomfma' in diag)
        q(f'{MF} {vp(U+4,4)}, {vp(GS(av),4)}, {vp(W+4,4)}, 0', drop='nomfma' in diag)
        if visit: q(f'buffer_load_dwordx4 {vp(GS(v),4)}, v{LP}, s[4:7], 0 offen', tag=('gat', par, v), drop='nodma' in diag)
        q(f's_mov_b64 exec, {sp(MK(bv))}')
        q(f'ds_write_b16_d16_hi v{T0}, v{vHALF} offset:{PIMM}', drop='nopw' in diag)
        q(f's_mov_b64 exec, {sp(MK(av))}')
        q(f'ds_write_b16_d16_hi v{T1}, v{PK(av)} offset:{PIMM}', drop='nopw' in diag)
        q('s_mov_b64 exec, -1')
        if visit and v + 1 < NV: q(f'ds_read_b64 {vp(LP)}, v{vLB} offset:{LB + (v+1)*256}', tag=('lst', par, v+1))
        for k in range(4): q(f'v_cvt_pk_bf16_f32 v{XB+k}, v{U+2*k}, v{U+2*k+1}')
        q(f'ds_read_b128 {vp(U,4)}, v{vPR}', drop='nopr' in diag)
        q(f'ds_read_b128 {vp(U+4,4)}, v{vPR} offset:1024', tag=('pr', par, v), drop='nopr' in diag)
        if visit and v == 23:
            for k in range(4): q(f'v_mov_b32 v{Q0+k}, 0')
    def cntreset(q, off):
        q(f'''
        v_mbcnt_lo_u32_b32 v{T0}, -1, 0
        v_mbcnt_hi_u32_b32 v{T0}, -1, v{T0}
        v_add_u32 v{T0}, s{sST}, v{T0}
        v_and_b32 v{T1}, 31, v{T0}
        v_lshl_add_u32 v{T0}, v{T0}, 2, {off}
        v_lshlrev_b32 v{T1}, 3, v{T1}
        s_mov_b64 exec, {sp(sNG)}
        ds_write_b32 v{T0}, v{T1} offset:{CNT}
        ''')
    q = Seq()
    for par in range(2):
        LB = [L0, L1][par]
        q(f'B_loop{par}:')
        if MAXSW < 1 << 30: q(f's_cmp_gt_u32 s{sSW}, {MAXSW}\ns_cbranch_scc1 B_epi')
        reappend(q, 1-par)
        q(f'ds_read_b64 {vp(LP)}, v{vLB} offset:{LB}', tag=('lst', par, 0))
        for v in range(NV):
            setprio(q, v, par)
            step(q, par, v, LB)
            qd = lambda s: Q0 + 4*(s % 2); mk = lambda s: (40 + 4*(s % 2), 42 + 4*(s % 2))
            for s in range(NS):
                if v == APOS[s] + DA + 1: q.wait('l', [('ret', s)]); A2(q, s, qd(s), mk(s), 1-par)
            for s in range(NS):
                if v == APOS[s]: L2s(q, s, qd(s), *mk(s))
            for s in range(NS):
                if v == APOS[s] - 1: L1s(q, s)
                if v == APOS[s] + DA: q.wait('v', [('rec', s)]); A1(q, s, qd(s), mk(s), 1-par)
            if v == 0:
                if par: q('s_movk_i32 s36, 800')
                cntreset(q, 's36' if par else '0')
                q(f'''
                s_mov_b64 exec, 1
                v_mov_b32 v{T0}, s{sSW}
                v_mov_b32 v{T1}, 0
                ds_max_u32 v{T1}, v{T0} offset:{FLAG}
                s_mov_b64 exec, -1
                ''')
        sweep_end(q, par)
    q('s_branch B_loop0')
    q.resolve(a, True)
    q = Seq()
    q(f'''
    B_free1:
    s_mov_b32 s{sDID}, {L1 - L0}
    s_branch B_free
    B_free0:
    s_mov_b32 s{sDID}, 0
    B_free:
    v_mov_b32 v{T0}, 0
    v_add_u32 v{vLB}, s{sDID}, v{vLB}
    ds_read_b32 v{vF}, v{T0} offset:{FLAG}
    ''')
    q(f'ds_read_b64 {vp(LP)}, v{vLB} offset:{L0}', tag=('lst', 0, 0))
    q(f'''
    s_waitcnt lgkmcnt(1)
    v_readfirstlane_b32 s36, v{vF}
    s_add_u32 s36, s36, 1
    s_cmp_lt_u32 s36, s{sSW}
    s_cbranch_scc1 B_epi
    ''')
    for v in (22, 23, 24): q('buffer_x', tag=('gat', 1, v)); q.o[-1]['t'] = ''
    for v in range(NV):
        setprio(q, v, 'f')
        step(q, 0, v, L0)
        if v == 0:
            q(f's_cmp_lg_u32 s{sDID}, 0\ns_cselect_b32 s36, 800, 0')
            cntreset(q, 's36'); q('s_mov_b64 exec, -1')
    sweep_end(q, 0, adv=False)
    q(f'''
    v_subrev_u32 v{vLB}, s{sDID}, v{vLB}
    s_cmp_lg_u32 s{sDID}, 0
    s_cbranch_scc1 B_loop0
    s_branch B_loop1
    ''')
    q.resolve(a, False)

    a.label('B_epi')
    stamp(a)
    a(f'''
    s_setprio 0
    s_load_dwordx2 s[72:73], s[0:1], {K_OUT}
    s_mul_i32 s36, s{sD}, {EPC*32}
    v_mbcnt_lo_u32_b32 v{vLB}, -1, 0
    v_mbcnt_hi_u32_b32 v{vLB}, -1, v{vLB}        ; lane
    s_lshl_b32 s38, s{sST}, 9
    s_lshl_b32 s39, s{sST}, 8
    s_add_u32 s40, s39, {L1}                     ; piece 1
    s_add_u32 s39, s39, {L0}                     ; piece 0
    s_mul_i32 s41, s3, {TSZ}
    s_add_u32 s41, s41, {TBL}                    ; piece 2
    v_lshlrev_b32 v{vX}, 4, v{vLB}
    ''')
    srd(a, 12, 's54', 's55', 's36', EPC*32)
    piece = lambda pr: (39 + min(pr // 6, 2), (pr % 6)*1024)
    q = Seq()
    for v in (22, 23, 24): q('buffer_x', tag=('gat', 1, v)); q.o[-1]['t'] = ''
    q('s_waitcnt lgkmcnt(0)')
    def mdma(pr):
        sg, off = piece(pr)
        q(f's_add_u32 m0, s{sg}, {off}\ns_add_u32 s42, s38, {pr*1024}')
        q(f'buffer_load_dwordx4 v{vX}, s[12:15], s42 offen lds', tag=('m', pr))
    for v in range(4):
        for pr in range(EDM*v, EDM*v + EDM): mdma(pr)
        step(q, 0, v, L0, visit=False)
    t = Asm(); srd(t, 8, 's72', 's73', 's36', EPC*32); q('\n'.join(t.l))
    if 'epi' in diag: stamp(q)
    WU, W0, W1, WR, CS, RB, TT, DD, MM, A0, VV = 8, 10, 12, 14, 0, 16, 20, 24, 28, 32, 48
    TMP = 7
    q(f'''
    v_lshrrev_b32 v3, 4, v{vLB}                  ; q
    v_and_b32 v2, 15, v{vLB}                     ; e
    v_add_u32 v5, {WST}, v{vX}
    ds_read_b128 v[44:47], v5
    ds_read_b128 v[48:51], v5 offset:1024
    s_mul_i32 s37, s{sD}, {EPC*2}
    s_and_b32 s37, s37, 2
    s_lshl_b32 s42, s3, 10
    s_add_u32 s37, s37, s42
    s_add_u32 s37, s37, {DST}
    v_lshl_add_u32 v5, v2, 1, s37
    v_lshlrev_b32 v4, 5, v2
    v_lshl_add_u32 v4, v3, 3, v4                 ; e*32 + q*8
    v_add_u32 v2, s39, v4
    v_add_u32 v3, s40, v4
    v_add_u32 v4, s41, v4
    s_mov_b32 s43, 0xffff0000
    s_mov_b32 s44, {SQ:#x}
    s_mov_b32 s45, {SQ:#x}
    v_mov_b32 v{RB+1}, 0
    v_mov_b32 v{RB+3}, 0
    v_mov_b32 v{W0+1}, 0
    v_mov_b32 v{W1+1}, 0
    v_mov_b32 v{WR+1}, 0
    ''')
    def drd(p):
        for h in range(2): q(f'ds_read_u16 v{DD + 2*(p % 2) + h}, v5 offset:{32*(2*p+h)}', tag=('d', p))
    drd(0); drd(1)
    q(f'''
    s_waitcnt lgkmcnt(4)
    v_mov_b32 v{WU}, v44
    v_mov_b32 v{WU+1}, v45
    v_mov_b32 v{W0}, v46
    v_mov_b32 v{W1}, v47
    v_mov_b32 v{WR}, v48
    v_mov_b32 v{CS}, v50
    v_mov_b32 v{CS+1}, v51
    ''')
    MF = 'v_mfma_f32_16x16x16_bf16'
    HS = lambda p: (0, 1) if p < 12 else (0,)
    VR = lambda p, h: VV + 4*h
    lds = lambda v: (2 + min(v // 12, 2), (v % 12)*512)
    def E1(p):
        d = DD + 2*(p % 2); H2 = HS(p)
        q.wait('l', [('d', p)])
        for h in H2: q(f'v_lshlrev_b32 v{d+h}, 16, v{d+h}')
        for h in H2: q(f'v_pk_fma_f32 {vp(TT+2*h)}, {vp(d)}, s[44:45], {vp(CS)} op_sel:[{h},0,0] op_sel_hi:[{h},0,1]')
        if p + 2 <= 12: drd(p + 2)
        for h in H2: q(f'v_pk_mul_f32 {vp(TT+2*h)}, {vp(TT+2*h)}, {vp(TT+2*h)} neg_lo:[0,1] neg_hi:[0,1]')
        for h in H2: q(f'v_exp_f32 v{TT+2*h}, v{TT+2*h}\nv_exp_f32 v{TT+2*h+1}, v{TT+2*h+1}')
        if 4*EDM + p < 13: mdma(4*EDM + p)
        for h in H2: q(f'v_cvt_pk_bf16_f32 v{RB+2*h}, v{TT+2*h}, v{TT+2*h+1}')
        for h in H2:
            q(f'{MF} {vp(A0+8*h,4)}, {vp(W0)}, {vp(RB+2*h)}, 0')
            q(f'{MF} {vp(A0+8*h+4,4)}, {vp(W1)}, {vp(RB+2*h)}, 0')
    def E2(p):
        H2 = HS(p)
        q.wait('v', [('m', p)])
        for h in H2:
            b, off = lds(2*p + h)
            q(f'ds_read_b64 {vp(MM + 2*h)}, v{b} offset:{off}', tag=('mm', p))
        for k in (0, 2):
            for h in H2: q(f'v_pk_mul_f32 {vp(ACC(2*p+h)+k)}, {vp(ACC(2*p+h)+k)}, {vp(A0+8*h+k)}')
        for k in (0, 2):
            for h in H2: q(f'v_pk_fma_f32 {vp(ACC(2*p+h)+k)}, {vp(ACC(2*p+h)+4+k)}, {vp(A0+8*h+4+k)}, {vp(ACC(2*p+h)+k)}')
        for k in (0, 1):
            for h in H2: q(f'v_cvt_pk_bf16_f32 v{ACC(2*p+h)+k}, v{ACC(2*p+h)+2*k}, v{ACC(2*p+h)+2*k+1}')
        for h in H2: q(f'{MF} {vp(VR(p,h),4)}, {vp(WR)}, {vp(RB+2*h)}, 0')
        for h in H2: q(f'{MF} {vp(ACC(2*p+h)+4,4)}, {vp(WU)}, {vp(ACC(2*p+h))}, 0')
    def E3(p):
        H2 = HS(p)
        q.wait('l', [('mm', p)])
        for k in (0, 1):
            for h in H2:
                q(f'v_lshlrev_b32 v{ACC(2*p+h)+2*k}, 16, v{MM+2*h+k}\nv_and_b32 v{ACC(2*p+h)+2*k+1}, s43, v{MM+2*h+k}')
        for k in (0, 2):
            for h in H2: q(f'v_pk_fma_f32 {vp(ACC(2*p+h)+k)}, {vp(ACC(2*p+h)+4+k)}, {vp(VR(p,h)+k)}, {vp(ACC(2*p+h)+k)}')
        for k in (0, 1):
            for h in H2: q(f'v_cvt_pk_bf16_f32 v{ACC(2*p+h)+k}, v{ACC(2*p+h)+2*k}, v{ACC(2*p+h)+2*k+1}')
        sg, off2 = piece(p)
        q(f's_add_u32 s42, s{sg}, {off2}\nv_add_u32 v{TMP}, s42, v{vX}')
        for h in H2:
            b, off = lds(2*p + h)
            q(f'ds_write_b64 v{b}, {vp(ACC(2*p+h))} offset:{off}')
        q(f'ds_read_b128 {vp(ACC(min(2*p+1, 24)),4)}, v{TMP}', tag=('o', p))
    def ST(pr):
        A = ACC(min(2*pr + 1, 24))
        q(f's_add_u32 s42, s38, {pr*1024}')
        q.wait('l', [('o', pr)])
        q(f'buffer_store_dwordx4 {vp(A,4)}, v{vX}, s[8:11], s42 offen')
    E1(0)
    if 'epi' in diag: stamp(q, T0=TT, T1=TT+1)
    for p in range(12):
        E2(p); E1(p + 1)
        if p >= 1: ST(p - 1)
        E3(p)
    ST(11)
    if 'epi' in diag: stamp(q, T0=TT, T1=TT+1)
    q('s_cmp_ge_u32 s3, 4\ns_cbranch_scc1 B_last')
    E2(12); E3(12)
    q('s_mov_b32 exec_hi, 0')
    ST(12)
    q.resolve(a, False)
    a.label('B_last')
    if 'stamp' in diag:
        a('s_mov_b64 exec, -1\ns_waitcnt vmcnt(0)')
        stamp(a); stamp(a, True)
    a.label('B_end')
    a('s_endpgm')
    out = a.l + stubs.l
    for l in late: out += l
    return out
```

```python
E = 800000; T = 12800000; NCU = 256; TILE = 50000; EPC = 3125
TSTRIDE = 318464
REC_BYTES = NCU*TSTRIDE
import os
NPH = int(os.environ.get('NPH', 12)); LASTW = float(os.environ.get('LASTW', 0.5))
MPH = int((NPH - 1 + LASTW)*2**32) // E
TAB_OFF = REC_BYTES + 256
TAB_BYTES = 65536*48
K_M, K_II, K_IO, K_DIST, K_ANG, K_CEN, K_FREQ, K_WRBF, K_WSBF, K_WD, K_WU, K_OUT, K_DBG, K_WS = [8*i for i in range(14)]
class Asm:
    def __init__(s): s.l = []
    def __call__(s, t):
        for x in t.strip('\n').split('\n'):
            x = x.strip()
            if not x: continue
            s.l.append(x if x.endswith(':') else '    ' + x)
    def label(s, n): s.l.append(n + ':')
def srd(a, r, lo, hi, off_s, size):
    if off_s is None:
        a(f's_mov_b32 s{r}, {lo}\ns_mov_b32 s{r+1}, {hi}')
    else:
        a(f's_add_u32 s{r}, {lo}, {off_s}\ns_addc_u32 s{r+1}, {hi}, 0')
    a(f's_mov_b32 s{r+2}, {size}\ns_mov_b32 s{r+3}, 0x20000')
KD = """.section .rodata,"a"
.p2align 6
.amdhsa_kernel {name}
  .amdhsa_next_free_vgpr {vgpr}
  .amdhsa_next_free_sgpr {sgpr}
  .amdhsa_accum_offset {acc}
  .amdhsa_group_segment_fixed_size 0
  .amdhsa_kernarg_size 112
  .amdhsa_user_sgpr_count 2
  .amdhsa_user_sgpr_kernarg_segment_ptr 1
  .amdhsa_system_sgpr_workgroup_id_x 1
.end_amdhsa_kernel
.text
"""
def head(name):
    return f""".globl {name}
.p2align 8
.type {name},@function
"""
```

```python
from common import *
NAME = 'bin_kernel'
LDS = 163840
H = 17616 if NPH <= 11 else 17696; SB = 12416; WT = 12352
assert 3*H >= TILE + 256*NPH and (TILE + 256*NPH)*6 <= TSTRIDE
SD = 'dst_sel:DWORD dst_unused:UNUSED_PAD src0_sel:DWORD'
def gen(PF=8, ldf='nt', mpf=0, stag=0, oob=True, hold=10, diag=()):
    a = Asm()
    def stamp(real=False):
        if 'stamp' not in diag: return
        a(f'''
        {'s_memrealtime' if real else 's_memtime'} s[76:77]
        s_waitcnt lgkmcnt(0)
        v_mov_b32 v30, s76
        v_mov_b32 v31, 0
        s_mov_b64 exec, 1
        buffer_store_dword v30, v31, s[72:75], s78 offen
        s_mov_b64 exec, -1
        s_add_u32 s78, s78, 4
        ''')
    NGR = 25
    RG = lambda q: 56 + 8*q
    R0 = lambda k: 56 + 2*k
    R1 = lambda k: 57 + 2*k
    TA = lambda q: 56 - 2*PF + 2*(q % PF)
    a.label(NAME)
    a(f'''
    s_cmp_ge_u32 s2, {NCU}
    s_cbranch_scc1 A_end
    s_load_dwordx4 s[36:39], s[0:1], {K_II}
    s_load_dwordx2 s[40:41], s[0:1], {K_ANG}
    s_load_dwordx2 s[44:45], s[0:1], {K_WS}
    s_load_dwordx2 s[42:43], s[0:1], {K_M}
    s_load_dwordx2 s[62:63], s[0:1], {K_DIST}
    s_mul_i32 s46, s2, {TILE*4}
    s_mul_i32 s47, s2, {TILE*2}
    s_mul_i32 s48, s2, {TSTRIDE}
    v_lshlrev_b32 v1, 4, v0                      ; x*16
    v_lshlrev_b32 v2, 3, v0                      ; x*8
    v_mov_b32 v3, 1
    v_mov_b32 v4, 0
    v_mov_b32 v5, 0
    v_mov_b32 v6, 0
    v_mov_b32 v7, 0
    s_waitcnt lgkmcnt(0)
    ''')
    srd(a, 4, 's36', 's37', 's46', TILE*4)
    srd(a, 8, 's38', 's39', 's46', TILE*4)
    srd(a, 12, 's40', 's41', 's47', TILE*2)
    def loads(q):
        a(f's_mov_b32 s50, {q*8192}\ns_mov_b32 s51, {q*4096}')
        a(f'buffer_load_dwordx4 v[{RG(q)}:{RG(q)+3}], v1, s[4:7], s50 offen {ldf}')
        a(f'buffer_load_dwordx4 v[{RG(q)+4}:{RG(q)+7}], v1, s[8:11], s50 offen {ldf}')
        a(f'buffer_load_dwordx2 v[{TA(q)}:{TA(q)+1}], v2, s[12:15], s51 offen {ldf}')
    if 'stamp' in diag:
        srd(a, 72, 's44', 's45', 200000000, 1 << 20)
        a('v_lshrrev_b32 v8, 6, v0\ns_nop 1\nv_readfirstlane_b32 s3, v8\ns_lshl_b32 s78, s2, 3\ns_add_u32 s78, s78, s3\ns_lshl_b32 s78, s78, 8')
        stamp(True); stamp(); a('s_waitcnt vmcnt(0)')
    def slow(tag):
        a(f's_bitcmp1_b32 s2, 3\ns_cbranch_scc0 A_f{tag}\ns_waitcnt vmcnt(0)\nA_f{tag}:')
    for q in range(PF):
        loads(q)
        if q < stag: slow(q)
    for k in range(2): a(f'ds_write_b128 v1, v[4:7] offset:{k*8192}')
    srd(a, 16, 's44', 's45', 's48', H*6)
    srd(a, 20, 's44', 's45', TAB_OFF, TAB_BYTES)
    srd(a, 64, 's42', 's43', None, E*32)
    srd(a, 68, 's62', 's63', None, E*2)
    a(f'''
    s_mov_b32 s24, 1374390
    s_mov_b32 s25, {-EPC}
    s_mov_b32 s26, {MPH}
    s_mov_b32 s27, 0xffff0000
    s_mov_b32 s28, 0xffff
    s_mov_b32 s29, {H}
    s_mov_b32 s33, 0x07060302
    s_mov_b32 s32, {(TILE - 24*2048)//4}
    v_cmp_gt_u32 s[30:31], s32, v0
    v_lshrrev_b32 v8, 6, v0
    s_waitcnt lgkmcnt(0)
    v_readfirstlane_b32 s3, v8
    s_barrier
    ''')
    def prefetch(pos):
        if mpf != pos: return
        a(f'''
        v_lshlrev_b32 v9, 7, v0
        s_mul_i32 s50, s2, {EPC*32}
        s_and_b32 s50, s50, 0xffffff80
        s_add_u32 s51, s50, 65536
        s_mul_i32 s52, s2, {EPC*2}
        s_and_b32 s52, s52, 0xffffff80
        s_mov_b32 m0, 160000
        s_nop 0
        buffer_load_dword v9, s[64:67], s50 offen lds
        v_cmp_gt_u32 vcc, {(EPC*32 + 127 + 127)//128 - 512}, v0
        s_mov_b64 exec, vcc
        buffer_load_dword v9, s[64:67], s51 offen lds
        s_mov_b64 exec, -1
        v_cmp_gt_u32 vcc, 50, v0
        s_mov_b64 exec, vcc
        buffer_load_dword v9, s[68:71], s52 offen lds
        s_mov_b64 exec, -1
        ''')
    for q in range(NGR):
        issued = min(NGR, q + PF)
        a(f's_waitcnt vmcnt({3*(issued - q - 1)})')
        if q == NGR-1: a('s_mov_b64 exec, s[30:31]')
        td = [12, 13, 14, 15]; tp = [16, 17, 18, 19]; tl = [20, 21, 22, 23]
        I = lambda e: RG(q) + e; O = lambda e: RG(q) + 4 + e
        for e in range(4): a(f'v_mul_hi_u32_u24 v{td[e]}, s24, v{O(e)}')
        for e in range(4): a(f'v_mul_hi_u32_u24 v{tp[e]}, s26, v{I(e)}')
        for e in range(4): a(f'v_mad_i32_i24 v{tl[e]}, v{td[e]}, s25, v{O(e)}')
        for e in range(4): a(f'v_lshl_or_b32 v{tp[e]}, v{tp[e]}, 8, v{td[e]}')
        for e in range(4): a(f'v_lshlrev_b32 v{tp[e]}, 2, v{tp[e]}')
        for e in range(4): a(f'v_and_b32 v{td[e]}, 15, v{tl[e]}')
        for e in range(4):
            a(f'ds_add_u32 v{tp[e]}, v3')
            a(f'v_lshrrev_b32 v{tl[e]}, 4, v{tl[e]}')
            a(f'v_lshl_or_b32 v{td[e]}, v{I(e)}, 4, v{td[e]}')
        for e in range(4):
            k = 4*q + e
            a(f'v_lshl_or_b32 v{R0(k)}, v{td[e]}, 8, v{tl[e]}')
            if e % 2 == 0: a(f'v_lshl_or_b32 v{R1(k)}, v{TA(q)+e//2}, 16, v{tp[e]}')
            else: a(f'v_and_or_b32 v{R1(k)}, v{TA(q)+e//2}, s27, v{tp[e]}')
        if q + PF < NGR: loads(q + PF)
    a('s_mov_b64 exec, -1')
    prefetch(1)
    a('s_waitcnt lgkmcnt(0)')
    stamp()
    a('s_barrier')
    stamp()
    C = 12; Q = 28; PB = 40
    a('v_mul_u32_u24 v11, 24, v0')
    for k in range(3): a(f'ds_read_b64 v[{C+2*k}:{C+2*k+1}], v11 offset:{8*k}')
    a('s_waitcnt lgkmcnt(0)')
    for k in range(6): a(f'v_and_b32 v{PB+k}, 1, v{C+k}')
    for k in range(6): a(f'v_add_u32 v{C+k}, v{C+k}, v{PB+k}')
    for k in range(1, 6): a(f'v_add_u32 v{C+k}, v{C+k}, v{C+k-1}')
    a(f'v_mov_b32 v46, v{C+5}')
    for sh in ('row_shr:1 row_mask:0xf', 'row_shr:2 row_mask:0xf', 'row_shr:4 row_mask:0xf', 'row_shr:8 row_mask:0xf', 'row_bcast:15 row_mask:0xa', 'row_bcast:31 row_mask:0xc'):
        a(f'v_add_u32_dpp v46, v46, v46 {sh} bank_mask:0xf')
    a(f'''
    v_readlane_b32 s35, v46, 63
    s_lshl_b32 s50, s3, 2
    s_add_u32 s50, s50, {WT}
    v_mov_b32 v47, s50
    v_mov_b32 v48, s35
    s_mov_b64 exec, 1
    ds_write_b32 v47, v48
    s_mov_b64 exec, -1
    v_sub_u32 v46, v46, v{C+5}
    v_mov_b32 v47, {WT}
    s_waitcnt lgkmcnt(0)
    s_barrier
    ds_read_b128 v[48:51], v47
    ds_read_b128 v[52:55], v47 offset:16
    s_mov_b32 s35, 0
    s_mov_b32 s34, 0
    s_waitcnt lgkmcnt(0)
    ''')
    for w in range(8):
        a(f'v_readfirstlane_b32 s50, v{48+w}\ns_add_u32 s34, s34, s50\ns_cmp_eq_u32 s3, {w+1}\ns_cselect_b32 s35, s34, s35')
    a(f'v_add_u32 v{Q}, s35, v46')
    for k in range(1, 7): a(f'v_add_u32 v{Q+k}, v{Q}, v{C+k-1}')
    for k in range(6): a(f'v_lshl_or_b32 v{Q+k}, v{PB+k}, 16, v{Q+k}')
    for k in range(3): a(f'ds_write_b64 v11, v[{Q+2*k}:{Q+2*k+1}] offset:{8*k}')
    a(f'''
    v_cmp_eq_u32 vcc, 511, v0
    s_mov_b64 exec, vcc
    ds_write_b32 v11, v{Q+6} offset:24
    s_mov_b64 exec, -1
    s_mul_i32 s34, s34, 6
    v_and_b32 v45, 255, v0                       ; d
    v_lshrrev_b32 v46, 8, v0                     ; hh
    v_mul_u32_u24 v47, {6*1024}, v46
    v_lshl_add_u32 v47, v45, 2, v47
    v_mul_u32_u24 v45, {256*48}, v45
    v_mad_u32_u24 v45, v46, 24, v45
    s_mul_i32 s50, s2, 48
    s_waitcnt lgkmcnt(0)
    s_barrier
    ''')
    for k in range(6): a(f'ds_read_b32 v{C+k}, v47 offset:{1024*k}\nds_read_u16 v{Q+k}, v47 offset:{1024*k+4}')
    a('s_waitcnt lgkmcnt(0)\ns_barrier')
    for k in range(6): a(f'v_sub_u32_sdwa v{Q+k}, v{Q+k}, v{C+k} {SD} src1_sel:WORD_0')
    for k in range(6): a(f'v_sub_u32_sdwa v{Q+k}, v{Q+k}, v{C+k} {SD} src1_sel:WORD_1')
    for k in range(6): a(f'v_perm_b32 v{48+k}, v{Q+k}, v{C+k}, s{79}'.replace('s79', 's53'))
    a.l.insert(len(a.l) - 18, '    s_mov_b32 s53, 0x05040100')
    a('''
    buffer_store_dwordx4 v[48:51], v45, s[20:23], s50 offen
    buffer_store_dwordx2 v[52:53], v45, s[20:23], s50 offen offset:16
    ''')
    stamp()
    prefetch(2)
    NR = 8
    ad = [12 + k for k in range(NR)]; rr = [20 + k for k in range(NR)]
    def issue(k0):
        if k0 == 96:
            for k in range(k0, k0+4): a(f'v_mov_b32 v{rr[k % NR]}, -1')
            a('s_mov_b64 exec, s[30:31]')
        for k in range(k0, k0+4): a(f'v_and_b32 v{ad[k % NR]}, s28, v{R1(k)}')
        for k in range(k0, k0+4): a(f'ds_add_rtn_u32 v{rr[k % NR]}, v{ad[k % NR]}, v3')
        if k0 == 96: a('s_mov_b64 exec, -1')
    def scat(k0, c):
        t = [28, 29, 30, 31]
        if oob:
            for e in range(4): a(f'v_mad_u32_u16 v{t[e]}, v{R1(k0+e)}, 8, s32')
            for e in range(4): a(f'ds_write_b64 v{t[e]}, v[{R0(k0+e)}:{R1(k0+e)}]')
            return
        if c == 0:
            for e in range(4): a(f'v_cmp_gt_u32_sdwa s[{54+2*e}:{55+2*e}], s29, v{R1(k0+e)} src0_sel:DWORD src1_sel:WORD_0')
            for e in range(4): a(f'v_lshlrev_b32_sdwa v{t[e]}, 3, v{R1(k0+e)} {SD} src1_sel:WORD_0')
        else:
            for e in range(4): a(f'v_subrev_u32_sdwa v{t[e]}, s32, v{R1(k0+e)} {SD} src1_sel:WORD_0')
            for e in range(4): a(f'v_cmp_gt_u32 s[{54+2*e}:{55+2*e}], s29, v{t[e]}')
            for e in range(4): a(f'v_lshlrev_b32 v{t[e]}, 3, v{t[e]}')
        for e in range(4):
            a(f's_mov_b64 exec, s[{54+2*e}:{55+2*e}]')
            a(f'ds_write_b64 v{t[e]}, v[{R0(k0+e)}:{R1(k0+e)}] offset:{SB}')
        a('s_mov_b64 exec, -1')
    a(f's_mov_b32 s32, {SB}')
    issue(0)
    for k0 in range(0, 100, 4):
        if k0 + 4 < 100: issue(k0 + 4)
        a(f's_waitcnt lgkmcnt({4 if k0 in (0, 96) else 8})')
        for k in range(k0, k0+4): a(f'v_bfi_b32 v{R1(k)}, s28, v{rr[k % NR]}, v{R1(k)}')
        scat(k0, 0)
    a(f'''
    v_add_u32 v5, {SB}, v1
    v_add_u32 v6, {SB + 65536}, v1
    v_add_u32 v7, {SB + 131072}, v1
    v_mul_u32_u24 v4, 12, v0
    ''')
    NI = -(-H // 1024); RD = 4
    held = []
    def store(c, it, q): a(f's_mov_b32 s50, {c*H*6 + it*6144}\nbuffer_store_dwordx3 v[{q}:{q+2}], v4, s[16:19], s50 offen')
    for c in range(3):
        if c:
            a(f's_mov_b32 s32, {(SB - 8*c*H) & 0xffffffff if oob else c*H}')
            for n, k0 in enumerate(range(0, 100, 4)):
                scat(k0, c)
                if n % 2 == 0 and held: store(c - 1, *held.pop(0))
            assert not held
        a('s_waitcnt lgkmcnt(0)\ns_barrier')
        stamp()
        prefetch(3 + c)
        a(f's_min_u32 s18, s34, {(c+1)*H*6}')
        nh = hold if c < 2 else 0
        def QD(it):
            if it >= NI - nh: return [8, 12, 16, 20, 24, 32, 36, 40, 44, 48, 52][11 - nh + it - (NI - nh)] if False else HR[it - (NI - nh)]
            return RR[it % len(RR)]
        HR = [8, 12, 16, 20, 24, 32, 36, 40, 44, 48, 52][:nh]
        RR = [x for x in [52, 48, 44, 40, 36, 32]]
        def rd(it):
            a(f'ds_read_b128 v[{QD(it)}:{QD(it)+3}], v{5 + it // 8} offset:{(it % 8)*8192}')
        for it in range(RD-1): rd(it)
        for it in range(NI):
            if it + RD - 1 < NI: rd(it + RD - 1)
            q = QD(it)
            a(f's_waitcnt lgkmcnt({min(RD-1, NI-1-it)})\nv_perm_b32 v{q+1}, v{q+3}, v{q+1}, s33')
            if it >= NI - nh: held.append((it, q))
            else: store(c, it, q)
        if c < 2: a('s_barrier')
        stamp()
    if 'stamp' in diag:
        a('s_waitcnt vmcnt(0)'); stamp(); stamp(True)
    a.label('A_end')
    a('s_endpgm')
    return a.l
```

```python
from common import *
NAME = 'agg_kernel'
CNT = 0; FLAG = 1600; DNA = 1604; DNR = 1608; L0 = 1664; L1 = L0 + 196*256
PST = L1 + 196*256; PIMM = 65280
NXMAX = {10: 15, 11: 7, 12: 7}[NPH]
TSZ = (NXMAX + 8*NPH + 1)*32
TBL = PST + 8*2048
SPILL = TBL + 8*TSZ; SPCAP = 128
DST = SPILL + 8*SPCAP*8
WST = DST + 8192
LDS = 163840
assert WST + 2048 <= LDS and TSZ <= 4096
NV = 25
MAXSW = 20000
T0, T1, vLB, vHALF, vKC, vPR, vX = range(7)
W = 8; G = 16; LP = 28; U = 30; XB = 38; Q0 = 42; Q1 = 46; vP2 = 50
PK = lambda v: [7, 52, 53, 54, 55][v % 5]
vF = Q1
ACC = lambda v: 56 + 8*v
sEPC, sEP24, sNM32, sLIM, sF8, sEPA, sFFFF = 16, 17, 18, 19, 20, 21, 22
sROW, sNX, sU, sUE, sSP, sRES, sDID = 23, 24, 25, 26, 27, 28, 29
sLIVE, sSKIP, sSW, sD, sSPB, sFAR, sST = 30, 32, 34, 35, 48, 49, 51
sTG = 72
sKF = 70
sNG = 52
sW24 = 50
MK = lambda v: 60 + 2*(v % 5)
INC = 8 + (1 << 16)
def sp(r): return f's[{r}:{r+1}]'
def vp(r, n=2): return f'v[{r}:{r+n-1}]'
SD = 'dst_sel:DWORD dst_unused:UNUSED_PAD src0_sel:DWORD'

class Seq:
    def __init__(s): s.o = []
    def __call__(s, t, tag=None, maybe=False, drop=False):
        ls = [x.strip() for x in t.strip('\n').split('\n') if x.strip()]
        for x in ls:
            c = 'v' if x.startswith('buffer_') else ('l' if x.startswith('ds_') else None)
            s.o.append(dict(t='' if drop else x, c=c, tag=tag if c else None, maybe=maybe or drop))
    def wait(s, c, tags): s.o.append(dict(t=None, c=None, w=c, tags=tags))
    def resolve(s, a, cyclic):
        n = len(s.o)
        for k, x in enumerate(s.o):
            if x['t'] is not None: a(x['t']); continue
            cnt = 0; found = None; j = k - 1; steps = 0
            while steps < n:
                if j < 0:
                    if not cyclic: break
                    j += n
                y = s.o[j]
                if y['c'] == x['w']:
                    if y['tag'] in x['tags']: found = cnt; break
                    if not y['maybe']: cnt += 1
                j -= 1; steps += 1
            assert found is not None, x
            a(f's_waitcnt vmcnt({min(found,63)})' if x['w'] == 'v' else f's_waitcnt lgkmcnt({min(found,15)})')

def gen(APOS=(1,3,5,7,9,11,13,15), DA=2, recflags='', prio=(0,12), wpf=False, EDM=2, diag=()):
    NS = 8
    a = Asm(); stubs = Asm(); late = []
    uid = [0]
    def nid(): uid[0] += 1; return uid[0]
    def stamp(q, real=False, T0=T0, T1=T1):
        if 'stamp' not in diag: return
        q(f'''
        {'s_memrealtime' if real else 's_memtime'} s[96:97]
        s_waitcnt lgkmcnt(0)
        v_mov_b32 v{T0}, s96
        v_mov_b32 v{T1}, 0
        s_mov_b64 exec, 1
        ''')
        t = f'buffer_store_dword v{T0}, v{T1}, s[92:95], s98 offen'
        q(t, maybe=True) if isinstance(q, Seq) else q(t)
        q('s_mov_b64 exec, -1\ns_add_u32 s98, s98, 4')
    def k2(q, extra='0'):
        q(f'''
        v_mbcnt_lo_u32_b32 v{T0}, -1, 0
        v_mbcnt_hi_u32_b32 v{T0}, -1, v{T0}
        v_and_b32 v{T0}, 15, v{T0}
        v_lshl_add_u32 v{T0}, v{T0}, 1, {extra}
        v_mov_b32_sdwa v{vX}, v{T0} dst_sel:WORD_1 dst_unused:UNUSED_PRESERVE src0_sel:WORD_0
        ''')
    def L1s(q, sig, p2=vP2):
        k = nid()
        q(f'''
        s_add_u32 s36, s{sU}, {32*sig}
        s_cmp_ge_u32 s36, s{sFAR}
        s_cbranch_scc1 B_far{k}
        B_farb{k}:
        v_add_u32_sdwa v{T0}, s36, v{vX} {SD} src1_sel:WORD_0
        ''')
        q(f'ds_read_b64 {vp(p2)}, v{T0}', tag=('ent', sig))
        stubs(f'''
        B_far{k}:
        s_cmp_ge_u32 s36, s{sUE}
        s_cselect_b32 s36, s{sFAR}, s36
        s_cbranch_scc1 B_farb{k}
        s_sub_u32 s37, s36, s{sROW}
        s_lshr_b32 s37, s37, 5
        s_mov_b32 s38, {-(-(1 << 32) // (8*NPH))}
        s_mul_hi_u32 s37, s37, s38
        s_mul_i32 s38, s37, {8*NPH*32}
        s_sub_u32 s36, s36, s38
        s_lshl_b32 s37, s37, 5
        ''')
        k2(stubs, 's37'); stubs(f's_branch B_farb{k}')
    def L2s(q, sig, quad, m0, m1, p2=vP2, wait=True):
        if wait: q.wait('l', [('ent', sig)])
        q(f'''
        v_cmp_lt_u32_sdwa {sp(m1)}, v{vX}, v{p2+1} src0_sel:WORD_1 src1_sel:WORD_1
        v_mad_u32_u16 v{T0}, v{vX}, 6, v{p2} op_sel:[1,0,0,0]
        v_cmpx_lt_u32_sdwa {sp(m0)}, v{vX}, v{p2+1} src0_sel:WORD_1 src1_sel:WORD_0
        ''')
        q(f'buffer_load_dwordx3 {vp(quad,3)}, v{T0}, s[8:11], 0 offen {recflags}', tag=('rec', sig))
        q('s_mov_b64 exec, -1')
        if sig == 0: q(f's_andn2_b64 {sp(m0)}, {sp(m0)}, {sp(sSKIP)}')
    def COS(q, quad, h, filler):
        q(f'''
        v_cvt_f32_bf16_sdwa v{T0}, v{quad+1} dst_sel:DWORD dst_unused:UNUSED_PAD src0_sel:WORD_{h}
        v_pk_mul_f32 {vp(T0)}, {vp(T0)}, {sp(sKF)} op_sel_hi:[0,1]
        ''')
        if 'nofract' not in diag: q(f'v_fract_f32 v{T0}, v{T0}\nv_fract_f32 v{T1}, v{T1}')
        q(f'''
        v_cos_f32 v{T0}, v{T0}
        v_cos_f32 v{T1}, v{T1}
        {filler}
        v_cvt_pk_bf16_f32 v{quad+1+2*h}, v{T0}, v{T1}
        ''')
    def A1(q, sig, quad, masks, par, live=True, p2=vP2):
        ex = lambda h: f's_and_b64 exec, {sp(masks[h])}, {sp(sLIVE)}' if live else f's_mov_b64 exec, {sp(masks[h])}'
        if live:
            COS(q, quad, 1, f'v_mov_b32 v{p2+1}, {INC}'); COS(q, quad, 0, ex(0))
        else: q(f'v_mov_b32 v{p2+1}, {INC}\n{ex(0)}')
        for h in range(2):
            if h: q(ex(1))
            q(f'v_lshlrev_b32_sdwa v{T0}, 2, v{quad+2*h} {SD} src1_sel:BYTE_0')
            q(f'ds_add_rtn_u32 v{p2+h}, v{T0}, v{p2+1} offset:{CNT+800*par}', tag=('ret', sig))
        q('s_mov_b64 exec, -1')
    def A2(q, sig, quad, masks, par, live=True, p2=vP2):
        for h in range(2):
            k = nid()
            q(f's_and_b64 exec, {sp(masks[h])}, {sp(sLIVE)}' if live else f's_mov_b64 exec, {sp(masks[h])}')
            q(f'''
            v_lshlrev_b32_sdwa v{T0}, 8, v{quad+2*h} {SD} src1_sel:BYTE_0
            v_cmp_le_u32 vcc, s{sLIM}, v{p2+h}
            v_and_or_b32 v{T0}, v{p2+h}, s{sF8}, v{T0}
            s_cbranch_vccnz B_sp{k}
            B_spb{k}:
            v_mov_b32_sdwa v{quad+2*h}, s{sEPA} dst_sel:BYTE_0 dst_unused:UNUSED_PRESERVE src0_sel:BYTE_0
            ''')
            q(f'ds_write_b64 v{T0}, {vp(quad+2*h)} offset:{[L0, L1][par]}')
            stubs(f'''
            B_sp{k}:
            v_mbcnt_lo_u32_b32 v{T1}, vcc_lo, 0
            v_mbcnt_hi_u32_b32 v{T1}, vcc_hi, v{T1}
            s_lshl_b32 s36, s{sSP}, 3
            s_add_u32 s36, s36, s{sSPB}
            v_lshl_add_u32 v{T1}, v{T1}, 3, s36
            s_bcnt1_i32_b64 s37, vcc
            s_add_u32 s{sSP}, s{sSP}, s37
            s_andn2_b64 s[36:37], exec, vcc
            s_mov_b64 exec, vcc
            ds_write_b64 v{T1}, {vp(quad+2*h)}
            s_mov_b64 exec, s[36:37]
            ''')
            if live:
                stubs(f'''
                s_cmp_le_u32 s{sSP}, {SPCAP-64}
                s_cbranch_scc1 B_spb{k}
                s_mov_b64 {sp(sLIVE)}, 0
                s_add_u32 s{sRES}, s{sU}, {32*sig + 16*(h+1)}
                ''')
            stubs(f's_branch B_spb{k}')
        q('s_mov_b64 exec, -1')
    def signal(q, off):
        q(f'''
        s_mov_b64 exec, 1
        v_mov_b32 v{T0}, 0
        v_mov_b32 v{T1}, 1
        ds_add_u32 v{T0}, v{T1} offset:{off}
        s_mov_b64 exec, -1
        ''')
    def peek(q, off): q(f'v_mov_b32 v{T0}, 0'); q(f'ds_read_b32 v{vP2}, v{T0} offset:{off}', tag='peek')
    def check(q, off):
        k = nid()
        q(f'''
        v_readfirstlane_b32 s36, v{vP2}
        s_cmp_lt_u32 s36, s{sTG}
        s_cbranch_scc1 B_sy{k}
        B_syb{k}:
        ''')
        stubs(f'''
        B_sy{k}:
        v_mov_b32 v{T0}, 0
        ds_read_b32 v{vP2}, v{T0} offset:{off}
        s_waitcnt lgkmcnt(0)
        v_readfirstlane_b32 s36, v{vP2}
        ''')
        if MAXSW < 1 << 30: stubs(f's_add_u32 s73, s73, 1\ns_cmp_gt_u32 s73, 2000000\ns_cbranch_scc1 B_syb{k}')
        stubs(f'''
        s_cmp_lt_u32 s36, s{sTG}
        s_cbranch_scc1 B_sy{k}
        s_branch B_syb{k}
        ''')
    def reads_done(q, par):
        k = nid()
        q(f's_add_u32 s36, s{sSW}, 1\ns_and_b32 s36, s36, 126\ns_cbranch_scc0 B_cl{k}\nB_clb{k}:')
        stubs(f'B_cl{k}:\nv_mov_b32 v{Q1}, s{sEPC}\nv_mov_b32 v{Q1+1}, 0')
        for v in range(24): stubs(f'ds_write_b64 v{vLB}, {vp(Q1)} offset:{[L0, L1][par] + v*256}')
        stubs(f's_cmp_lg_u32 s{sW24}, 0\ns_cbranch_scc1 B_clb{k}')
        stubs(f'ds_write_b64 v{vLB}, {vp(Q1)} offset:{[L0, L1][par] + 24*256}\ns_branch B_clb{k}')
        signal(q, DNR)
    def sweep_end(q, par, adv=True):
        k = nid()
        if par is not None: peek(q, DNA)
        if adv: q(f'''
        s_add_u32 s{sU}, s{sU}, {32*NS}
        s_mov_b64 {sp(sSKIP)}, 0
        s_cmp_eq_u32 s{sLIVE}, 0
        s_cbranch_scc1 B_st{k}
        B_stb{k}:
        ''')
        q(f's_add_u32 s{sSW}, s{sSW}, 1')
        if par is not None: q(f's_add_u32 s{sTG}, s{sTG}, 8')
        q(f'''
        s_mov_b32 s{sEPC}, s{sEPA}
        s_add_u32 s{sEPA}, s{sEPA}, 1
        s_and_b32 s{sEPA}, s{sEPA}, 255
        s_or_b32 s{sEP24}, s{sEPC}, s{sW24}
        s_waitcnt lgkmcnt(0)
        ''')
        if 'prebar' in diag: stamp(q)
        if par is None: q('s_barrier')
        else: check(q, DNA)
        stamp(q)
        if not adv: return
        stubs(f'''
        B_st{k}:
        s_and_b32 s{sU}, s{sRES}, 0xffffffe0
        s_bitcmp1_b32 s{sRES}, 4
        s_cselect_b64 {sp(sSKIP)}, -1, 0
        s_mov_b64 {sp(sLIVE)}, -1
        ''')
        k2(stubs); stubs(f's_branch B_stb{k}')
    def reappend(q, par):
        k = nid()
        q(f's_cmp_lg_u32 s{sSP}, 0\ns_cbranch_scc1 B_ra{k}\nB_rab{k}:')
        r = Seq()
        r(f'''
        B_ra{k}:
        v_mbcnt_lo_u32_b32 v{T0}, -1, 0
        v_mbcnt_hi_u32_b32 v{T0}, -1, v{T0}
        v_lshl_add_u32 v{T1}, v{T0}, 3, s{sSPB}
        ds_read_b64 {vp(Q0)}, v{T1}
        ds_read_b64 {vp(Q0+2)}, v{T1} offset:512
        v_cmp_gt_u32 s[44:45], s{sSP}, v{T0}
        v_add_u32 v{T0}, 64, v{T0}
        v_cmp_gt_u32 s[46:47], s{sSP}, v{T0}
        s_mov_b32 s{sSP}, 0
        s_waitcnt lgkmcnt(0)
        ''')
        A1(r, 99, Q0, (44, 46), par, live=False)
        r('s_waitcnt lgkmcnt(0)')
        A2(r, 99, Q0, (44, 46), par, live=False)
        r(f'''
        s_waitcnt lgkmcnt(0)
        s_cmp_le_u32 s{sSP}, {SPCAP-64}
        s_cbranch_scc1 B_rab{k}
        s_mov_b64 {sp(sLIVE)}, 0
        s_and_b32 s36, s{sSKIP}, 16
        s_add_u32 s{sRES}, s{sU}, s36
        s_branch B_rab{k}
        ''')
        tmp = Asm(); r.resolve(tmp, False); late.append(tmp.l)

    a.label(NAME)
    a(f'''
    s_cmp_ge_u32 s2, {NCU}
    s_cbranch_scc1 B_end
    s_load_dwordx2 s[56:57], s[0:1], {K_WS}
    s_load_dwordx2 s[54:55], s[0:1], {K_M}
    s_load_dwordx2 s[58:59], s[0:1], {K_DIST}
    s_load_dwordx4 s[60:63], s[0:1], {K_CEN}
    s_load_dwordx8 s[64:71], s[0:1], {K_WRBF}
    s_and_b32 s{sD}, s2, 7
    s_lshl_b32 s{sD}, s{sD}, 5
    s_lshr_b32 s36, s2, 3
    s_add_u32 s{sD}, s{sD}, s36
    v_lshrrev_b32 v34, 6, v0
    v_mul_u32_u24 v35, 24, v0
    v_lshlrev_b32 v36, 2, v0                     ; x*4
    v_readfirstlane_b32 s3, v34
    s_mul_i32 s36, s{sD}, {256*48}
    v_and_b32 v37, 63, v0                        ; lane
    v_and_b32 v38, 15, v0                        ; n
    v_lshrrev_b32 v39, 5, v37                    ; h
    v_lshrrev_b32 v33, 4, v37                    ; q
    v_lshlrev_b32 v41, 1, v38
    v_lshl_add_u32 v40, v39, 8, v41              ; (8h)*32 + n*2
    s_mul_i32 s{sST}, s3, 25
    s_sub_i32 s37, s3, 4
    s_max_i32 s37, s37, 0
    s_sub_u32 s{sST}, s{sST}, s37
    s_mul_i32 s37, s{sD}, {EPC*2}
    s_and_b32 s38, s37, 2
    s_sub_u32 s37, s37, s38
    s_waitcnt lgkmcnt(0)
    ''')
    srd(a, 12, 's56', 's57', TAB_OFF, TAB_BYTES)
    a(f'''
    s_load_dword s99, s[62:63], 0
    buffer_load_dwordx4 v[46:49], v35, s[12:15], s36 offen
    buffer_load_dwordx2 v[50:51], v35, s[12:15], s36 offen offset:16
    ''')
    srd(a, 76, 's68', 's69', None, 512)
    for k in range(8): a(f'buffer_load_ushort v{72+k}, v40, s[76:79], 0 offen offset:{32*k}')
    srd(a, 80, 's58', 's59', 's37', EPC*2 + 2)
    a(f'''
    s_lshl_b32 s36, s{sST}, 5
    v_lshlrev_b32 v32, 4, v37                    ; lane*16
    v_mov_b32 v96, v32
    buffer_load_dwordx4 v[80:83], v32, s[80:83], s36 offen
    v_lshl_add_u32 v42, v33, 7, v41              ; (4q)*32 + n*2
    v_lshl_add_u32 v43, v33, 6, v41              ; (2q)*32 + n*2
    v_lshlrev_b32 v44, 2, v33                    ; (2q)*2
    ''')
    R = 84
    srd(a, 84, 's70', 's71', None, 512)
    for k in range(4): a(f'buffer_load_ushort v{R+k}, v42, s[84:87], 0 offen offset:{32*k}')
    srd(a, 88, 's66', 's67', None, 512)
    for k in range(4): a(f'buffer_load_ushort v{R+4+k}, v42, s[88:91], 0 offen offset:{32*k}')
    srd(a, 72, 's64', 's65', None, 256)
    for k in range(2): a(f'buffer_load_ushort v{R+8+k}, v43, s[72:75], 0 offen offset:{32*k}')
    srd(a, 44, 's60', 's61', None, 16)
    for k in range(2): a(f'buffer_load_ushort v{R+10+k}, v44, s[44:47], 0 offen offset:{2*k}')
    srd(a, 4, 's54', 's55', None, 0 if 'nogather' in diag else E*32)
    srd(a, 8, 's56', 's57', None, REC_BYTES + 16)
    if 'stamp' in diag:
        srd(a, 92, 's56', 's57', 200000000, 1 << 20)
        a('s_lshl_b32 s98, s2, 3\ns_add_u32 s98, s98, s3\ns_lshl_b32 s98, s98, 8\nv_mov_b32 v42, v0')
        stamp(a, True); stamp(a); a('v_mov_b32 v0, v42')
    a(f'''
    v_lshlrev_b32 v41, 4, v0
    v_mov_b32 v42, 0
    v_mov_b32 v43, 0
    v_mov_b32 v44, 0
    v_mov_b32 v45, 0
    v_add_u32 v52, {L0}, v41
    v_add_u32 v53, {L1}, v41
    s_mul_i32 s39, s3, {TSZ}
    s_add_u32 s39, s39, {TBL}
    v_add_u32 v54, s39, v32
    ''')
    for k in range(6): a(f'ds_write_b128 v52, v[42:45] offset:{k*8192}')
    for k in range(TSZ // 1024): a(f'ds_write_b128 v54, v[42:45] offset:{k*1024}')
    if TSZ % 1024: a(f's_mov_b64 exec, {(1 << (TSZ % 1024 // 16)) - 1}\nds_write_b128 v54, v[42:45] offset:{TSZ // 1024 * 1024}\ns_mov_b64 exec, -1')
    assert L1 - L0 == 6*8192 + 1024 and TBL - L1 == 8*8192 + 1024
    a(f'''
    v_mov_b32 v98, v53
    v_cmp_gt_u32 s[14:15], 64, v0
    s_mov_b64 exec, s[14:15]
    ds_write_b128 v52, v[42:45] offset:{6*8192}
    s_mov_b64 exec, -1
    v_and_b32 v52, 31, v0
    v_lshlrev_b32 v52, 3, v52
    v_cmp_gt_u32 vcc, 200, v0
    s_mov_b64 exec, vcc
    ds_write_b32 v36, v52 offset:{CNT}
    ds_write_b32 v36, v52 offset:{CNT+800}
    ds_write_b96 v42, v[42:44] offset:{FLAG}
    s_mov_b64 exec, -1
    s_mov_b32 s{sEPC}, 0
    s_mov_b32 s{sEPA}, 1
    s_mov_b32 s{sNM32}, 0xffffffe0
    s_mov_b32 s{sLIM}, {32 << 16}
    s_mov_b32 s{sF8}, 0xf8
    s_mov_b32 s{sFFFF}, 0xffff
    s_mov_b32 s{sSP}, 0
    s_mov_b32 s{sRES}, 0
    s_mov_b64 {sp(sLIVE)}, -1
    s_mov_b64 {sp(sSKIP)}, 0
    s_mov_b32 s{sSW}, 0
    s_mul_i32 s{sSPB}, s3, {SPCAP*8}
    s_add_u32 s{sSPB}, s{sSPB}, {SPILL}
    s_cmp_lt_u32 s3, 4
    s_cselect_b32 s37, 25, 24
    s_cselect_b32 s{sW24}, 0, 0x100
    s_bfm_b32 s{sNG}, s37, 0
    s_mov_b32 s{sNG+1}, 0
    s_lshl_b32 s36, s{sST}, 8
    v_and_b32 v52, 31, v37
    v_lshl_add_u32 v{vLB}, v52, 3, s36
    v_lshlrev_b32 v{vHALF}, 4, v39
    s_lshl_b32 s36, s3, 11
    s_add_u32 s36, s36, {PST}
    s_sub_u32 s37, s36, {PIMM}
    v_lshl_add_u32 v53, v39, 10, s37
    v_bfe_u32 v54, v52, 2, 2
    v_lshl_add_u32 v53, v54, 8, v53              ; + q*256
    v_lshrrev_b32 v54, 4, v52
    v_lshl_add_u32 v53, v54, 3, v53              ; + j*8
    v_and_b32 v54, 3, v52
    v_lshl_add_u32 v{vKC}, v54, 1, v53           ; + r*2
    v_lshl_add_u32 v54, v33, 8, s36
    v_lshl_add_u32 v{vPR}, v38, 4, v54           ; P base + q*256 + e*16
    v_lshlrev_b32 v{vX}, 3, v33
    v_lshl_or_b32 v{vX}, v38, 17, v{vX}          ; q*8 | (2e << 16)
    s_add_u32 s{sROW}, s39, {NXMAX*32}
    s_add_u32 s{sFAR}, s{sROW}, {8*NPH*32}
    v_and_b32 v53, 1, v33
    v_cmp_eq_u32 s[56:57], 0, v53
    v_lshrrev_b32 v52, 1, v0                     ; tile j
    s_mov_b32 s36, {TSTRIDE}
    v_mul_u32_u24 v52, s36, v52
    v_and_b32 v53, 1, v0                         ; hh
    v_mul_u32_u24 v54, {6*256}, v53
    v_lshrrev_b32 v55, 1, v37
    v_lshl_add_u32 v54, v55, 3, v54
    v_add_u32 v54, s{sROW}, v54
    v_mov_b32 v55, 0
    s_mov_b32 s{sNX}, 0
    ''')
    if 'pro' in diag: stamp(a, T0=56, T1=57)
    a('s_waitcnt vmcnt(21)')
    if 'pro' in diag: stamp(a, T0=56, T1=57)
    for k in range(6):
        e = 46 + k
        a(f'''
        v_lshrrev_b32 v35, 16, v{e}
        v_mad_u32_u16 v34, v{e}, 6, v52
        v_max_u32 v36, 1, v35
        v_subrev_u32 v36, 1, v36
        v_cmp_lt_u32 vcc, 32, v35
        v_max_u32 v55, v55, v35
        v_lshl_or_b32 v35, v36, 16, v35
        ''')
        if 6 + k >= NPH: a('s_mov_b32 exec_lo, 0x55555555\ns_mov_b32 exec_hi, 0x55555555')
        a(f'ds_write_b64 v54, v[34:35] offset:{k*256}')
        if 6 + k >= NPH: a('s_mov_b64 exec, -1')
        a(f's_cbranch_vccnz B_x{k}\nB_xb{k}:')
        stubs(f'''
        B_x{k}:
        v_mbcnt_lo_u32_b32 v36, vcc_lo, 0
        v_mbcnt_hi_u32_b32 v36, vcc_hi, v36
        s_bcnt1_i32_b64 s37, vcc
        v_add_u32 v36, s{sNX}, v36
        s_add_u32 s{sNX}, s{sNX}, s37
        s_cmp_gt_u32 s{sNX}, {4*NXMAX}
        s_cbranch_scc1 B_xb{k}
        v_add_u32 v34, 192, v34
        v_subrev_u32 v35, {32 + (32 << 16)}, v35
        s_sub_u32 s37, s{sROW}, 8
        v_lshlrev_b32 v36, 3, v36
        v_sub_u32 v36, s37, v36
        s_mov_b64 exec, vcc
        ds_write_b64 v36, v[34:35]
        s_mov_b64 exec, -1
        s_branch B_xb{k}
        ''')
    for sh in ('row_shr:1 row_mask:0xf', 'row_shr:2 row_mask:0xf', 'row_shr:4 row_mask:0xf', 'row_shr:8 row_mask:0xf', 'row_bcast:15 row_mask:0xa', 'row_bcast:31 row_mask:0xc'):
        a(f'v_max_u32_dpp v55, v55, v55 {sh} bank_mask:0xf')
    a(f'''
    v_readlane_b32 s36, v55, 63
    s_add_u32 s37, s{sNX}, 3
    s_lshr_b32 s37, s37, 2
    s_lshl_b32 s37, s37, 5
    s_sub_u32 s{sU}, s{sROW}, s37
    s_mov_b32 s{sUE}, s{sFAR}
    s_sub_u32 s13, s{sROW}, 32
    s_cmp_gt_u32 s{sNX}, {4*NXMAX}
    s_cselect_b32 s37, 65, 0
    s_max_u32 s37, s37, s36
    s_cmp_gt_u32 s37, 64
    s_cbranch_scc0 B_nofb
    s_mov_b32 s{sU}, s{sROW}
    s_add_u32 s36, s36, 31
    s_lshr_b32 s36, s36, 5
    s_mul_i32 s36, s36, {8*NPH*32}
    s_add_u32 s{sUE}, s{sROW}, s36
    s_mov_b32 s13, s{sFAR}
    B_nofb:
    s_waitcnt lgkmcnt(0)
    s_lshl_b32 s36, s99, 16
    s_and_b32 s37, s99, 0xffff0000
    v_mov_b32 v56, s36
    v_mov_b32 v57, s37
    v_mul_f32 v56, 0.15915494, v56
    v_mul_f32 v57, 0.15915494, v57
    v_readfirstlane_b32 s{sKF}, v56
    v_readfirstlane_b32 s{sKF+1}, v57
    s_barrier
    ''')
    stamp(a)
    import struct, math
    SQ = struct.unpack('<I', struct.pack('<f', math.sqrt(10*math.log2(math.e))))[0]
    def operands(q):
        for k in range(4):
            q(f'''
            v_lshl_or_b32 v{72+2*k}, v{73+2*k}, 16, v{72+2*k}
            v_cndmask_b32 v{W+4+k}, v{72+2*k}, 0, s[56:57]
            v_cndmask_b32 v{W+k}, 0, v{72+2*k}, s[56:57]
            ''')
        q(f'''
        s_lshl_b32 s36, s3, 10
        s_add_u32 s36, s36, {DST}
        v_add_u32 v97, s36, v96
        ds_write_b128 v97, v[80:83]
        v_lshl_or_b32 v72, v{R+1}, 16, v{R}          ; w_up
        v_lshl_or_b32 v73, v{R+3}, 16, v{R+2}
        v_lshl_or_b32 v74, v{R+6}, 16, v{R+4}
        v_lshl_or_b32 v75, v{R+7}, 16, v{R+5}
        v_lshl_or_b32 v76, v{R+9}, 16, v{R+8}        ; w_rbf
        v_mov_b32 v77, 0
        v_lshlrev_b32 v78, 16, v{R+10}
        v_lshlrev_b32 v79, 16, v{R+11}
        v_mul_f32 v78, {(SQ | 0x80000000):#x}, v78   ; -center*s
        v_mul_f32 v79, {(SQ | 0x80000000):#x}, v79
        v_add_u32 v97, {WST}, v96
        ds_write_b128 v97, v[72:75]
        ds_write_b128 v97, v[76:79] offset:1024
        ''')
        for k in range(100, 104): q(f'v_mov_b32 v{k}, 0')
        for k in range(8):
            q(f'ds_write_b128 v98, v[100:103] offset:{k*8192}')
            for r in range(104 + 19*k, 104 + 19*k + 19): q(f'v_mov_b32 v{r}, 0')
        q(f'v_add_u32 v98, {8*8192}, v98\ns_mov_b64 exec, s[14:15]\nds_write_b128 v98, v[100:103]\ns_mov_b64 exec, -1')
    q = Seq()
    q(f'B_xl:\ns_add_u32 s36, s{sU}, 32\ns_cmp_ge_u32 s36, s{sROW}\ns_cbranch_scc1 B_xe')
    L1s(q, 0); L2s(q, 0, Q0, 40, 42)
    q('s_waitcnt vmcnt(0)'); A1(q, 0, Q0, (40, 42), 0)
    q('s_waitcnt lgkmcnt(0)'); A2(q, 0, Q0, (40, 42), 0)
    q(f's_cmp_eq_u32 s{sLIVE}, 0\ns_cbranch_scc1 B_pz\ns_add_u32 s{sU}, s{sU}, 32\ns_branch B_xl\nB_xe:')
    q(f's_mov_b32 s{sU}, s{sROW}')
    SL = list(range(-1, NS))
    pq = lambda s: 20 + 4*s
    pm = lambda s: (40, 42) if s < 0 else ((58 + 4*s, 60 + 4*s) if s < 3 else (60 + 4*s, 62 + 4*s))
    pp = lambda s: 54 + 2*(s + 1)
    for s in SL:
        q(f's_add_u32 s36, s{sU}, {32*s}' if s >= 0 else 's_mov_b32 s36, s13')
        q(f'v_add_u32_sdwa v{T0}, s36, v{vX} {SD} src1_sel:WORD_0')
        q(f'ds_read_b64 {vp(pp(s))}, v{T0}', tag=('ent', s))
    for s in SL: L2s(q, s, pq(s), *pm(s), pp(s))
    if 'pro' in diag: stamp(q)
    q(f's_waitcnt vmcnt({len(SL)})')
    operands(q)
    if 'pro' in diag: stamp(q)
    TP = lambda s, h: 72 + 4*((s + 1) % 3) + 2*h
    def cos2(s):
        for st in range(5):
            for h in (1, 0):
                t = TP(s, h)
                q([f'v_cvt_f32_bf16_sdwa v{t}, v{pq(s)+1} dst_sel:DWORD dst_unused:UNUSED_PAD src0_sel:WORD_{h}',
                   f'v_pk_mul_f32 {vp(t)}, {vp(t)}, {sp(sKF)} op_sel_hi:[0,1]',
                   f'v_fract_f32 v{t}, v{t}\nv_fract_f32 v{t+1}, v{t+1}',
                   f'v_cos_f32 v{t}, v{t}\nv_cos_f32 v{t+1}, v{t+1}',
                   f'v_cvt_pk_bf16_f32 v{pq(s)+1+2*h}, v{t}, v{t+1}'][st])
    for s in SL:
        q.wait('v', [('rec', s)])
        A1(q, s, pq(s), pm(s), 0, live=False, p2=pp(s))
        cos2(s)
    for s in SL:
        q.wait('l', [('ret', s)]); A2(q, s, pq(s), pm(s), 0, p2=pp(s))
    if 'pro' in diag: stamp(q)
    q('s_branch B_pe\nB_pz:')
    operands(q)
    q(f'B_pe:\ns_mov_b64 s[72:73], 0')
    for v in range(5): q(f'v_mov_b32 v{PK(v)}, v{vKC}\ns_mov_b64 {sp(MK(v))}, 0')
    for k in list(range(G, G+12)) + list(range(U, U+16)) + list(range(56, 100)): q(f'v_mov_b32 v{k}, 0')
    sweep_end(q, None)
    q.resolve(a, False)

    MF = 'v_mfma_f32_16x16x32_bf16'
    GS = lambda v: Q0 if v == 24 else G + 4*(v % 3)
    def setprio(q, v, tag):
        if v in prio:
            if prio.index(v) % 2 == 0:
                q(f's_cmp_eq_u32 s{sW24}, 0\ns_cbranch_scc1 B_pr{tag}_{v}\ns_setprio 1\nB_pr{tag}_{v}:')
            else: q('s_setprio 0')
    def step(q, par, v, LB, visit=True):
        av = (v - 3) % NV; ap = par if v >= 3 else 1-par
        bv = (v - 4) % NV
        if v: q.wait('l', [('pr', par, v - 1)])
        q(f'{MF} {vp(ACC(bv),4)}, {vp(XB,4)}, {vp(U,4)}, {vp(ACC(bv),4)}', drop='nomfma' in diag)
        q(f'{MF} {vp(ACC(bv)+4,4)}, {vp(XB,4)}, {vp(U+4,4)}, {vp(ACC(bv)+4,4)}', drop='nomfma' in diag)
        if not visit and v == 3: return
        if visit:
            if v == 0: q.wait('l', [('lst', par, 0)])
            q(f'''
            v_bfe_u32 v{T0}, v{LP}, 8, 4
            v_and_b32 v{T1}, s{sFFFF}, v{PK(av)}
            v_lshl_add_u32 v{PK(v)}, v{T0}, 4, v{vKC}
            v_and_b32 v{T0}, s{sFFFF}, v{PK(bv)}
            v_cmpx_eq_u32_sdwa {sp(MK(v))}, s{sEP24 if v == 24 else sEPC}, v{LP} src0_sel:DWORD src1_sel:BYTE_0
            v_lshrrev_b32 v{LP}, 7, v{LP}
            v_lshrrev_b32_sdwa v{PK(v)}, v{vHALF}, v{LP+1} dst_sel:WORD_1 dst_unused:UNUSED_PRESERVE src0_sel:DWORD src1_sel:DWORD
            v_and_or_b32 v{LP}, v{LP}, s{sNM32}, v{vHALF}
            ''')
        else: q(f'v_and_b32 v{T1}, s{sFFFF}, v{PK(av)}\nv_and_b32 v{T0}, s{sFFFF}, v{PK(bv)}')
        q.wait('v', [('gat', ap, av)])
        q(f'{MF} {vp(U,4)}, {vp(GS(av),4)}, {vp(W,4)}, 0', drop='nomfma' in diag)
        q(f'{MF} {vp(U+4,4)}, {vp(GS(av),4)}, {vp(W+4,4)}, 0', drop='nomfma' in diag)
        if visit: q(f'buffer_load_dwordx4 {vp(GS(v),4)}, v{LP}, s[4:7], 0 offen', tag=('gat', par, v), drop='nodma' in diag)
        q(f's_mov_b64 exec, {sp(MK(bv))}')
        q(f'ds_write_b16_d16_hi v{T0}, v{vHALF} offset:{PIMM}', drop='nopw' in diag)
        q(f's_mov_b64 exec, {sp(MK(av))}')
        q(f'ds_write_b16_d16_hi v{T1}, v{PK(av)} offset:{PIMM}', drop='nopw' in diag)
        q('s_mov_b64 exec, -1')
        if visit and v + 1 < NV: q(f'ds_read_b64 {vp(LP)}, v{vLB} offset:{LB + (v+1)*256}', tag=('lst', par, v+1))
        for k in range(4): q(f'v_cvt_pk_bf16_f32 v{XB+k}, v{U+2*k}, v{U+2*k+1}')
        q(f'ds_read_b128 {vp(U,4)}, v{vPR}', drop='nopr' in diag)
        q(f'ds_read_b128 {vp(U+4,4)}, v{vPR} offset:1024', tag=('pr', par, v), drop='nopr' in diag)
        if visit and v == 23:
            for k in range(4): q(f'v_mov_b32 v{Q0+k}, 0')
    def cntreset(q, off):
        q(f'''
        v_mbcnt_lo_u32_b32 v{T0}, -1, 0
        v_mbcnt_hi_u32_b32 v{T0}, -1, v{T0}
        v_add_u32 v{T0}, s{sST}, v{T0}
        v_and_b32 v{T1}, 31, v{T0}
        v_lshl_add_u32 v{T0}, v{T0}, 2, {off}
        v_lshlrev_b32 v{T1}, 3, v{T1}
        s_mov_b64 exec, {sp(sNG)}
        ds_write_b32 v{T0}, v{T1} offset:{CNT}
        ''')
    q = Seq()
    for par in range(2):
        LB = [L0, L1][par]
        q(f'B_loop{par}:')
        if MAXSW < 1 << 30: q(f's_cmp_gt_u32 s{sSW}, {MAXSW}\ns_cbranch_scc1 B_epi')
        q(f'''
        s_cmp_lt_u32 s{sU}, s{sUE}
        s_cselect_b32 s36, 1, s{sSP}
        s_cmp_eq_u32 s36, 0
        s_cbranch_scc1 B_free{par}
        ''')
        q(f'ds_read_b64 {vp(LP)}, v{vLB} offset:{LB}', tag=('lst', par, 0))
        for v in range(NV):
            setprio(q, v, par)
            step(q, par, v, LB)
            qd = lambda s: Q1 - 4*(s % 2); mk = lambda s: (40 + 4*(s % 2), 42 + 4*(s % 2))
            for s in range(NS):
                if v == APOS[s] + DA + 1: q.wait('l', [('ret', s)]); A2(q, s, qd(s), mk(s), 1-par)
            if v == APOS[-1] + DA + 1: signal(q, DNA)
            if v == NV - 2: reads_done(q, par)
            for s in range(NS):
                if v == APOS[s]: L2s(q, s, qd(s), *mk(s))
            if v == 1: peek(q, DNR)
            if v == 2: q.wait('l', ['peek']); check(q, DNR); reappend(q, 1-par)
            for s in range(NS):
                if v == APOS[s] - 1: L1s(q, s)
                if v == APOS[s] + DA: q.wait('v', [('rec', s)]); A1(q, s, qd(s), mk(s), 1-par)
            if v == 0:
                if par: q('s_movk_i32 s36, 800')
                cntreset(q, 's36' if par else '0')
                q(f'''
                s_mov_b64 exec, 1
                v_mov_b32 v{T0}, s{sSW}
                v_mov_b32 v{T1}, 0
                ds_max_u32 v{T1}, v{T0} offset:{FLAG}
                s_mov_b64 exec, -1
                ''')
        sweep_end(q, par)
    q('s_branch B_loop0')
    q.resolve(a, True)
    q = Seq()
    q(f'''
    B_free1:
    s_mov_b32 s{sDID}, {L1 - L0}
    s_branch B_free
    B_free0:
    s_mov_b32 s{sDID}, 0
    B_free:
    v_mov_b32 v{T0}, 0
    v_add_u32 v{vLB}, s{sDID}, v{vLB}
    ds_read_b32 v{vF}, v{T0} offset:{FLAG}
    ''')
    q(f'ds_read_b64 {vp(LP)}, v{vLB} offset:{L0}', tag=('lst', 0, 0))
    q(f'''
    s_waitcnt lgkmcnt(1)
    v_readfirstlane_b32 s36, v{vF}
    s_add_u32 s36, s36, 1
    s_cmp_lt_u32 s36, s{sSW}
    s_cbranch_scc1 B_epi
    ''')
    for v in (22, 23, 24): q('buffer_x', tag=('gat', 1, v)); q.o[-1]['t'] = ''
    for v in range(NV):
        setprio(q, v, 'f')
        step(q, 0, v, L0)
        if v == 0:
            q(f's_cmp_lg_u32 s{sDID}, 0\ns_cselect_b32 s36, 800, 0')
            cntreset(q, 's36'); signal(q, DNA)
        if v == NV - 2: reads_done(q, 0)
    sweep_end(q, 0, adv=False)
    q(f'''
    v_subrev_u32 v{vLB}, s{sDID}, v{vLB}
    s_cmp_lg_u32 s{sDID}, 0
    s_cbranch_scc1 B_loop0
    s_branch B_loop1
    ''')
    q.resolve(a, False)

    a.label('B_epi')
    stamp(a)
    a(f'''
    s_setprio 0
    s_load_dwordx2 s[72:73], s[0:1], {K_OUT}
    s_mul_i32 s36, s{sD}, {EPC*32}
    v_mbcnt_lo_u32_b32 v{vLB}, -1, 0
    v_mbcnt_hi_u32_b32 v{vLB}, -1, v{vLB}        ; lane
    s_lshl_b32 s38, s{sST}, 9
    s_lshl_b32 s39, s{sST}, 8
    s_add_u32 s40, s39, {L1}                     ; piece 1
    s_add_u32 s39, s39, {L0}                     ; piece 0
    s_mul_i32 s41, s3, {TSZ}
    s_add_u32 s41, s41, {TBL}                    ; piece 2
    v_lshlrev_b32 v{vX}, 4, v{vLB}
    ''')
    srd(a, 12, 's54', 's55', 's36', EPC*32)
    piece = lambda pr: (39 + min(pr // 6, 2), (pr % 6)*1024)
    q = Seq()
    for v in (22, 23, 24): q('buffer_x', tag=('gat', 1, v)); q.o[-1]['t'] = ''
    q('s_waitcnt lgkmcnt(0)')
    def mdma(pr):
        sg, off = piece(pr)
        q(f's_add_u32 m0, s{sg}, {off}\ns_add_u32 s42, s38, {pr*1024}')
        q(f'buffer_load_dwordx4 v{vX}, s[12:15], s42 offen lds', tag=('m', pr))
    for v in range(4):
        for pr in range(EDM*v, EDM*v + EDM): mdma(pr)
        step(q, 0, v, L0, visit=False)
    t = Asm(); srd(t, 8, 's72', 's73', 's36', EPC*32); q('\n'.join(t.l))
    if 'epi' in diag: stamp(q)
    WU, W0, W1, WR, CS, RB, TT, DD, MM, A0, VV = 8, 10, 12, 14, 0, 16, 20, 24, 28, 32, 48
    TMP = 7
    q(f'''
    v_lshrrev_b32 v3, 4, v{vLB}                  ; q
    v_and_b32 v2, 15, v{vLB}                     ; e
    v_add_u32 v5, {WST}, v{vX}
    ds_read_b128 v[44:47], v5
    ds_read_b128 v[48:51], v5 offset:1024
    s_mul_i32 s37, s{sD}, {EPC*2}
    s_and_b32 s37, s37, 2
    s_lshl_b32 s42, s3, 10
    s_add_u32 s37, s37, s42
    s_add_u32 s37, s37, {DST}
    v_lshl_add_u32 v5, v2, 1, s37
    v_lshlrev_b32 v4, 5, v2
    v_lshl_add_u32 v4, v3, 3, v4                 ; e*32 + q*8
    v_add_u32 v2, s39, v4
    v_add_u32 v3, s40, v4
    v_add_u32 v4, s41, v4
    s_mov_b32 s43, 0xffff0000
    s_mov_b32 s44, {SQ:#x}
    s_mov_b32 s45, {SQ:#x}
    v_mov_b32 v{RB+1}, 0
    v_mov_b32 v{RB+3}, 0
    v_mov_b32 v{W0+1}, 0
    v_mov_b32 v{W1+1}, 0
    v_mov_b32 v{WR+1}, 0
    ''')
    def drd(p):
        for h in range(2): q(f'ds_read_u16 v{DD + 2*(p % 2) + h}, v5 offset:{32*(2*p+h)}', tag=('d', p))
    drd(0); drd(1)
    q(f'''
    s_waitcnt lgkmcnt(4)
    v_mov_b32 v{WU}, v44
    v_mov_b32 v{WU+1}, v45
    v_mov_b32 v{W0}, v46
    v_mov_b32 v{W1}, v47
    v_mov_b32 v{WR}, v48
    v_mov_b32 v{CS}, v50
    v_mov_b32 v{CS+1}, v51
    ''')
    MF = 'v_mfma_f32_16x16x16_bf16'
    HS = lambda p: (0, 1) if p < 12 else (0,)
    VR = lambda p, h: VV + 4*h
    lds = lambda v: (2 + min(v // 12, 2), (v % 12)*512)
    def E1(p):
        d = DD + 2*(p % 2); H2 = HS(p)
        q.wait('l', [('d', p)])
        for h in H2: q(f'v_lshlrev_b32 v{d+h}, 16, v{d+h}')
        for h in H2: q(f'v_pk_fma_f32 {vp(TT+2*h)}, {vp(d)}, s[44:45], {vp(CS)} op_sel:[{h},0,0] op_sel_hi:[{h},0,1]')
        if p + 2 <= 12: drd(p + 2)
        for h in H2: q(f'v_pk_mul_f32 {vp(TT+2*h)}, {vp(TT+2*h)}, {vp(TT+2*h)} neg_lo:[0,1] neg_hi:[0,1]')
        for h in H2: q(f'v_exp_f32 v{TT+2*h}, v{TT+2*h}\nv_exp_f32 v{TT+2*h+1}, v{TT+2*h+1}')
        if 4*EDM + p < 13: mdma(4*EDM + p)
        for h in H2: q(f'v_cvt_pk_bf16_f32 v{RB+2*h}, v{TT+2*h}, v{TT+2*h+1}')
        for h in H2:
            q(f'{MF} {vp(A0+8*h,4)}, {vp(W0)}, {vp(RB+2*h)}, 0')
            q(f'{MF} {vp(A0+8*h+4,4)}, {vp(W1)}, {vp(RB+2*h)}, 0')
    def E2(p):
        H2 = HS(p)
        q.wait('v', [('m', p)])
        for h in H2:
            b, off = lds(2*p + h)
            q(f'ds_read_b64 {vp(MM + 2*h)}, v{b} offset:{off}', tag=('mm', p))
        for k in (0, 2):
            for h in H2: q(f'v_pk_mul_f32 {vp(ACC(2*p+h)+k)}, {vp(ACC(2*p+h)+k)}, {vp(A0+8*h+k)}')
        for k in (0, 2):
            for h in H2: q(f'v_pk_fma_f32 {vp(ACC(2*p+h)+k)}, {vp(ACC(2*p+h)+4+k)}, {vp(A0+8*h+4+k)}, {vp(ACC(2*p+h)+k)}')
        for k in (0, 1):
            for h in H2: q(f'v_cvt_pk_bf16_f32 v{ACC(2*p+h)+k}, v{ACC(2*p+h)+2*k}, v{ACC(2*p+h)+2*k+1}')
        for h in H2: q(f'{MF} {vp(VR(p,h),4)}, {vp(WR)}, {vp(RB+2*h)}, 0')
        for h in H2: q(f'{MF} {vp(ACC(2*p+h)+4,4)}, {vp(WU)}, {vp(ACC(2*p+h))}, 0')
    def E3(p):
        H2 = HS(p)
        q.wait('l', [('mm', p)])
        for k in (0, 1):
            for h in H2:
                q(f'v_lshlrev_b32 v{ACC(2*p+h)+2*k}, 16, v{MM+2*h+k}\nv_and_b32 v{ACC(2*p+h)+2*k+1}, s43, v{MM+2*h+k}')
        for k in (0, 2):
            for h in H2: q(f'v_pk_fma_f32 {vp(ACC(2*p+h)+k)}, {vp(ACC(2*p+h)+4+k)}, {vp(VR(p,h)+k)}, {vp(ACC(2*p+h)+k)}')
        for k in (0, 1):
            for h in H2: q(f'v_cvt_pk_bf16_f32 v{ACC(2*p+h)+k}, v{ACC(2*p+h)+2*k}, v{ACC(2*p+h)+2*k+1}')
        sg, off2 = piece(p)
        q(f's_add_u32 s42, s{sg}, {off2}\nv_add_u32 v{TMP}, s42, v{vX}')
        for h in H2:
            b, off = lds(2*p + h)
            q(f'ds_write_b64 v{b}, {vp(ACC(2*p+h))} offset:{off}')
        q(f'ds_read_b128 {vp(ACC(min(2*p+1, 24)),4)}, v{TMP}', tag=('o', p))
    def ST(pr):
        A = ACC(min(2*pr + 1, 24))
        q(f's_add_u32 s42, s38, {pr*1024}')
        q.wait('l', [('o', pr)])
        q(f'buffer_store_dwordx4 {vp(A,4)}, v{vX}, s[8:11], s42 offen')
    E1(0)
    if 'epi' in diag: stamp(q, T0=TT, T1=TT+1)
    for p in range(12):
        E2(p); E1(p + 1)
        if p >= 1: ST(p - 1)
        E3(p)
    ST(11)
    if 'epi' in diag: stamp(q, T0=TT, T1=TT+1)
    q('s_cmp_ge_u32 s3, 4\ns_cbranch_scc1 B_last')
    E2(12); E3(12)
    q('s_mov_b32 exec_hi, 0')
    ST(12)
    q.resolve(a, False)
    a.label('B_last')
    if 'stamp' in diag:
        a('s_mov_b64 exec, -1\ns_waitcnt vmcnt(0)')
        stamp(a); stamp(a, True)
    a.label('B_end')
    a('s_endpgm')
    out = a.l + stubs.l
    for l in late: out += l
    return out
```

```python
E = 800000; T = 12800000; NCU = 256; TILE = 50000; EPC = 3125
TSTRIDE = 318720
REC_BYTES = NCU*TSTRIDE
import os
NPH = int(os.environ.get('NPH', 12)); LASTW = float(os.environ.get('LASTW', 0.5))
MPH = int((NPH - 1 + LASTW)*2**32) // E
TAB_OFF = REC_BYTES + 256
TAB_BYTES = 65536*48
K_M, K_II, K_IO, K_DIST, K_ANG, K_CEN, K_FREQ, K_WRBF, K_WSBF, K_WD, K_WU, K_OUT, K_DBG, K_WS = [8*i for i in range(14)]
class Asm:
    def __init__(s): s.l = []
    def __call__(s, t):
        for x in t.strip('\n').split('\n'):
            x = x.strip()
            if not x: continue
            s.l.append(x if x.endswith(':') else '    ' + x)
    def label(s, n): s.l.append(n + ':')
def srd(a, r, lo, hi, off_s, size):
    if off_s is None:
        a(f's_mov_b32 s{r}, {lo}\ns_mov_b32 s{r+1}, {hi}')
    else:
        a(f's_add_u32 s{r}, {lo}, {off_s}\ns_addc_u32 s{r+1}, {hi}, 0')
    a(f's_mov_b32 s{r+2}, {size}\ns_mov_b32 s{r+3}, 0x20000')
KD = """.section .rodata,"a"
.p2align 6
.amdhsa_kernel {name}
  .amdhsa_next_free_vgpr {vgpr}
  .amdhsa_next_free_sgpr {sgpr}
  .amdhsa_accum_offset {acc}
  .amdhsa_group_segment_fixed_size 0
  .amdhsa_kernarg_size 112
  .amdhsa_user_sgpr_count 2
  .amdhsa_user_sgpr_kernarg_segment_ptr 1
  .amdhsa_system_sgpr_workgroup_id_x 1
.end_amdhsa_kernel
.text
"""
def head(name):
    return f""".globl {name}
.p2align 8
.type {name},@function
"""

def tile_start(j): return (TILE*j)//64*64
def range_start(d): return (EPC*d)//4*4
TMAX = 50048
FNAME = 'gather_scatter__molecular_angular_gemnet__graph_kernel'
```

```python
from common import *
import os
NAME = 'bin_kernel'
LDS = 163840
H = int(os.environ.get('HH', 17728)); SB = 12416; WT = 12352
assert 3*H >= TMAX + 256*NPH and (TMAX + 256*NPH)*6 <= TSTRIDE
SD = 'dst_sel:DWORD dst_unused:UNUSED_PAD src0_sel:DWORD'
def gen(PF=8, ldf='nt', mpf=140, stag=0, oob=True, hold=10, stf='sc1', late=False, diag=()):
    a = Asm()
    def stamp(real=False):
        if 'stamp' not in diag: return
        a(f'''
        {'s_memrealtime' if real else 's_memtime'} s[76:77]
        s_waitcnt lgkmcnt(0)
        v_mov_b32 v30, s76
        v_mov_b32 v31, 0
        s_mov_b64 exec, 1
        buffer_store_dword v30, v31, s[72:75], s78 offen
        s_mov_b64 exec, -1
        s_add_u32 s78, s78, 4
        ''')
    NGR = 25
    RG = lambda q: 56 + 8*q
    R0 = lambda k: 56 + 2*k
    R1 = lambda k: 57 + 2*k
    TA = lambda q: 56 - 2*PF + 2*(q % PF)
    a.label(NAME)
    a(f'''
    s_cmp_ge_u32 s2, {NCU}
    s_cbranch_scc1 A_end
    s_load_dwordx4 s[36:39], s[0:1], {K_II}
    s_load_dwordx2 s[40:41], s[0:1], {K_ANG}
    s_load_dwordx2 s[44:45], s[0:1], {K_WS}
    s_load_dwordx2 s[42:43], s[0:1], {K_M}
    s_load_dwordx2 s[62:63], s[0:1], {K_DIST}
    s_mul_i32 s47, s2, {TILE}
    s_add_u32 s49, s47, {TILE}
    s_and_b32 s47, s47, 0xffffffc0
    s_and_b32 s49, s49, 0xffffffc0
    s_sub_u32 s49, s49, s47
    s_lshl_b32 s46, s47, 2
    s_lshl_b32 s47, s47, 1
    s_lshl_b32 s50, s49, 2
    s_lshl_b32 s51, s49, 1
    s_mul_i32 s48, s2, {TSTRIDE}
    v_lshlrev_b32 v1, 4, v0                      ; x*16
    v_lshlrev_b32 v2, 3, v0                      ; x*8
    v_mov_b32 v3, 1
    v_mov_b32 v4, 0
    v_mov_b32 v5, 0
    v_mov_b32 v6, 0
    v_mov_b32 v7, 0
    s_waitcnt lgkmcnt(0)
    ''')
    srd(a, 4, 's36', 's37', 's46', 's50')
    srd(a, 8, 's38', 's39', 's46', 's50')
    srd(a, 12, 's40', 's41', 's47', 's51')
    def loads(q):
        a(f's_mov_b32 s50, {q*8192}\ns_mov_b32 s51, {q*4096}')
        a(f'buffer_load_dwordx4 v[{RG(q)}:{RG(q)+3}], v1, s[4:7], s50 offen {ldf}')
        a(f'buffer_load_dwordx4 v[{RG(q)+4}:{RG(q)+7}], v1, s[8:11], s50 offen {ldf}')
        a(f'buffer_load_dwordx2 v[{TA(q)}:{TA(q)+1}], v2, s[12:15], s51 offen {ldf}')
    if 'stamp' in diag:
        srd(a, 72, 's44', 's45', 200000000, 1 << 20)
        a('v_lshrrev_b32 v8, 6, v0\ns_nop 1\nv_readfirstlane_b32 s3, v8\ns_lshl_b32 s78, s2, 3\ns_add_u32 s78, s78, s3\ns_lshl_b32 s78, s78, 8')
        stamp(True); stamp(); a('s_waitcnt vmcnt(0)')
    def slow(tag):
        a(f's_bitcmp1_b32 s2, 3\ns_cbranch_scc0 A_f{tag}\ns_waitcnt vmcnt(0)\nA_f{tag}:')
    for q in range(PF):
        loads(q)
        if q < stag: slow(q)
    for k in range(2): a(f'ds_write_b128 v1, v[4:7] offset:{k*8192}')
    srd(a, 16, 's44', 's45', 's48', H*6)
    srd(a, 20, 's44', 's45', TAB_OFF, TAB_BYTES)
    srd(a, 64, 's42', 's43', None, E*32)
    srd(a, 68, 's62', 's63', None, E*2)
    a(f'''
    s_mov_b32 s24, 1374390
    s_mov_b32 s25, {EPC}
    s_mov_b32 s26, {MPH}
    s_mov_b32 s27, 0xffff0000
    s_mov_b32 s28, 0xffff
    s_mov_b32 s29, {H}
    s_mov_b32 s33, 0x07060302
    s_sub_u32 s32, s49, {24*2048}
    s_lshr_b32 s32, s32, 2
    v_cmp_gt_u32 s[30:31], s32, v0
    v_lshrrev_b32 v8, 6, v0
    s_waitcnt lgkmcnt(0)
    v_readfirstlane_b32 s3, v8
    s_barrier
    ''')
    def prefetch(pos):
        if mpf != pos: return
        a(f'''
        v_lshlrev_b32 v9, 7, v0
        s_mul_i32 s50, s2, {EPC*32}
        s_and_b32 s50, s50, 0xffffff80
        s_add_u32 s51, s50, 65536
        s_mul_i32 s52, s2, {EPC*2}
        s_and_b32 s52, s52, 0xffffff80
        s_mov_b32 m0, 160000
        s_nop 0
        buffer_load_dword v9, s[64:67], s50 offen lds
        v_cmp_gt_u32 vcc, {(EPC*32 + 127 + 127)//128 - 512}, v0
        s_mov_b64 exec, vcc
        buffer_load_dword v9, s[64:67], s51 offen lds
        s_mov_b64 exec, -1
        v_cmp_gt_u32 vcc, 50, v0
        s_mov_b64 exec, vcc
        buffer_load_dword v9, s[68:71], s52 offen lds
        s_mov_b64 exec, -1
        ''')
    for q in range(NGR):
        issued = min(NGR, q + PF)
        a(f's_waitcnt vmcnt({3*(issued - q - 1)})')
        if q == NGR-1: a('s_mov_b64 exec, s[30:31]')
        td = [12, 13, 14, 15]; tp = [16, 17, 18, 19]; tl = [20, 21, 22, 23]
        I = lambda e: RG(q) + e; O = lambda e: RG(q) + 4 + e
        for e in range(4): a(f'v_or_b32 v{td[e]}, 3, v{O(e)}')
        for e in range(4): a(f'v_mul_hi_u32_u24 v{tp[e]}, s26, v{I(e)}')
        for e in range(4): a(f'v_mul_hi_u32_u24 v{td[e]}, s24, v{td[e]}')
        for e in range(4): a(f'v_mul_u32_u24 v{tl[e]}, s25, v{td[e]}')
        for e in range(4): a(f'v_and_b32 v{tl[e]}, -4, v{tl[e]}')
        for e in range(4): a(f'v_sub_u32 v{tl[e]}, v{O(e)}, v{tl[e]}')
        for e in range(4): a(f'v_lshl_or_b32 v{tp[e]}, v{tp[e]}, 8, v{td[e]}')
        for e in range(4): a(f'v_lshlrev_b32 v{tp[e]}, 2, v{tp[e]}')
        for e in range(4): a(f'v_and_b32 v{td[e]}, 15, v{tl[e]}')
        for e in range(4):
            a(f'ds_add_u32 v{tp[e]}, v3')
            a(f'v_lshrrev_b32 v{tl[e]}, 4, v{tl[e]}')
            a(f'v_lshl_or_b32 v{td[e]}, v{I(e)}, 4, v{td[e]}')
        for e in range(4):
            k = 4*q + e
            a(f'v_lshl_or_b32 v{R0(k)}, v{td[e]}, 8, v{tl[e]}')
            if e % 2 == 0: a(f'v_lshl_or_b32 v{R1(k)}, v{TA(q)+e//2}, 16, v{tp[e]}')
            else: a(f'v_and_or_b32 v{R1(k)}, v{TA(q)+e//2}, s27, v{tp[e]}')
        if q + PF < NGR: loads(q + PF)
    a('s_mov_b64 exec, -1')
    prefetch(1)
    a('s_waitcnt lgkmcnt(0)')
    stamp()
    a('s_barrier')
    stamp()
    C = 12; Q = 28; PB = 40
    a('v_mul_u32_u24 v11, 24, v0')
    for k in range(3): a(f'ds_read_b64 v[{C+2*k}:{C+2*k+1}], v11 offset:{8*k}')
    a('s_waitcnt lgkmcnt(0)')
    for k in range(6): a(f'v_and_b32 v{PB+k}, 1, v{C+k}')
    for k in range(6): a(f'v_add_u32 v{C+k}, v{C+k}, v{PB+k}')
    for k in range(1, 6): a(f'v_add_u32 v{C+k}, v{C+k}, v{C+k-1}')
    a(f'v_mov_b32 v46, v{C+5}')
    for sh in ('row_shr:1 row_mask:0xf', 'row_shr:2 row_mask:0xf', 'row_shr:4 row_mask:0xf', 'row_shr:8 row_mask:0xf', 'row_bcast:15 row_mask:0xa', 'row_bcast:31 row_mask:0xc'):
        a(f'v_add_u32_dpp v46, v46, v46 {sh} bank_mask:0xf')
    a(f'''
    v_readlane_b32 s35, v46, 63
    s_lshl_b32 s50, s3, 2
    s_add_u32 s50, s50, {WT}
    v_mov_b32 v47, s50
    v_mov_b32 v48, s35
    s_mov_b64 exec, 1
    ds_write_b32 v47, v48
    s_mov_b64 exec, -1
    v_sub_u32 v46, v46, v{C+5}
    v_mov_b32 v47, {WT}
    s_waitcnt lgkmcnt(0)
    s_barrier
    ds_read_b128 v[48:51], v47
    ds_read_b128 v[52:55], v47 offset:16
    s_mov_b32 s35, 0
    s_mov_b32 s34, 0
    s_waitcnt lgkmcnt(0)
    ''')
    for w in range(8):
        a(f'v_readfirstlane_b32 s50, v{48+w}\ns_add_u32 s34, s34, s50\ns_cmp_eq_u32 s3, {w+1}\ns_cselect_b32 s35, s34, s35')
    a(f'v_add_u32 v{Q}, s35, v46')
    for k in range(1, 7): a(f'v_add_u32 v{Q+k}, v{Q}, v{C+k-1}')
    if not late:
        for k in range(6): a(f'v_lshl_or_b32 v{Q+k}, v{PB+k}, 16, v{Q+k}')
    for k in range(3): a(f'ds_write_b64 v11, v[{Q+2*k}:{Q+2*k+1}] offset:{8*k}')
    if late:
        a('s_mul_i32 s34, s34, 6\ns_waitcnt lgkmcnt(0)\ns_barrier')
    else:
        a(f'''
    v_cmp_eq_u32 vcc, 511, v0
    s_mov_b64 exec, vcc
    ds_write_b32 v11, v{Q+6} offset:24
    s_mov_b64 exec, -1
    s_mul_i32 s34, s34, 6
    v_and_b32 v45, 255, v0                       ; d
    v_lshrrev_b32 v46, 8, v0                     ; hh
    v_mul_u32_u24 v47, {6*1024}, v46
    v_lshl_add_u32 v47, v45, 2, v47
    v_mul_u32_u24 v45, {256*48}, v45
    v_mad_u32_u24 v45, v46, 24, v45
    s_mul_i32 s50, s2, 48
    s_waitcnt lgkmcnt(0)
    s_barrier
    ''')
        for k in range(6): a(f'ds_read_b32 v{C+k}, v47 offset:{1024*k}\nds_read_u16 v{Q+k}, v47 offset:{1024*k+4}')
        a('s_waitcnt lgkmcnt(0)\ns_barrier')
        for k in range(6): a(f'v_sub_u32_sdwa v{Q+k}, v{Q+k}, v{C+k} {SD} src1_sel:WORD_0')
        for k in range(6): a(f'v_sub_u32_sdwa v{Q+k}, v{Q+k}, v{C+k} {SD} src1_sel:WORD_1')
        for k in range(6): a(f'v_perm_b32 v{48+k}, v{Q+k}, v{C+k}, s{79}'.replace('s79', 's53'))
        a.l.insert(len(a.l) - 18, '    s_mov_b32 s53, 0x05040100')
        a('''
    buffer_store_dwordx4 v[48:51], v45, s[20:23], s50 offen
    buffer_store_dwordx2 v[52:53], v45, s[20:23], s50 offen offset:16
    ''')
    stamp()
    prefetch(2)
    NR = 8
    ad = [12 + k for k in range(NR)]; rr = [20 + k for k in range(NR)]
    def issue(k0):
        if k0 == 96:
            for k in range(k0, k0+4): a(f'v_mov_b32 v{rr[k % NR]}, -1')
            a('s_mov_b64 exec, s[30:31]')
        for k in range(k0, k0+4): a(f'v_and_b32 v{ad[k % NR]}, s28, v{R1(k)}')
        for k in range(k0, k0+4): a(f'ds_add_rtn_u32 v{rr[k % NR]}, v{ad[k % NR]}, v3')
        if k0 == 96: a('s_mov_b64 exec, -1')
    def scat(k0, c):
        t = [28, 29, 30, 31]
        if oob:
            for e in range(4): a(f'v_mad_u32_u16 v{t[e]}, v{R1(k0+e)}, 8, s32')
            for e in range(4): a(f'ds_write_b64 v{t[e]}, v[{R0(k0+e)}:{R1(k0+e)}]')
            return
        if c == 0:
            for e in range(4): a(f'v_cmp_gt_u32_sdwa s[{54+2*e}:{55+2*e}], s29, v{R1(k0+e)} src0_sel:DWORD src1_sel:WORD_0')
            for e in range(4): a(f'v_lshlrev_b32_sdwa v{t[e]}, 3, v{R1(k0+e)} {SD} src1_sel:WORD_0')
        else:
            for e in range(4): a(f'v_subrev_u32_sdwa v{t[e]}, s32, v{R1(k0+e)} {SD} src1_sel:WORD_0')
            for e in range(4): a(f'v_cmp_gt_u32 s[{54+2*e}:{55+2*e}], s29, v{t[e]}')
            for e in range(4): a(f'v_lshlrev_b32 v{t[e]}, 3, v{t[e]}')
        for e in range(4):
            a(f's_mov_b64 exec, s[{54+2*e}:{55+2*e}]')
            a(f'ds_write_b64 v{t[e]}, v[{R0(k0+e)}:{R1(k0+e)}] offset:{SB}')
        a('s_mov_b64 exec, -1')
    a(f's_mov_b32 s32, {SB}')
    issue(0)
    for k0 in range(0, 100, 4):
        if k0 + 4 < 100: issue(k0 + 4)
        a(f's_waitcnt lgkmcnt({4 if k0 in (0, 96) else 8})')
        for k in range(k0, k0+4): a(f'v_bfi_b32 v{R1(k)}, s28, v{rr[k % NR]}, v{R1(k)}')
        scat(k0, 0)
        prefetch(100 + k0)
    a(f'''
    v_add_u32 v5, {SB}, v1
    v_add_u32 v6, {SB + 65536}, v1
    v_add_u32 v7, {SB + 131072}, v1
    v_mul_u32_u24 v4, 12, v0
    ''')
    NI = -(-H // 1024); RD = 4
    held = []
    def store(c, it, q): a(f's_mov_b32 s50, {c*H*6 + it*6144}\nbuffer_store_dwordx3 v[{q}:{q+2}], v4, s[16:19], s50 offen {stf}')
    for c in range(3):
        if c:
            a(f's_mov_b32 s32, {(SB - 8*c*H) & 0xffffffff if oob else c*H}')
            for n, k0 in enumerate(range(0, 100, 4)):
                scat(k0, c)
                if n % 2 == 0 and held: store(c - 1, *held.pop(0))
            assert not held
        a('s_waitcnt lgkmcnt(0)\ns_barrier')
        stamp()
        prefetch(3 + c)
        if late and c == 0:
            a(f'''
            v_and_b32 v28, 255, v0                       ; d
            v_lshrrev_b32 v29, 8, v0                     ; hh
            v_mul_u32_u24 v30, {6*1024}, v29
            v_lshl_add_u32 v30, v28, 2, v30
            v_mul_u32_u24 v28, {256*48}, v28
            v_mad_u32_u24 v28, v29, 24, v28
            v_max_u32 v31, 4, v30
            v_subrev_u32 v31, 4, v31
            s_mul_i32 s51, s2, 48
            ''')
            for k in range(6): a(f'ds_read_b32 v{8+k}, v30 offset:{1024*k}\nds_read_b32 v{14+k}, v{31 if k == 0 else 30} offset:{max(1024*k - 4, 0)}')
            a('v_cmp_ne_u32 vcc, 0, v0\ns_waitcnt lgkmcnt(0)\nv_cndmask_b32 v14, 0, v14, vcc')
            for k in range(6): a(f'v_add_u32 v{14+k}, 1, v{14+k}')
            for k in range(6): a(f'v_and_b32 v{14+k}, -2, v{14+k}')
            for k in range(6): a(f'v_sub_u32 v{8+k}, v{8+k}, v{14+k}')
            for k in range(6): a(f'v_lshl_or_b32 v{20+k}, v{8+k}, 16, v{14+k}')
            a('buffer_store_dwordx4 v[20:23], v28, s[20:23], s51 offen\nbuffer_store_dwordx2 v[24:25], v28, s[20:23], s51 offen offset:16')
        a(f's_min_u32 s18, s34, {(c+1)*H*6}')
        nh = hold if c < 2 else 0
        def QD(it):
            if it >= NI - nh: return [8, 12, 16, 20, 24, 32, 36, 40, 44, 48, 52][11 - nh + it - (NI - nh)] if False else HR[it - (NI - nh)]
            return RR[it % len(RR)]
        HR = [8, 12, 16, 20, 24, 32, 36, 40, 44, 48, 52][:nh]
        RR = [x for x in [52, 48, 44, 40, 36, 32]]
        def rd(it):
            a(f'ds_read_b128 v[{QD(it)}:{QD(it)+3}], v{5 + it // 8} offset:{(it % 8)*8192}')
        for it in range(RD-1): rd(it)
        for it in range(NI):
            if it + RD - 1 < NI: rd(it + RD - 1)
            q = QD(it)
            a(f's_waitcnt lgkmcnt({min(RD-1, NI-1-it)})\nv_perm_b32 v{q+1}, v{q+3}, v{q+1}, s33')
            if it >= NI - nh: held.append((it, q))
            else: store(c, it, q)
        if c < 2: a('s_barrier')
        stamp()
    if 'stamp' in diag:
        a('s_waitcnt vmcnt(0)'); stamp(); stamp(True)
    a.label('A_end')
    a('s_endpgm')
    return a.l
```

```python
from common import *
NAME = 'agg_kernel'
CNT = 0; FLAG = 1600; DNA = 1604; DNR = 1608; L0 = 1664; L1 = L0 + 196*256
PST = L1 + 196*256; PIMM = 65280
NXMAX = {10: 15, 11: 7, 12: 7}[NPH]
TSZ = (NXMAX + 8*NPH + 1)*32
TBL = PST + 8*2048
SPILL = TBL + 8*TSZ; SPCAP = 128
DST = SPILL + 8*SPCAP*8
WST = DST + 8192
LDS = 163840
assert WST + 2048 <= LDS and TSZ <= 4096
NV = 25
MAXSW = 20000
T0, T1, vLB, vHALF, vKC, vPR, vX = range(7)
W = 8; G = 16; LP = 28; U = 30; XB = 38; Q0 = 42; Q1 = 46; vP2 = 50
PK = lambda v: [7, 52, 53, 54, 55][v % 5]
vF = Q1
ACC = lambda v: 56 + 8*v
sEPC, sEP24, sNM32, sLIM, sF8, sEPA, sFFFF = 16, 17, 18, 19, 20, 21, 22
sROW, sNX, sU, sUE, sSP, sRES, sDID = 23, 24, 25, 26, 27, 28, 29
sLIVE, sSKIP, sSW, sD, sSPB, sFAR, sST = 30, 32, 34, 35, 48, 49, 51
sR0, sRN = 100, 101
sTG = 72
sKF = 70
sNG = 52
sW24 = 50
MK = lambda v: 60 + 2*(v % 5)
INC = 8 + (1 << 16)
def sp(r): return f's[{r}:{r+1}]'
def vp(r, n=2): return f'v[{r}:{r+n-1}]'
SD = 'dst_sel:DWORD dst_unused:UNUSED_PAD src0_sel:DWORD'

class Seq:
    def __init__(s): s.o = []
    def __call__(s, t, tag=None, maybe=False, drop=False):
        ls = [x.strip() for x in t.strip('\n').split('\n') if x.strip()]
        for x in ls:
            c = 'v' if x.startswith('buffer_') else ('l' if x.startswith('ds_') else None)
            s.o.append(dict(t='' if drop else x, c=c, tag=tag if c else None, maybe=maybe or drop))
    def wait(s, c, tags): s.o.append(dict(t=None, c=None, w=c, tags=tags))
    def resolve(s, a, cyclic):
        n = len(s.o)
        for k, x in enumerate(s.o):
            if x['t'] is not None: a(x['t']); continue
            cnt = 0; found = None; j = k - 1; steps = 0
            while steps < n:
                if j < 0:
                    if not cyclic: break
                    j += n
                y = s.o[j]
                if y['c'] == x['w']:
                    if y['tag'] in x['tags']: found = cnt; break
                    if not y['maybe']: cnt += 1
                j -= 1; steps += 1
            assert found is not None, x
            a(f's_waitcnt vmcnt({min(found,63)})' if x['w'] == 'v' else f's_waitcnt lgkmcnt({min(found,15)})')

def gen(APOS=(1,3,5,7,9,11,13,15), DA=2, recflags='', prio=(0,12), wpf=False, EDM=2, stf='nt', diag=()):
    NS = 8
    a = Asm(); stubs = Asm(); late = []
    uid = [0]
    def nid(): uid[0] += 1; return uid[0]
    def stamp(q, real=False, T0=T0, T1=T1):
        if 'stamp' not in diag: return
        q(f'''
        {'s_memrealtime' if real else 's_memtime'} s[96:97]
        s_waitcnt lgkmcnt(0)
        v_mov_b32 v{T0}, s96
        v_mov_b32 v{T1}, 0
        s_mov_b64 exec, 1
        ''')
        t = f'buffer_store_dword v{T0}, v{T1}, s[92:95], s98 offen'
        q(t, maybe=True) if isinstance(q, Seq) else q(t)
        q('s_mov_b64 exec, -1\ns_add_u32 s98, s98, 4')
    def k2(q, extra='0'):
        q(f'''
        v_mbcnt_lo_u32_b32 v{T0}, -1, 0
        v_mbcnt_hi_u32_b32 v{T0}, -1, v{T0}
        v_and_b32 v{T0}, 15, v{T0}
        v_lshl_add_u32 v{T0}, v{T0}, 1, {extra}
        v_mov_b32_sdwa v{vX}, v{T0} dst_sel:WORD_1 dst_unused:UNUSED_PRESERVE src0_sel:WORD_0
        ''')
    def L1s(q, sig, p2=vP2):
        k = nid()
        q(f'''
        s_add_u32 s36, s{sU}, {32*sig}
        s_cmp_ge_u32 s36, s{sFAR}
        s_cbranch_scc1 B_far{k}
        B_farb{k}:
        v_add_u32_sdwa v{T0}, s36, v{vX} {SD} src1_sel:WORD_0
        ''')
        q(f'ds_read_b64 {vp(p2)}, v{T0}', tag=('ent', sig))
        stubs(f'''
        B_far{k}:
        s_cmp_ge_u32 s36, s{sUE}
        s_cselect_b32 s36, s{sFAR}, s36
        s_cbranch_scc1 B_farb{k}
        s_sub_u32 s37, s36, s{sROW}
        s_lshr_b32 s37, s37, 5
        s_mov_b32 s38, {-(-(1 << 32) // (8*NPH))}
        s_mul_hi_u32 s37, s37, s38
        s_mul_i32 s38, s37, {8*NPH*32}
        s_sub_u32 s36, s36, s38
        s_lshl_b32 s37, s37, 5
        ''')
        k2(stubs, 's37'); stubs(f's_branch B_farb{k}')
    def L2s(q, sig, quad, m0, m1, p2=vP2, wait=True):
        if wait: q.wait('l', [('ent', sig)])
        q(f'''
        v_cmp_lt_u32_sdwa {sp(m1)}, v{vX}, v{p2+1} src0_sel:WORD_1 src1_sel:WORD_1
        v_mad_u32_u16 v{T0}, v{vX}, 6, v{p2} op_sel:[1,0,0,0]
        v_cmpx_lt_u32_sdwa {sp(m0)}, v{vX}, v{p2+1} src0_sel:WORD_1 src1_sel:WORD_0
        ''')
        q(f'buffer_load_dwordx3 {vp(quad,3)}, v{T0}, s[8:11], 0 offen {recflags}', tag=('rec', sig))
        q('s_mov_b64 exec, -1')
        if sig == 0: q(f's_andn2_b64 {sp(m0)}, {sp(m0)}, {sp(sSKIP)}')
    def COS(q, quad, h, filler):
        q(f'''
        v_cvt_f32_bf16_sdwa v{T0}, v{quad+1} dst_sel:DWORD dst_unused:UNUSED_PAD src0_sel:WORD_{h}
        v_pk_mul_f32 {vp(T0)}, {vp(T0)}, {sp(sKF)} op_sel_hi:[0,1]
        ''')
        if 'nofract' not in diag: q(f'v_fract_f32 v{T0}, v{T0}\nv_fract_f32 v{T1}, v{T1}')
        q(f'''
        v_cos_f32 v{T0}, v{T0}
        v_cos_f32 v{T1}, v{T1}
        {filler}
        v_cvt_pk_bf16_f32 v{quad+1+2*h}, v{T0}, v{T1}
        ''')
    def A1(q, sig, quad, masks, par, live=True, p2=vP2):
        ex = lambda h: f's_and_b64 exec, {sp(masks[h])}, {sp(sLIVE)}' if live else f's_mov_b64 exec, {sp(masks[h])}'
        if live:
            COS(q, quad, 1, f'v_mov_b32 v{p2+1}, {INC}'); COS(q, quad, 0, ex(0))
        else: q(f'v_mov_b32 v{p2+1}, {INC}\n{ex(0)}')
        for h in range(2):
            if h: q(ex(1))
            q(f'v_lshlrev_b32_sdwa v{T0}, 2, v{quad+2*h} {SD} src1_sel:BYTE_0')
            q(f'ds_add_rtn_u32 v{p2+h}, v{T0}, v{p2+1} offset:{CNT+800*par}', tag=('ret', sig))
        q('s_mov_b64 exec, -1')
    def A2(q, sig, quad, masks, par, live=True, p2=vP2):
        for h in range(2):
            k = nid()
            q(f's_and_b64 exec, {sp(masks[h])}, {sp(sLIVE)}' if live else f's_mov_b64 exec, {sp(masks[h])}')
            q(f'''
            v_lshlrev_b32_sdwa v{T0}, 8, v{quad+2*h} {SD} src1_sel:BYTE_0
            v_cmp_le_u32 vcc, s{sLIM}, v{p2+h}
            v_and_or_b32 v{T0}, v{p2+h}, s{sF8}, v{T0}
            s_cbranch_vccnz B_sp{k}
            B_spb{k}:
            v_mov_b32_sdwa v{quad+2*h}, s{sEPA} dst_sel:BYTE_0 dst_unused:UNUSED_PRESERVE src0_sel:BYTE_0
            ''')
            q(f'ds_write_b64 v{T0}, {vp(quad+2*h)} offset:{[L0, L1][par]}')
            stubs(f'''
            B_sp{k}:
            v_mbcnt_lo_u32_b32 v{T1}, vcc_lo, 0
            v_mbcnt_hi_u32_b32 v{T1}, vcc_hi, v{T1}
            s_lshl_b32 s36, s{sSP}, 3
            s_add_u32 s36, s36, s{sSPB}
            v_lshl_add_u32 v{T1}, v{T1}, 3, s36
            s_bcnt1_i32_b64 s37, vcc
            s_add_u32 s{sSP}, s{sSP}, s37
            s_andn2_b64 s[36:37], exec, vcc
            s_mov_b64 exec, vcc
            ds_write_b64 v{T1}, {vp(quad+2*h)}
            s_mov_b64 exec, s[36:37]
            ''')
            if live:
                stubs(f'''
                s_cmp_le_u32 s{sSP}, {SPCAP-64}
                s_cbranch_scc1 B_spb{k}
                s_mov_b64 {sp(sLIVE)}, 0
                s_add_u32 s{sRES}, s{sU}, {32*sig + 16*(h+1)}
                ''')
            stubs(f's_branch B_spb{k}')
        q('s_mov_b64 exec, -1')
    def signal(q, off):
        q(f'''
        s_mov_b64 exec, 1
        v_mov_b32 v{T0}, 0
        v_mov_b32 v{T1}, 1
        ds_add_u32 v{T0}, v{T1} offset:{off}
        s_mov_b64 exec, -1
        ''')
    def peek(q, off): q(f'v_mov_b32 v{T0}, 0'); q(f'ds_read_b32 v{vP2}, v{T0} offset:{off}', tag='peek')
    def check(q, off):
        k = nid()
        q(f'''
        v_readfirstlane_b32 s36, v{vP2}
        s_cmp_lt_u32 s36, s{sTG}
        s_cbranch_scc1 B_sy{k}
        B_syb{k}:
        ''')
        stubs(f'''
        B_sy{k}:
        v_mov_b32 v{T0}, 0
        ds_read_b32 v{vP2}, v{T0} offset:{off}
        s_waitcnt lgkmcnt(0)
        v_readfirstlane_b32 s36, v{vP2}
        ''')
        if MAXSW < 1 << 30: stubs(f's_add_u32 s73, s73, 1\ns_cmp_gt_u32 s73, 2000000\ns_cbranch_scc1 B_syb{k}')
        stubs(f'''
        s_cmp_lt_u32 s36, s{sTG}
        s_cbranch_scc1 B_sy{k}
        s_branch B_syb{k}
        ''')
    def reads_done(q, par):
        k = nid()
        q(f's_add_u32 s36, s{sSW}, 1\ns_and_b32 s36, s36, 126\ns_cbranch_scc0 B_cl{k}\nB_clb{k}:')
        stubs(f'B_cl{k}:\nv_mov_b32 v{Q1}, s{sEPC}\nv_mov_b32 v{Q1+1}, 0')
        for v in range(24): stubs(f'ds_write_b64 v{vLB}, {vp(Q1)} offset:{[L0, L1][par] + v*256}')
        stubs(f's_cmp_lg_u32 s{sW24}, 0\ns_cbranch_scc1 B_clb{k}')
        stubs(f'ds_write_b64 v{vLB}, {vp(Q1)} offset:{[L0, L1][par] + 24*256}\ns_branch B_clb{k}')
        signal(q, DNR)
    def sweep_end(q, par, adv=True):
        k = nid()
        if par is not None: peek(q, DNA)
        if adv: q(f'''
        s_add_u32 s{sU}, s{sU}, {32*NS}
        s_mov_b64 {sp(sSKIP)}, 0
        s_cmp_eq_u32 s{sLIVE}, 0
        s_cbranch_scc1 B_st{k}
        B_stb{k}:
        ''')
        q(f's_add_u32 s{sSW}, s{sSW}, 1')
        if par is not None: q(f's_add_u32 s{sTG}, s{sTG}, 8')
        q(f'''
        s_mov_b32 s{sEPC}, s{sEPA}
        s_add_u32 s{sEPA}, s{sEPA}, 1
        s_and_b32 s{sEPA}, s{sEPA}, 255
        s_or_b32 s{sEP24}, s{sEPC}, s{sW24}
        s_waitcnt lgkmcnt(0)
        ''')
        if 'prebar' in diag: stamp(q)
        if par is None: q('s_barrier')
        else: check(q, DNA)
        stamp(q)
        if not adv: return
        stubs(f'''
        B_st{k}:
        s_and_b32 s{sU}, s{sRES}, 0xffffffe0
        s_bitcmp1_b32 s{sRES}, 4
        s_cselect_b64 {sp(sSKIP)}, -1, 0
        s_mov_b64 {sp(sLIVE)}, -1
        ''')
        k2(stubs); stubs(f's_branch B_stb{k}')
    def reappend(q, par):
        k = nid()
        q(f's_cmp_lg_u32 s{sSP}, 0\ns_cbranch_scc1 B_ra{k}\nB_rab{k}:')
        r = Seq()
        r(f'''
        B_ra{k}:
        v_mbcnt_lo_u32_b32 v{T0}, -1, 0
        v_mbcnt_hi_u32_b32 v{T0}, -1, v{T0}
        v_lshl_add_u32 v{T1}, v{T0}, 3, s{sSPB}
        ds_read_b64 {vp(Q0)}, v{T1}
        ds_read_b64 {vp(Q0+2)}, v{T1} offset:512
        v_cmp_gt_u32 s[44:45], s{sSP}, v{T0}
        v_add_u32 v{T0}, 64, v{T0}
        v_cmp_gt_u32 s[46:47], s{sSP}, v{T0}
        s_mov_b32 s{sSP}, 0
        s_waitcnt lgkmcnt(0)
        ''')
        A1(r, 99, Q0, (44, 46), par, live=False)
        r('s_waitcnt lgkmcnt(0)')
        A2(r, 99, Q0, (44, 46), par, live=False)
        r(f'''
        s_waitcnt lgkmcnt(0)
        s_cmp_le_u32 s{sSP}, {SPCAP-64}
        s_cbranch_scc1 B_rab{k}
        s_mov_b64 {sp(sLIVE)}, 0
        s_and_b32 s36, s{sSKIP}, 16
        s_add_u32 s{sRES}, s{sU}, s36
        s_branch B_rab{k}
        ''')
        tmp = Asm(); r.resolve(tmp, False); late.append(tmp.l)

    a.label(NAME)
    a(f'''
    s_cmp_ge_u32 s2, {NCU}
    s_cbranch_scc1 B_end
    s_load_dwordx2 s[56:57], s[0:1], {K_WS}
    s_load_dwordx2 s[54:55], s[0:1], {K_M}
    s_load_dwordx2 s[58:59], s[0:1], {K_DIST}
    s_load_dwordx4 s[60:63], s[0:1], {K_CEN}
    s_load_dwordx8 s[64:71], s[0:1], {K_WRBF}
    s_and_b32 s{sD}, s2, 7
    s_lshl_b32 s{sD}, s{sD}, 5
    s_lshr_b32 s36, s2, 3
    s_add_u32 s{sD}, s{sD}, s36
    v_lshrrev_b32 v34, 6, v0
    v_mul_u32_u24 v35, 24, v0
    v_lshlrev_b32 v36, 2, v0                     ; x*4
    v_readfirstlane_b32 s3, v34
    s_mul_i32 s36, s{sD}, {256*48}
    v_and_b32 v37, 63, v0                        ; lane
    v_and_b32 v38, 15, v0                        ; n
    v_lshrrev_b32 v39, 5, v37                    ; h
    v_lshrrev_b32 v33, 4, v37                    ; q
    v_lshlrev_b32 v41, 1, v38
    v_lshl_add_u32 v40, v39, 8, v41              ; (8h)*32 + n*2
    s_mul_i32 s{sST}, s3, 25
    s_sub_i32 s37, s3, 4
    s_max_i32 s37, s37, 0
    s_sub_u32 s{sST}, s{sST}, s37
    s_mul_i32 s{sR0}, s{sD}, {EPC}
    s_add_u32 s{sRN}, s{sR0}, {EPC}
    s_and_b32 s{sR0}, s{sR0}, -4
    s_and_b32 s{sRN}, s{sRN}, -4
    s_sub_u32 s{sRN}, s{sRN}, s{sR0}
    s_lshl_b32 s37, s{sR0}, 1
    s_lshl_b32 s38, s{sRN}, 1
    s_waitcnt lgkmcnt(0)
    ''')
    srd(a, 12, 's56', 's57', TAB_OFF, TAB_BYTES)
    a(f'''
    s_load_dword s99, s[62:63], 0
    buffer_load_dwordx4 v[46:49], v35, s[12:15], s36 offen
    buffer_load_dwordx2 v[50:51], v35, s[12:15], s36 offen offset:16
    ''')
    srd(a, 76, 's68', 's69', None, 512)
    for k in range(8): a(f'buffer_load_ushort v{72+k}, v40, s[76:79], 0 offen offset:{32*k}')
    srd(a, 80, 's58', 's59', 's37', 's38')
    a(f'''
    s_lshl_b32 s36, s{sST}, 5
    v_lshlrev_b32 v32, 4, v37                    ; lane*16
    v_mov_b32 v96, v32
    buffer_load_dwordx4 v[80:83], v32, s[80:83], s36 offen
    v_lshl_add_u32 v42, v33, 7, v41              ; (4q)*32 + n*2
    v_lshl_add_u32 v43, v33, 6, v41              ; (2q)*32 + n*2
    v_lshlrev_b32 v44, 2, v33                    ; (2q)*2
    ''')
    R = 84
    srd(a, 84, 's70', 's71', None, 512)
    for k in range(4): a(f'buffer_load_ushort v{R+k}, v42, s[84:87], 0 offen offset:{32*k}')
    srd(a, 88, 's66', 's67', None, 512)
    for k in range(4): a(f'buffer_load_ushort v{R+4+k}, v42, s[88:91], 0 offen offset:{32*k}')
    srd(a, 72, 's64', 's65', None, 256)
    for k in range(2): a(f'buffer_load_ushort v{R+8+k}, v43, s[72:75], 0 offen offset:{32*k}')
    srd(a, 44, 's60', 's61', None, 16)
    for k in range(2): a(f'buffer_load_ushort v{R+10+k}, v44, s[44:47], 0 offen offset:{2*k}')
    srd(a, 4, 's54', 's55', None, 0 if 'nogather' in diag else E*32)
    srd(a, 8, 's56', 's57', None, REC_BYTES + 16)
    if 'stamp' in diag:
        srd(a, 92, 's56', 's57', 200000000, 1 << 20)
        a('s_lshl_b32 s98, s2, 3\ns_add_u32 s98, s98, s3\ns_lshl_b32 s98, s98, 8\nv_mov_b32 v42, v0')
        stamp(a, True); stamp(a); a('v_mov_b32 v0, v42')
    a(f'''
    v_lshlrev_b32 v41, 4, v0
    v_mov_b32 v42, 0
    v_mov_b32 v43, 0
    v_mov_b32 v44, 0
    v_mov_b32 v45, 0
    v_add_u32 v52, {L0}, v41
    v_add_u32 v53, {L1}, v41
    s_mul_i32 s39, s3, {TSZ}
    s_add_u32 s39, s39, {TBL}
    v_add_u32 v54, s39, v32
    ''')
    for k in range(6): a(f'ds_write_b128 v52, v[42:45] offset:{k*8192}')
    for k in range(TSZ // 1024): a(f'ds_write_b128 v54, v[42:45] offset:{k*1024}')
    if TSZ % 1024: a(f's_mov_b64 exec, {(1 << (TSZ % 1024 // 16)) - 1}\nds_write_b128 v54, v[42:45] offset:{TSZ // 1024 * 1024}\ns_mov_b64 exec, -1')
    assert L1 - L0 == 6*8192 + 1024 and TBL - L1 == 8*8192 + 1024
    a(f'''
    v_mov_b32 v98, v53
    v_cmp_gt_u32 s[14:15], 64, v0
    s_mov_b64 exec, s[14:15]
    ds_write_b128 v52, v[42:45] offset:{6*8192}
    s_mov_b64 exec, -1
    v_and_b32 v52, 31, v0
    v_lshlrev_b32 v52, 3, v52
    v_cmp_gt_u32 vcc, 200, v0
    s_mov_b64 exec, vcc
    ds_write_b32 v36, v52 offset:{CNT}
    ds_write_b32 v36, v52 offset:{CNT+800}
    ds_write_b96 v42, v[42:44] offset:{FLAG}
    s_mov_b64 exec, -1
    s_mov_b32 s{sEPC}, 0
    s_mov_b32 s{sEPA}, 1
    s_mov_b32 s{sNM32}, 0xffffffe0
    s_mov_b32 s{sLIM}, {32 << 16}
    s_mov_b32 s{sF8}, 0xf8
    s_mov_b32 s{sFFFF}, 0xffff
    s_mov_b32 s{sSP}, 0
    s_mov_b32 s{sRES}, 0
    s_mov_b64 {sp(sLIVE)}, -1
    s_mov_b64 {sp(sSKIP)}, 0
    s_mov_b32 s{sSW}, 0
    s_mul_i32 s{sSPB}, s3, {SPCAP*8}
    s_add_u32 s{sSPB}, s{sSPB}, {SPILL}
    s_cmp_lt_u32 s3, 4
    s_cselect_b32 s37, 25, 24
    s_cselect_b32 s{sW24}, 0, 0x100
    s_bfm_b32 s{sNG}, s37, 0
    s_mov_b32 s{sNG+1}, 0
    s_lshl_b32 s36, s{sST}, 8
    v_and_b32 v52, 31, v37
    v_lshl_add_u32 v{vLB}, v52, 3, s36
    v_lshlrev_b32 v{vHALF}, 4, v39
    s_lshl_b32 s36, s3, 11
    s_add_u32 s36, s36, {PST}
    s_sub_u32 s37, s36, {PIMM}
    v_lshl_add_u32 v53, v39, 10, s37
    v_bfe_u32 v54, v52, 2, 2
    v_lshl_add_u32 v53, v54, 8, v53              ; + q*256
    v_lshrrev_b32 v54, 4, v52
    v_lshl_add_u32 v53, v54, 3, v53              ; + j*8
    v_and_b32 v54, 3, v52
    v_lshl_add_u32 v{vKC}, v54, 1, v53           ; + r*2
    v_lshl_add_u32 v54, v33, 8, s36
    v_lshl_add_u32 v{vPR}, v38, 4, v54           ; P base + q*256 + e*16
    v_lshlrev_b32 v{vX}, 3, v33
    v_lshl_or_b32 v{vX}, v38, 17, v{vX}          ; q*8 | (2e << 16)
    s_add_u32 s{sROW}, s39, {NXMAX*32}
    s_add_u32 s{sFAR}, s{sROW}, {8*NPH*32}
    v_and_b32 v53, 1, v33
    v_cmp_eq_u32 s[56:57], 0, v53
    v_lshrrev_b32 v52, 1, v0                     ; tile j
    s_mov_b32 s36, {TSTRIDE}
    v_mul_u32_u24 v52, s36, v52
    v_and_b32 v53, 1, v0                         ; hh
    v_mul_u32_u24 v54, {6*256}, v53
    v_lshrrev_b32 v55, 1, v37
    v_lshl_add_u32 v54, v55, 3, v54
    v_add_u32 v54, s{sROW}, v54
    v_mov_b32 v55, 0
    s_mov_b32 s{sNX}, 0
    ''')
    if 'pro' in diag: stamp(a, T0=56, T1=57)
    a('s_waitcnt vmcnt(21)')
    if 'pro' in diag: stamp(a, T0=56, T1=57)
    for k in range(6):
        e = 46 + k
        a(f'''
        v_lshrrev_b32 v35, 16, v{e}
        v_mad_u32_u16 v34, v{e}, 6, v52
        v_max_u32 v36, 1, v35
        v_subrev_u32 v36, 1, v36
        v_cmp_lt_u32 vcc, 32, v35
        v_max_u32 v55, v55, v35
        v_lshl_or_b32 v35, v36, 16, v35
        ''')
        if 6 + k >= NPH: a('s_mov_b32 exec_lo, 0x55555555\ns_mov_b32 exec_hi, 0x55555555')
        a(f'ds_write_b64 v54, v[34:35] offset:{k*256}')
        if 6 + k >= NPH: a('s_mov_b64 exec, -1')
        a(f's_cbranch_vccnz B_x{k}\nB_xb{k}:')
        stubs(f'''
        B_x{k}:
        v_mbcnt_lo_u32_b32 v36, vcc_lo, 0
        v_mbcnt_hi_u32_b32 v36, vcc_hi, v36
        s_bcnt1_i32_b64 s37, vcc
        v_add_u32 v36, s{sNX}, v36
        s_add_u32 s{sNX}, s{sNX}, s37
        s_cmp_gt_u32 s{sNX}, {4*NXMAX}
        s_cbranch_scc1 B_xb{k}
        v_add_u32 v34, 192, v34
        v_subrev_u32 v35, {32 + (32 << 16)}, v35
        s_sub_u32 s37, s{sROW}, 8
        v_lshlrev_b32 v36, 3, v36
        v_sub_u32 v36, s37, v36
        s_mov_b64 exec, vcc
        ds_write_b64 v36, v[34:35]
        s_mov_b64 exec, -1
        s_branch B_xb{k}
        ''')
    for sh in ('row_shr:1 row_mask:0xf', 'row_shr:2 row_mask:0xf', 'row_shr:4 row_mask:0xf', 'row_shr:8 row_mask:0xf', 'row_bcast:15 row_mask:0xa', 'row_bcast:31 row_mask:0xc'):
        a(f'v_max_u32_dpp v55, v55, v55 {sh} bank_mask:0xf')
    a(f'''
    v_readlane_b32 s36, v55, 63
    s_add_u32 s37, s{sNX}, 3
    s_lshr_b32 s37, s37, 2
    s_lshl_b32 s37, s37, 5
    s_sub_u32 s{sU}, s{sROW}, s37
    s_mov_b32 s{sUE}, s{sFAR}
    s_sub_u32 s13, s{sROW}, 32
    s_cmp_gt_u32 s{sNX}, {4*NXMAX}
    s_cselect_b32 s37, 65, 0
    s_max_u32 s37, s37, s36
    s_cmp_gt_u32 s37, 64
    s_cbranch_scc0 B_nofb
    s_mov_b32 s{sU}, s{sROW}
    s_add_u32 s36, s36, 31
    s_lshr_b32 s36, s36, 5
    s_mul_i32 s36, s36, {8*NPH*32}
    s_add_u32 s{sUE}, s{sROW}, s36
    s_mov_b32 s13, s{sFAR}
    B_nofb:
    s_waitcnt lgkmcnt(0)
    s_lshl_b32 s36, s99, 16
    s_and_b32 s37, s99, 0xffff0000
    v_mov_b32 v56, s36
    v_mov_b32 v57, s37
    v_mul_f32 v56, 0.15915494, v56
    v_mul_f32 v57, 0.15915494, v57
    v_readfirstlane_b32 s{sKF}, v56
    v_readfirstlane_b32 s{sKF+1}, v57
    s_barrier
    ''')
    stamp(a)
    import struct, math
    SQ = struct.unpack('<I', struct.pack('<f', math.sqrt(10*math.log2(math.e))))[0]
    def operands(q):
        for k in range(4):
            q(f'''
            v_lshl_or_b32 v{72+2*k}, v{73+2*k}, 16, v{72+2*k}
            v_cndmask_b32 v{W+4+k}, v{72+2*k}, 0, s[56:57]
            v_cndmask_b32 v{W+k}, 0, v{72+2*k}, s[56:57]
            ''')
        if 'ident' in diag:
            q(f'''
            v_lshrrev_b32 v97, 4, v96                ; lane
            v_and_b32 v72, 15, v97
            v_lshrrev_b32 v73, 5, v97
            v_lshlrev_b32 v73, 3, v73
            v_sub_u32 v72, v72, v73                  ; n - 8h
            s_mov_b32 s36, 0x3f80
            s_mov_b32 s37, 0x3f800000
            ''')
            for k in range(4):
                q(f'''
                v_cmp_eq_u32 vcc, {2*k}, v72
                v_mov_b32 v73, s36
                v_mov_b32 v74, s37
                v_cndmask_b32 v75, 0, v73, vcc
                v_cmp_eq_u32 vcc, {2*k+1}, v72
                s_nop 1
                v_cndmask_b32 v75, v75, v74, vcc
                v_cndmask_b32 v{W+4+k}, v75, 0, s[56:57]
                v_cndmask_b32 v{W+k}, 0, v75, s[56:57]
                ''')
        q(f'''
        s_lshl_b32 s36, s3, 10
        s_add_u32 s36, s36, {DST}
        v_add_u32 v97, s36, v96
        ds_write_b128 v97, v[80:83]
        v_lshl_or_b32 v72, v{R+1}, 16, v{R}          ; w_up
        v_lshl_or_b32 v73, v{R+3}, 16, v{R+2}
        v_lshl_or_b32 v74, v{R+6}, 16, v{R+4}
        v_lshl_or_b32 v75, v{R+7}, 16, v{R+5}
        v_lshl_or_b32 v76, v{R+9}, 16, v{R+8}        ; w_rbf
        v_mov_b32 v77, 0
        v_lshlrev_b32 v78, 16, v{R+10}
        v_lshlrev_b32 v79, 16, v{R+11}
        v_mul_f32 v78, {(SQ | 0x80000000):#x}, v78   ; -center*s
        v_mul_f32 v79, {(SQ | 0x80000000):#x}, v79
        v_add_u32 v97, {WST}, v96
        ds_write_b128 v97, v[72:75]
        ds_write_b128 v97, v[76:79] offset:1024
        ''')
        for k in range(100, 104): q(f'v_mov_b32 v{k}, 0')
        for k in range(8):
            q(f'ds_write_b128 v98, v[100:103] offset:{k*8192}')
            for r in range(104 + 19*k, 104 + 19*k + 19): q(f'v_mov_b32 v{r}, 0')
        q(f'v_add_u32 v98, {8*8192}, v98\ns_mov_b64 exec, s[14:15]\nds_write_b128 v98, v[100:103]\ns_mov_b64 exec, -1')
    q = Seq()
    q(f'B_xl:\ns_add_u32 s36, s{sU}, 32\ns_cmp_ge_u32 s36, s{sROW}\ns_cbranch_scc1 B_xe')
    L1s(q, 0); L2s(q, 0, Q0, 40, 42)
    q('s_waitcnt vmcnt(0)'); A1(q, 0, Q0, (40, 42), 0)
    q('s_waitcnt lgkmcnt(0)'); A2(q, 0, Q0, (40, 42), 0)
    q(f's_cmp_eq_u32 s{sLIVE}, 0\ns_cbranch_scc1 B_pz\ns_add_u32 s{sU}, s{sU}, 32\ns_branch B_xl\nB_xe:')
    q(f's_mov_b32 s{sU}, s{sROW}')
    SL = list(range(-1, NS))
    pq = lambda s: 20 + 4*s
    pm = lambda s: (40, 42) if s < 0 else ((58 + 4*s, 60 + 4*s) if s < 3 else (60 + 4*s, 62 + 4*s))
    pp = lambda s: 54 + 2*(s + 1)
    for s in SL:
        q(f's_add_u32 s36, s{sU}, {32*s}' if s >= 0 else 's_mov_b32 s36, s13')
        q(f'v_add_u32_sdwa v{T0}, s36, v{vX} {SD} src1_sel:WORD_0')
        q(f'ds_read_b64 {vp(pp(s))}, v{T0}', tag=('ent', s))
    for s in SL: L2s(q, s, pq(s), *pm(s), pp(s))
    if 'pro' in diag: stamp(q)
    q(f's_waitcnt vmcnt({len(SL)})')
    operands(q)
    if 'pro' in diag: stamp(q)
    TP = lambda s, h: 72 + 4*((s + 1) % 3) + 2*h
    def cos2(s):
        for st in range(5):
            for h in (1, 0):
                t = TP(s, h)
                q([f'v_cvt_f32_bf16_sdwa v{t}, v{pq(s)+1} dst_sel:DWORD dst_unused:UNUSED_PAD src0_sel:WORD_{h}',
                   f'v_pk_mul_f32 {vp(t)}, {vp(t)}, {sp(sKF)} op_sel_hi:[0,1]',
                   f'v_fract_f32 v{t}, v{t}\nv_fract_f32 v{t+1}, v{t+1}',
                   f'v_cos_f32 v{t}, v{t}\nv_cos_f32 v{t+1}, v{t+1}',
                   f'v_cvt_pk_bf16_f32 v{pq(s)+1+2*h}, v{t}, v{t+1}'][st])
    for s in SL:
        q.wait('v', [('rec', s)])
        A1(q, s, pq(s), pm(s), 0, live=False, p2=pp(s))
        cos2(s)
    for s in SL:
        q.wait('l', [('ret', s)]); A2(q, s, pq(s), pm(s), 0, p2=pp(s))
    if 'pro' in diag: stamp(q)
    q('s_branch B_pe\nB_pz:')
    operands(q)
    q(f'B_pe:\ns_mov_b64 s[72:73], 0')
    for v in range(5): q(f'v_mov_b32 v{PK(v)}, v{vKC}\ns_mov_b64 {sp(MK(v))}, 0')
    for k in list(range(G, G+12)) + list(range(U, U+16)) + list(range(56, 100)): q(f'v_mov_b32 v{k}, 0')
    sweep_end(q, None)
    q.resolve(a, False)

    MF = 'v_mfma_f32_16x16x32_bf16'
    GS = lambda v: Q0 if v == 24 else G + 4*(v % 3)
    def setprio(q, v, tag):
        if v in prio:
            if prio.index(v) % 2 == 0:
                q(f's_cmp_eq_u32 s{sW24}, 0\ns_cbranch_scc1 B_pr{tag}_{v}\ns_setprio 1\nB_pr{tag}_{v}:')
            else: q('s_setprio 0')
    def step(q, par, v, LB, visit=True):
        av = (v - 3) % NV; ap = par if v >= 3 else 1-par
        bv = (v - 4) % NV
        if v: q.wait('l', [('pr', par, v - 1)])
        q(f'{MF} {vp(ACC(bv),4)}, {vp(XB,4)}, {vp(U,4)}, {vp(ACC(bv),4)}', drop='nomfma' in diag)
        q(f'{MF} {vp(ACC(bv)+4,4)}, {vp(XB,4)}, {vp(U+4,4)}, {vp(ACC(bv)+4,4)}', drop='nomfma' in diag)
        if not visit and v == 3: return
        if visit:
            if v == 0: q.wait('l', [('lst', par, 0)])
            q(f'''
            v_bfe_u32 v{T0}, v{LP}, 8, 4
            v_and_b32 v{T1}, s{sFFFF}, v{PK(av)}
            v_lshl_add_u32 v{PK(v)}, v{T0}, 4, v{vKC}
            v_and_b32 v{T0}, s{sFFFF}, v{PK(bv)}
            v_cmpx_eq_u32_sdwa {sp(MK(v))}, s{sEP24 if v == 24 else sEPC}, v{LP} src0_sel:DWORD src1_sel:BYTE_0
            v_lshrrev_b32 v{LP}, 7, v{LP}
            v_lshrrev_b32_sdwa v{PK(v)}, v{vHALF}, v{LP+1} dst_sel:WORD_1 dst_unused:UNUSED_PRESERVE src0_sel:DWORD src1_sel:DWORD
            v_and_or_b32 v{LP}, v{LP}, s{sNM32}, v{vHALF}
            ''')
        else: q(f'v_and_b32 v{T1}, s{sFFFF}, v{PK(av)}\nv_and_b32 v{T0}, s{sFFFF}, v{PK(bv)}')
        q.wait('v', [('gat', ap, av)])
        q(f'{MF} {vp(U,4)}, {vp(GS(av),4)}, {vp(W,4)}, 0', drop='nomfma' in diag)
        q(f'{MF} {vp(U+4,4)}, {vp(GS(av),4)}, {vp(W+4,4)}, 0', drop='nomfma' in diag)
        if visit: q(f'buffer_load_dwordx4 {vp(GS(v),4)}, v{LP}, s[4:7], 0 offen', tag=('gat', par, v), drop='nodma' in diag)
        q(f's_mov_b64 exec, {sp(MK(bv))}')
        q(f'ds_write_b16_d16_hi v{T0}, v{vHALF} offset:{PIMM}', drop='nopw' in diag)
        q(f's_mov_b64 exec, {sp(MK(av))}')
        q(f'ds_write_b16_d16_hi v{T1}, v{PK(av)} offset:{PIMM}', drop='nopw' in diag)
        q('s_mov_b64 exec, -1')
        if visit and v + 1 < NV: q(f'ds_read_b64 {vp(LP)}, v{vLB} offset:{LB + (v+1)*256}', tag=('lst', par, v+1))
        for k in range(4): q(f'v_cvt_pk_bf16_f32 v{XB+k}, v{U+2*k}, v{U+2*k+1}')
        q(f'ds_read_b128 {vp(U,4)}, v{vPR}', drop='nopr' in diag)
        q(f'ds_read_b128 {vp(U+4,4)}, v{vPR} offset:1024', tag=('pr', par, v), drop='nopr' in diag)
        if visit and v == 23:
            for k in range(4): q(f'v_mov_b32 v{Q0+k}, 0')
    def cntreset(q, off):
        q(f'''
        v_mbcnt_lo_u32_b32 v{T0}, -1, 0
        v_mbcnt_hi_u32_b32 v{T0}, -1, v{T0}
        v_add_u32 v{T0}, s{sST}, v{T0}
        v_and_b32 v{T1}, 31, v{T0}
        v_lshl_add_u32 v{T0}, v{T0}, 2, {off}
        v_lshlrev_b32 v{T1}, 3, v{T1}
        s_mov_b64 exec, {sp(sNG)}
        ds_write_b32 v{T0}, v{T1} offset:{CNT}
        ''')
    q = Seq()
    for par in range(2):
        LB = [L0, L1][par]
        q(f'B_loop{par}:')
        if MAXSW < 1 << 30: q(f's_cmp_gt_u32 s{sSW}, {MAXSW}\ns_cbranch_scc1 B_epi')
        q(f'''
        s_cmp_lt_u32 s{sU}, s{sUE}
        s_cselect_b32 s36, 1, s{sSP}
        s_cmp_eq_u32 s36, 0
        s_cbranch_scc1 B_free{par}
        ''')
        q(f'ds_read_b64 {vp(LP)}, v{vLB} offset:{LB}', tag=('lst', par, 0))
        for v in range(NV):
            setprio(q, v, par)
            step(q, par, v, LB)
            qd = lambda s: Q1 - 4*(s % 2); mk = lambda s: (40 + 4*(s % 2), 42 + 4*(s % 2))
            for s in range(NS):
                if v == APOS[s] + DA + 1: q.wait('l', [('ret', s)]); A2(q, s, qd(s), mk(s), 1-par)
            if v == APOS[-1] + DA + 1: signal(q, DNA)
            if v == NV - 2: reads_done(q, par)
            for s in range(NS):
                if v == APOS[s]: L2s(q, s, qd(s), *mk(s))
            if v == 1: peek(q, DNR)
            if v == 2: q.wait('l', ['peek']); check(q, DNR); reappend(q, 1-par)
            for s in range(NS):
                if v == APOS[s] - 1: L1s(q, s)
                if v == APOS[s] + DA: q.wait('v', [('rec', s)]); A1(q, s, qd(s), mk(s), 1-par)
            if v == 0:
                if par: q('s_movk_i32 s36, 800')
                cntreset(q, 's36' if par else '0')
                q(f'''
                s_mov_b64 exec, 1
                v_mov_b32 v{T0}, s{sSW}
                v_mov_b32 v{T1}, 0
                ds_max_u32 v{T1}, v{T0} offset:{FLAG}
                s_mov_b64 exec, -1
                ''')
        sweep_end(q, par)
    q('s_branch B_loop0')
    q.resolve(a, True)
    q = Seq()
    q(f'''
    B_free1:
    s_mov_b32 s{sDID}, {L1 - L0}
    s_branch B_free
    B_free0:
    s_mov_b32 s{sDID}, 0
    B_free:
    v_mov_b32 v{T0}, 0
    v_add_u32 v{vLB}, s{sDID}, v{vLB}
    ds_read_b32 v{vF}, v{T0} offset:{FLAG}
    ''')
    q(f'ds_read_b64 {vp(LP)}, v{vLB} offset:{L0}', tag=('lst', 0, 0))
    q(f'''
    s_waitcnt lgkmcnt(1)
    v_readfirstlane_b32 s36, v{vF}
    s_add_u32 s36, s36, 1
    s_cmp_lt_u32 s36, s{sSW}
    s_cbranch_scc1 B_epi
    ''')
    for v in (22, 23, 24): q('buffer_x', tag=('gat', 1, v)); q.o[-1]['t'] = ''
    for v in range(NV):
        setprio(q, v, 'f')
        step(q, 0, v, L0)
        if v == 0:
            q(f's_cmp_lg_u32 s{sDID}, 0\ns_cselect_b32 s36, 800, 0')
            cntreset(q, 's36'); signal(q, DNA)
        if v == NV - 2: reads_done(q, 0)
    sweep_end(q, 0, adv=False)
    q(f'''
    v_subrev_u32 v{vLB}, s{sDID}, v{vLB}
    s_cmp_lg_u32 s{sDID}, 0
    s_cbranch_scc1 B_loop0
    s_branch B_loop1
    ''')
    q.resolve(a, False)

    a.label('B_epi')
    stamp(a)
    a(f'''
    s_setprio 0
    s_load_dwordx2 s[72:73], s[0:1], {K_OUT}
    s_lshl_b32 s36, s{sR0}, 5
    s_lshl_b32 s43, s{sRN}, 5
    v_mbcnt_lo_u32_b32 v{vLB}, -1, 0
    v_mbcnt_hi_u32_b32 v{vLB}, -1, v{vLB}        ; lane
    s_lshl_b32 s38, s{sST}, 9
    s_lshl_b32 s39, s{sST}, 8
    s_add_u32 s40, s39, {L1}                     ; piece 1
    s_add_u32 s39, s39, {L0}                     ; piece 0
    s_mul_i32 s41, s3, {TSZ}
    s_add_u32 s41, s41, {TBL}                    ; piece 2
    v_lshlrev_b32 v{vX}, 4, v{vLB}
    ''')
    srd(a, 12, 's54', 's55', 's36', 's43')
    piece = lambda pr: (39 + min(pr // 6, 2), (pr % 6)*1024)
    q = Seq()
    for v in (22, 23, 24): q('buffer_x', tag=('gat', 1, v)); q.o[-1]['t'] = ''
    q('s_waitcnt lgkmcnt(0)')
    def mdma(pr):
        sg, off = piece(pr)
        q(f's_add_u32 m0, s{sg}, {off}\ns_add_u32 s42, s38, {pr*1024}')
        q(f'buffer_load_dwordx4 v{vX}, s[12:15], s42 offen lds', tag=('m', pr))
    for v in range(4):
        for pr in range(EDM*v, EDM*v + EDM): mdma(pr)
        step(q, 0, v, L0, visit=False)
    t = Asm(); srd(t, 8, 's72', 's73', 's36', 's43'); q('\n'.join(t.l))
    if 'epi' in diag: stamp(q)
    WU, W0, W1, WR, CS, RB, TT, DD, MM, A0, VV = 8, 10, 12, 14, 0, 16, 20, 24, 28, 32, 48
    TMP = 7
    q(f'''
    v_lshrrev_b32 v3, 4, v{vLB}                  ; q
    v_and_b32 v2, 15, v{vLB}                     ; e
    v_add_u32 v5, {WST}, v{vX}
    ds_read_b128 v[44:47], v5
    ds_read_b128 v[48:51], v5 offset:1024
    s_lshl_b32 s37, s3, 10
    s_add_u32 s37, s37, {DST}
    v_lshl_add_u32 v5, v2, 1, s37
    v_lshlrev_b32 v4, 5, v2
    v_lshl_add_u32 v4, v3, 3, v4                 ; e*32 + q*8
    v_add_u32 v2, s39, v4
    v_add_u32 v3, s40, v4
    v_add_u32 v4, s41, v4
    s_mov_b32 s43, 0xffff0000
    s_mov_b32 s44, {SQ:#x}
    s_mov_b32 s45, {SQ:#x}
    v_mov_b32 v{RB+1}, 0
    v_mov_b32 v{RB+3}, 0
    v_mov_b32 v{W0+1}, 0
    v_mov_b32 v{W1+1}, 0
    v_mov_b32 v{WR+1}, 0
    ''')
    def drd(p):
        for h in range(2): q(f'ds_read_u16 v{DD + 2*(p % 2) + h}, v5 offset:{32*(2*p+h)}', tag=('d', p))
    drd(0); drd(1)
    q(f'''
    s_waitcnt lgkmcnt(4)
    v_mov_b32 v{WU}, v44
    v_mov_b32 v{WU+1}, v45
    v_mov_b32 v{W0}, v46
    v_mov_b32 v{W1}, v47
    v_mov_b32 v{WR}, v48
    v_mov_b32 v{CS}, v50
    v_mov_b32 v{CS+1}, v51
    ''')
    MF = 'v_mfma_f32_16x16x16_bf16'
    HS = lambda p: (0, 1) if p < 12 else (0,)
    VR = lambda p, h: VV + 4*h
    lds = lambda v: (2 + min(v // 12, 2), (v % 12)*512)
    def E1(p):
        d = DD + 2*(p % 2); H2 = HS(p)
        q.wait('l', [('d', p)])
        for h in H2: q(f'v_lshlrev_b32 v{d+h}, 16, v{d+h}')
        for h in H2: q(f'v_pk_fma_f32 {vp(TT+2*h)}, {vp(d)}, s[44:45], {vp(CS)} op_sel:[{h},0,0] op_sel_hi:[{h},0,1]')
        if p + 2 <= 12: drd(p + 2)
        for h in H2: q(f'v_pk_mul_f32 {vp(TT+2*h)}, {vp(TT+2*h)}, {vp(TT+2*h)} neg_lo:[0,1] neg_hi:[0,1]')
        for h in H2: q(f'v_exp_f32 v{TT+2*h}, v{TT+2*h}\nv_exp_f32 v{TT+2*h+1}, v{TT+2*h+1}')
        if 4*EDM + p < 13: mdma(4*EDM + p)
        for h in H2: q(f'v_cvt_pk_bf16_f32 v{RB+2*h}, v{TT+2*h}, v{TT+2*h+1}')
        for h in H2:
            q(f'{MF} {vp(A0+8*h,4)}, {vp(W0)}, {vp(RB+2*h)}, 0')
            q(f'{MF} {vp(A0+8*h+4,4)}, {vp(W1)}, {vp(RB+2*h)}, 0')
    def E2(p):
        H2 = HS(p)
        q.wait('v', [('m', p)])
        for h in H2:
            b, off = lds(2*p + h)
            q(f'ds_read_b64 {vp(MM + 2*h)}, v{b} offset:{off}', tag=('mm', p))
        for k in (0, 2):
            for h in H2: q(f'v_pk_mul_f32 {vp(ACC(2*p+h)+k)}, {vp(ACC(2*p+h)+k)}, {vp(A0+8*h+k)}')
        for k in (0, 2):
            for h in H2: q(f'v_pk_fma_f32 {vp(ACC(2*p+h)+k)}, {vp(ACC(2*p+h)+4+k)}, {vp(A0+8*h+4+k)}, {vp(ACC(2*p+h)+k)}')
        for k in (0, 1):
            for h in H2: q(f'v_cvt_pk_bf16_f32 v{ACC(2*p+h)+k}, v{ACC(2*p+h)+2*k}, v{ACC(2*p+h)+2*k+1}')
        for h in H2: q(f'{MF} {vp(VR(p,h),4)}, {vp(WR)}, {vp(RB+2*h)}, 0')
        for h in H2: q(f'{MF} {vp(ACC(2*p+h)+4,4)}, {vp(WU)}, {vp(ACC(2*p+h))}, 0')
    def E3(p):
        H2 = HS(p)
        q.wait('l', [('mm', p)])
        for k in (0, 1):
            for h in H2:
                q(f'v_lshlrev_b32 v{ACC(2*p+h)+2*k}, 16, v{MM+2*h+k}\nv_and_b32 v{ACC(2*p+h)+2*k+1}, s43, v{MM+2*h+k}')
        for k in (0, 2):
            for h in H2: q(f'v_pk_fma_f32 {vp(ACC(2*p+h)+k)}, {vp(ACC(2*p+h)+4+k)}, {vp(VR(p,h)+k)}, {vp(ACC(2*p+h)+k)}')
        for k in (0, 1):
            for h in H2: q(f'v_cvt_pk_bf16_f32 v{ACC(2*p+h)+k}, v{ACC(2*p+h)+2*k}, v{ACC(2*p+h)+2*k+1}')
        sg, off2 = piece(p)
        q(f's_add_u32 s42, s{sg}, {off2}\nv_add_u32 v{TMP}, s42, v{vX}')
        for h in H2:
            b, off = lds(2*p + h)
            q(f'ds_write_b64 v{b}, {vp(ACC(2*p+h))} offset:{off}')
        q(f'ds_read_b128 {vp(ACC(min(2*p+1, 24)),4)}, v{TMP}', tag=('o', p))
    def ST(pr):
        A = ACC(min(2*pr + 1, 24))
        q(f's_add_u32 s42, s38, {pr*1024}')
        q.wait('l', [('o', pr)])
        q(f'buffer_store_dwordx4 {vp(A,4)}, v{vX}, s[8:11], s42 offen {stf}')
    E1(0)
    if 'epi' in diag: stamp(q, T0=TT, T1=TT+1)
    for p in range(12):
        E2(p); E1(p + 1)
        if p >= 1: ST(p - 1)
        E3(p)
    ST(11)
    if 'epi' in diag: stamp(q, T0=TT, T1=TT+1)
    q('s_cmp_ge_u32 s3, 4\ns_cbranch_scc1 B_last')
    E2(12); E3(12)
    q('s_mov_b32 exec_hi, 0')
    ST(12)
    q.resolve(a, False)
    a.label('B_last')
    if 'stamp' in diag:
        a('s_mov_b64 exec, -1\ns_waitcnt vmcnt(0)')
        stamp(a); stamp(a, True)
    a.label('B_end')
    a('s_endpgm')
    out = a.l + stubs.l
    for l in late: out += l
    return out
```

```python
from common import *
NAME = 'agg_kernel'
CNT = 0; FLAG = 1600; DNA = 1604; DNR = 1608; L0 = 1664; L1 = L0 + 196*256
PST = L1 + 196*256; PIMM = 65280
NXMAX = {10: 15, 11: 7, 12: 7}[NPH]
TSZ = (NXMAX + 8*NPH + 1)*32
TBL = PST + 8*2048
SPILL = TBL + 8*TSZ; SPCAP = 128
DST = SPILL + 8*SPCAP*8
WST = DST + 8192
LDS = 163840
assert WST + 2048 <= LDS and TSZ <= 4096
NV = 25
MAXSW = 20000
T0, T1, vLB, vHALF, vKC, vPR, vX = range(7)
W = 8; G = 16; LP = 28; U = 30; XB = 38; Q0 = 42; Q1 = 46; vP2 = 50
PK = lambda v: [7, 52, 53, 54, 55][v % 5]
vF = Q1
ACC = lambda v: 56 + 8*v
sEPC, sEP24, sNM32, sLIM, sF8, sEPA, sFFFF = 16, 17, 18, 19, 20, 21, 22
sROW, sNX, sU, sUE, sSP, sRES, sDID = 23, 24, 25, 26, 27, 28, 29
sLIVE, sSKIP, sSW, sD, sSPB, sFAR, sST = 30, 32, 34, 35, 48, 49, 51
sR0, sRN = 100, 101
sTG = 72
sKF = 70
sNG = 52
sW24 = 50
MK = lambda v: 60 + 2*(v % 5)
INC = 8 + (1 << 16)
def sp(r): return f's[{r}:{r+1}]'
def vp(r, n=2): return f'v[{r}:{r+n-1}]'
SD = 'dst_sel:DWORD dst_unused:UNUSED_PAD src0_sel:DWORD'

class Seq:
    def __init__(s): s.o = []
    def __call__(s, t, tag=None, maybe=False, drop=False):
        ls = [x.strip() for x in t.strip('\n').split('\n') if x.strip()]
        for x in ls:
            c = 'v' if x.startswith('buffer_') else ('l' if x.startswith('ds_') else None)
            s.o.append(dict(t='' if drop else x, c=c, tag=tag if c else None, maybe=maybe or drop))
    def wait(s, c, tags): s.o.append(dict(t=None, c=None, w=c, tags=tags))
    def resolve(s, a, cyclic):
        n = len(s.o)
        for k, x in enumerate(s.o):
            if x['t'] is not None: a(x['t']); continue
            cnt = 0; found = None; j = k - 1; steps = 0
            while steps < n:
                if j < 0:
                    if not cyclic: break
                    j += n
                y = s.o[j]
                if y['c'] == x['w']:
                    if y['tag'] in x['tags']: found = cnt; break
                    if not y['maybe']: cnt += 1
                j -= 1; steps += 1
            assert found is not None, x
            a(f's_waitcnt vmcnt({min(found,63)})' if x['w'] == 'v' else f's_waitcnt lgkmcnt({min(found,15)})')

def gen(APOS=(1,3,5,7,9,11,13,15), DA=2, recflags='', prio=(0,12), wpf=False, EDM=2, stf='nt', diag=()):
    NS = 8
    a = Asm(); stubs = Asm(); late = []
    uid = [0]
    def nid(): uid[0] += 1; return uid[0]
    def stamp(q, real=False, T0=T0, T1=T1):
        if 'stamp' not in diag: return
        q(f'''
        {'s_memrealtime' if real else 's_memtime'} s[96:97]
        s_waitcnt lgkmcnt(0)
        v_mov_b32 v{T0}, s96
        v_mov_b32 v{T1}, 0
        s_mov_b64 exec, 1
        ''')
        t = f'buffer_store_dword v{T0}, v{T1}, s[92:95], s98 offen'
        q(t, maybe=True) if isinstance(q, Seq) else q(t)
        q('s_mov_b64 exec, -1\ns_add_u32 s98, s98, 4')
    def k2(q, extra='0'):
        q(f'''
        v_mbcnt_lo_u32_b32 v{T0}, -1, 0
        v_mbcnt_hi_u32_b32 v{T0}, -1, v{T0}
        v_and_b32 v{T0}, 15, v{T0}
        v_lshl_add_u32 v{T0}, v{T0}, 1, {extra}
        v_mov_b32_sdwa v{vX}, v{T0} dst_sel:WORD_1 dst_unused:UNUSED_PRESERVE src0_sel:WORD_0
        ''')
    def L1s(q, sig, p2=vP2, off=None):
        k = nid()
        q(f'''
        s_add_u32 s36, s{sU}, {32*(sig if off is None else off)}
        s_cmp_ge_u32 s36, s{sFAR}
        s_cbranch_scc1 B_far{k}
        B_farb{k}:
        v_add_u32_sdwa v{T0}, s36, v{vX} {SD} src1_sel:WORD_0
        ''')
        q(f'ds_read_b64 {vp(p2)}, v{T0}', tag=('ent', sig))
        stubs(f'''
        B_far{k}:
        s_cmp_ge_u32 s36, s{sUE}
        s_cselect_b32 s36, s{sFAR}, s36
        s_cbranch_scc1 B_farb{k}
        s_sub_u32 s37, s36, s{sROW}
        s_lshr_b32 s37, s37, 5
        s_mov_b32 s38, {-(-(1 << 32) // (8*NPH))}
        s_mul_hi_u32 s37, s37, s38
        s_mul_i32 s38, s37, {8*NPH*32}
        s_sub_u32 s36, s36, s38
        s_lshl_b32 s37, s37, 5
        ''')
        k2(stubs, 's37'); stubs(f's_branch B_farb{k}')
    def L2s(q, sig, quad, m0, m1, p2=vP2, wait=True):
        if wait: q.wait('l', [('ent', sig)])
        q(f'''
        v_cmp_lt_u32_sdwa {sp(m1)}, v{vX}, v{p2+1} src0_sel:WORD_1 src1_sel:WORD_1
        v_mad_u32_u16 v{T0}, v{vX}, 6, v{p2} op_sel:[1,0,0,0]
        v_cmpx_lt_u32_sdwa {sp(m0)}, v{vX}, v{p2+1} src0_sel:WORD_1 src1_sel:WORD_0
        ''')
        q(f'buffer_load_dwordx3 {vp(quad,3)}, v{T0}, s[8:11], 0 offen {recflags}', tag=('rec', sig))
        q('s_mov_b64 exec, -1')
        if sig == 0: q(f's_andn2_b64 {sp(m0)}, {sp(m0)}, {sp(sSKIP)}')
    def COS(q, quad, h, filler):
        q(f'''
        v_cvt_f32_bf16_sdwa v{T0}, v{quad+1} dst_sel:DWORD dst_unused:UNUSED_PAD src0_sel:WORD_{h}
        v_pk_mul_f32 {vp(T0)}, {vp(T0)}, {sp(sKF)} op_sel_hi:[0,1]
        ''')
        if 'nofract' not in diag: q(f'v_fract_f32 v{T0}, v{T0}\nv_fract_f32 v{T1}, v{T1}')
        q(f'''
        v_cos_f32 v{T0}, v{T0}
        v_cos_f32 v{T1}, v{T1}
        {filler}
        v_cvt_pk_bf16_f32 v{quad+1+2*h}, v{T0}, v{T1}
        ''')
    def A1(q, sig, quad, masks, par, live=True, p2=vP2):
        ex = lambda h: f's_and_b64 exec, {sp(masks[h])}, {sp(sLIVE)}' if live else f's_mov_b64 exec, {sp(masks[h])}'
        if live:
            COS(q, quad, 1, f'v_mov_b32 v{p2+1}, {INC}'); COS(q, quad, 0, ex(0))
        else: q(f'v_mov_b32 v{p2+1}, {INC}\n{ex(0)}')
        for h in range(2):
            if h: q(ex(1))
            q(f'v_lshlrev_b32_sdwa v{T0}, 2, v{quad+2*h} {SD} src1_sel:BYTE_0')
            q(f'ds_add_rtn_u32 v{p2+h}, v{T0}, v{p2+1} offset:{CNT+800*par}', tag=('ret', sig))
        q('s_mov_b64 exec, -1')
    def A2(q, sig, quad, masks, par, live=True, p2=vP2):
        for h in range(2):
            k = nid()
            q(f's_and_b64 exec, {sp(masks[h])}, {sp(sLIVE)}' if live else f's_mov_b64 exec, {sp(masks[h])}')
            q(f'''
            v_lshlrev_b32_sdwa v{T0}, 8, v{quad+2*h} {SD} src1_sel:BYTE_0
            v_cmp_le_u32 vcc, s{sLIM}, v{p2+h}
            v_and_or_b32 v{T0}, v{p2+h}, s{sF8}, v{T0}
            s_cbranch_vccnz B_sp{k}
            B_spb{k}:
            v_mov_b32_sdwa v{quad+2*h}, s{sEPA} dst_sel:BYTE_0 dst_unused:UNUSED_PRESERVE src0_sel:BYTE_0
            ''')
            q(f'ds_write_b64 v{T0}, {vp(quad+2*h)} offset:{[L0, L1][par]}')
            stubs(f'''
            B_sp{k}:
            v_mbcnt_lo_u32_b32 v{T1}, vcc_lo, 0
            v_mbcnt_hi_u32_b32 v{T1}, vcc_hi, v{T1}
            s_lshl_b32 s36, s{sSP}, 3
            s_add_u32 s36, s36, s{sSPB}
            v_lshl_add_u32 v{T1}, v{T1}, 3, s36
            s_bcnt1_i32_b64 s37, vcc
            s_add_u32 s{sSP}, s{sSP}, s37
            s_andn2_b64 s[36:37], exec, vcc
            s_mov_b64 exec, vcc
            ds_write_b64 v{T1}, {vp(quad+2*h)}
            s_mov_b64 exec, s[36:37]
            ''')
            if live:
                stubs(f'''
                s_cmp_le_u32 s{sSP}, {SPCAP-64}
                s_cbranch_scc1 B_spb{k}
                s_mov_b64 {sp(sLIVE)}, 0
                s_add_u32 s{sRES}, s{sU}, {32*sig + 16*(h+1)}
                ''')
            stubs(f's_branch B_spb{k}')
        q('s_mov_b64 exec, -1')
    def signal(q, off):
        q(f'''
        s_mov_b64 exec, 1
        v_mov_b32 v{T0}, 0
        v_mov_b32 v{T1}, 1
        ds_add_u32 v{T0}, v{T1} offset:{off}
        s_mov_b64 exec, -1
        ''')
    def peek(q, off): q(f'v_mov_b32 v{T0}, 0'); q(f'ds_read_b32 v{vP2}, v{T0} offset:{off}', tag='peek')
    def check(q, off):
        k = nid()
        q(f'''
        v_readfirstlane_b32 s36, v{vP2}
        s_cmp_lt_u32 s36, s{sTG}
        s_cbranch_scc1 B_sy{k}
        B_syb{k}:
        ''')
        stubs(f'''
        B_sy{k}:
        v_mov_b32 v{T0}, 0
        ds_read_b32 v{vP2}, v{T0} offset:{off}
        s_waitcnt lgkmcnt(0)
        v_readfirstlane_b32 s36, v{vP2}
        ''')
        if MAXSW < 1 << 30: stubs(f's_add_u32 s73, s73, 1\ns_cmp_gt_u32 s73, 2000000\ns_cbranch_scc1 B_syb{k}')
        stubs(f'''
        s_cmp_lt_u32 s36, s{sTG}
        s_cbranch_scc1 B_sy{k}
        s_branch B_syb{k}
        ''')
    def reads_done(q, par):
        k = nid()
        q(f's_add_u32 s36, s{sSW}, 1\ns_and_b32 s36, s36, 126\ns_cbranch_scc0 B_cl{k}\nB_clb{k}:')
        stubs(f'B_cl{k}:\nv_mov_b32 v{Q1}, s{sEPC}\nv_mov_b32 v{Q1+1}, 0')
        for v in range(24): stubs(f'ds_write_b64 v{vLB}, {vp(Q1)} offset:{[L0, L1][par] + v*256}')
        stubs(f's_cmp_lg_u32 s{sW24}, 0\ns_cbranch_scc1 B_clb{k}')
        stubs(f'ds_write_b64 v{vLB}, {vp(Q1)} offset:{[L0, L1][par] + 24*256}\ns_branch B_clb{k}')
        signal(q, DNR)
    def sweep_end(q, par, adv=True):
        k = nid()
        if par is not None: peek(q, DNA)
        if adv: q(f'''
        s_add_u32 s{sU}, s{sU}, {32*NS}
        s_mov_b64 {sp(sSKIP)}, 0
        s_cmp_eq_u32 s{sLIVE}, 0
        s_cbranch_scc1 B_st{k}
        B_stb{k}:
        ''')
        q(f's_add_u32 s{sSW}, s{sSW}, 1')
        if par is not None: q(f's_add_u32 s{sTG}, s{sTG}, 8')
        q(f'''
        s_mov_b32 s{sEPC}, s{sEPA}
        s_add_u32 s{sEPA}, s{sEPA}, 1
        s_and_b32 s{sEPA}, s{sEPA}, 255
        s_or_b32 s{sEP24}, s{sEPC}, s{sW24}
        s_waitcnt lgkmcnt(0)
        ''')
        if 'prebar' in diag: stamp(q)
        if par is None: q('s_barrier')
        else: check(q, DNA)
        stamp(q)
        if not adv: return
        stubs(f'''
        B_st{k}:
        s_and_b32 s{sU}, s{sRES}, 0xffffffe0
        s_bitcmp1_b32 s{sRES}, 4
        s_cselect_b64 {sp(sSKIP)}, -1, 0
        s_mov_b64 {sp(sLIVE)}, -1
        ''')
        k2(stubs); stubs(f's_branch B_stb{k}')
    def reappend(q, par):
        k = nid()
        q(f's_cmp_lg_u32 s{sSP}, 0\ns_cbranch_scc1 B_ra{k}\nB_rab{k}:')
        r = Seq()
        r(f'''
        B_ra{k}:
        v_mbcnt_lo_u32_b32 v{T0}, -1, 0
        v_mbcnt_hi_u32_b32 v{T0}, -1, v{T0}
        v_lshl_add_u32 v{T1}, v{T0}, 3, s{sSPB}
        ds_read_b64 {vp(Q0)}, v{T1}
        ds_read_b64 {vp(Q0+2)}, v{T1} offset:512
        v_cmp_gt_u32 s[44:45], s{sSP}, v{T0}
        v_add_u32 v{T0}, 64, v{T0}
        v_cmp_gt_u32 s[46:47], s{sSP}, v{T0}
        s_mov_b32 s{sSP}, 0
        s_waitcnt lgkmcnt(0)
        ''')
        A1(r, 99, Q0, (44, 46), par, live=False)
        r('s_waitcnt lgkmcnt(0)')
        A2(r, 99, Q0, (44, 46), par, live=False)
        r(f'''
        s_waitcnt lgkmcnt(0)
        s_cmp_le_u32 s{sSP}, {SPCAP-64}
        s_cbranch_scc1 B_rab{k}
        s_mov_b64 {sp(sLIVE)}, 0
        s_and_b32 s36, s{sSKIP}, 16
        s_add_u32 s{sRES}, s{sU}, s36
        s_branch B_rab{k}
        ''')
        tmp = Asm(); r.resolve(tmp, False); late.append(tmp.l)

    a.label(NAME)
    a(f'''
    s_cmp_ge_u32 s2, {NCU}
    s_cbranch_scc1 B_end
    s_load_dwordx2 s[56:57], s[0:1], {K_WS}
    s_load_dwordx2 s[54:55], s[0:1], {K_M}
    s_load_dwordx2 s[58:59], s[0:1], {K_DIST}
    s_load_dwordx4 s[60:63], s[0:1], {K_CEN}     ; centers, ang_freq
    s_load_dwordx8 s[64:71], s[0:1], {K_WRBF}
    s_and_b32 s{sD}, s2, 7
    s_lshl_b32 s{sD}, s{sD}, 5
    s_lshr_b32 s36, s2, 3
    s_add_u32 s{sD}, s{sD}, s36
    v_lshrrev_b32 v34, 6, v0
    v_mul_u32_u24 v35, 24, v0
    v_lshlrev_b32 v36, 2, v0                     ; x*4
    v_readfirstlane_b32 s3, v34
    s_mul_i32 s36, s{sD}, {256*48}
    v_and_b32 v37, 63, v0                        ; lane
    v_and_b32 v38, 15, v0                        ; n
    v_lshrrev_b32 v39, 5, v37                    ; h
    v_lshrrev_b32 v33, 4, v37                    ; q
    v_lshlrev_b32 v41, 1, v38
    v_lshl_add_u32 v40, v39, 8, v41              ; (8h)*32 + n*2
    s_mul_i32 s{sST}, s3, 25
    s_sub_i32 s37, s3, 4
    s_max_i32 s37, s37, 0
    s_sub_u32 s{sST}, s{sST}, s37
    s_mul_i32 s{sR0}, s{sD}, {EPC}
    s_add_u32 s{sRN}, s{sR0}, {EPC}
    s_and_b32 s{sR0}, s{sR0}, -4
    s_and_b32 s{sRN}, s{sRN}, -4
    s_sub_u32 s{sRN}, s{sRN}, s{sR0}
    s_lshl_b32 s37, s{sR0}, 1
    s_lshl_b32 s38, s{sRN}, 1
    s_waitcnt lgkmcnt(0)
    ''')
    srd(a, 12, 's56', 's57', TAB_OFF, TAB_BYTES)
    a(f'''
    s_load_dword s99, s[62:63], 0
    buffer_load_dwordx4 v[104:107], v35, s[12:15], s36 offen
    buffer_load_dwordx2 v[108:109], v35, s[12:15], s36 offen offset:16
    ''')
    srd(a, 76, 's68', 's69', None, 512)
    for k in range(8): a(f'buffer_load_ushort v{72+k}, v40, s[76:79], 0 offen offset:{32*k}')
    srd(a, 80, 's58', 's59', 's37', 's38')
    a(f'''
    s_lshl_b32 s36, s{sST}, 5
    v_lshlrev_b32 v32, 4, v37                    ; lane*16
    v_mov_b32 v96, v32
    buffer_load_dwordx4 v[80:83], v32, s[80:83], s36 offen
    v_lshl_add_u32 v42, v33, 7, v41              ; (4q)*32 + n*2
    v_lshl_add_u32 v43, v33, 6, v41              ; (2q)*32 + n*2
    v_lshlrev_b32 v44, 2, v33                    ; (2q)*2
    ''')
    R = 84
    srd(a, 84, 's70', 's71', None, 512)
    for k in range(4): a(f'buffer_load_ushort v{R+k}, v42, s[84:87], 0 offen offset:{32*k}')
    srd(a, 88, 's66', 's67', None, 512)
    for k in range(4): a(f'buffer_load_ushort v{R+4+k}, v42, s[88:91], 0 offen offset:{32*k}')
    srd(a, 72, 's64', 's65', None, 256)
    for k in range(2): a(f'buffer_load_ushort v{R+8+k}, v43, s[72:75], 0 offen offset:{32*k}')
    srd(a, 44, 's60', 's61', None, 16)
    for k in range(2): a(f'buffer_load_ushort v{R+10+k}, v44, s[44:47], 0 offen offset:{2*k}')
    srd(a, 4, 's54', 's55', None, 0 if 'nogather' in diag else E*32)
    srd(a, 8, 's56', 's57', None, REC_BYTES + 16)
    if 'stamp' in diag:
        srd(a, 92, 's56', 's57', 200000000, 1 << 20)
        a('s_lshl_b32 s98, s2, 3\ns_add_u32 s98, s98, s3\ns_lshl_b32 s98, s98, 8\nv_mov_b32 v42, v0')
        stamp(a, True); stamp(a); a('v_mov_b32 v0, v42')
    a(f'''
    v_lshlrev_b32 v41, 4, v0
    v_mov_b32 v42, 0
    v_mov_b32 v43, 0
    v_mov_b32 v44, 0
    v_mov_b32 v45, 0
    v_add_u32 v52, {L0}, v41
    v_add_u32 v53, {L1}, v41
    s_mul_i32 s39, s3, {TSZ}
    s_add_u32 s39, s39, {TBL}
    v_add_u32 v54, s39, v32
    ''')
    for k in range(6): a(f'ds_write_b128 v52, v[42:45] offset:{k*8192}')
    for k in range(TSZ // 1024): a(f'ds_write_b128 v54, v[42:45] offset:{k*1024}')
    if TSZ % 1024: a(f's_mov_b64 exec, {(1 << (TSZ % 1024 // 16)) - 1}\nds_write_b128 v54, v[42:45] offset:{TSZ // 1024 * 1024}\ns_mov_b64 exec, -1')
    assert L1 - L0 == 6*8192 + 1024 and TBL - L1 == 8*8192 + 1024
    a(f'''
    v_mov_b32 v98, v53
    v_cmp_gt_u32 s[14:15], 64, v0
    s_mov_b64 exec, s[14:15]
    ds_write_b128 v52, v[42:45] offset:{6*8192}
    s_mov_b64 exec, -1
    v_and_b32 v52, 31, v0
    v_lshlrev_b32 v52, 3, v52
    v_cmp_gt_u32 vcc, 200, v0
    s_mov_b64 exec, vcc
    ds_write_b32 v36, v52 offset:{CNT}
    ds_write_b32 v36, v52 offset:{CNT+800}
    ds_write_b96 v42, v[42:44] offset:{FLAG}
    s_mov_b64 exec, -1
    s_mov_b32 s{sEPC}, 0
    s_mov_b32 s{sEPA}, 1
    s_mov_b32 s{sNM32}, 0xffffffe0
    s_mov_b32 s{sLIM}, {32 << 16}
    s_mov_b32 s{sF8}, 0xf8
    s_mov_b32 s{sFFFF}, 0xffff
    s_mov_b32 s{sSP}, 0
    s_mov_b32 s{sRES}, 0
    s_mov_b64 {sp(sLIVE)}, -1
    s_mov_b64 {sp(sSKIP)}, 0
    s_mov_b32 s{sSW}, 0
    s_mul_i32 s{sSPB}, s3, {SPCAP*8}
    s_add_u32 s{sSPB}, s{sSPB}, {SPILL}
    s_cmp_lt_u32 s3, 4
    s_cselect_b32 s37, 25, 24
    s_cselect_b32 s{sW24}, 0, 0x100
    s_bfm_b32 s{sNG}, s37, 0
    s_mov_b32 s{sNG+1}, 0
    s_lshl_b32 s36, s{sST}, 8
    v_and_b32 v52, 31, v37                       ; record rho
    v_lshl_add_u32 v{vLB}, v52, 3, s36
    v_lshlrev_b32 v{vHALF}, 4, v39
    s_lshl_b32 s36, s3, 11
    s_add_u32 s36, s36, {PST}
    s_sub_u32 s37, s36, {PIMM}
    v_lshl_add_u32 v53, v39, 10, s37
    v_bfe_u32 v54, v52, 2, 2
    v_lshl_add_u32 v53, v54, 8, v53              ; + q*256
    v_lshrrev_b32 v54, 4, v52
    v_lshl_add_u32 v53, v54, 3, v53              ; + j*8
    v_and_b32 v54, 3, v52
    v_lshl_add_u32 v{vKC}, v54, 1, v53           ; + r*2
    v_lshl_add_u32 v54, v33, 8, s36
    v_lshl_add_u32 v{vPR}, v38, 4, v54           ; P base + q*256 + e*16
    v_lshlrev_b32 v{vX}, 3, v33
    v_lshl_or_b32 v{vX}, v38, 17, v{vX}          ; q*8 | (2e << 16)
    s_add_u32 s{sROW}, s39, {NXMAX*32}
    s_add_u32 s{sFAR}, s{sROW}, {8*NPH*32}
    v_and_b32 v53, 1, v33
    v_cmp_eq_u32 s[56:57], 0, v53                ; lanes whose record is in 0..15
    v_lshrrev_b32 v52, 1, v0                     ; tile j
    s_mov_b32 s36, {TSTRIDE}
    v_mul_u32_u24 v120, s36, v52
    v_and_b32 v53, 1, v0                         ; hh
    v_mul_u32_u24 v54, {6*256}, v53
    v_lshrrev_b32 v55, 1, v37
    v_lshl_add_u32 v54, v55, 3, v54
    v_add_u32 v121, s{sROW}, v54
    s_mov_b32 s{sU}, s{sROW}
    s_mov_b32 s{sUE}, s{sFAR}
    s_sub_u32 s13, s{sROW}, 32
    ''')
    if 'pro' in diag: stamp(a, T0=56, T1=57)
    a('s_waitcnt vmcnt(21)')
    if 'pro' in diag: stamp(a, T0=56, T1=57)
    N = 110
    for k in range(6): a(f'v_lshrrev_b32 v{N+k}, 16, v{104+k}')
    a(f'''
    v_max3_u32 v116, v{N}, v{N+1}, v{N+2}
    v_max3_u32 v116, v116, v{N+3}, v{N+4}
    v_max_u32 v116, v116, v{N+5}
    v_cmp_lt_u32 vcc, 32, v116
    s_cbranch_vccnz B_x
    B_xb:
    ''')
    def entry(q, k, r):
        q(f'''
        v_max_u32 v{r+1}, 1, v{N+k}
        v_mad_u32_u16 v{r}, v{104+k}, 6, v120
        v_subrev_u32 v{r+1}, 1, v{r+1}
        v_lshl_or_b32 v{r+1}, v{r+1}, 16, v{N+k}
        ''')
    def row(q, k):
        entry(q, k, 118)
        if 6 + k >= NPH: q('s_mov_b32 exec_lo, 0x55555555\ns_mov_b32 exec_hi, 0x55555555')
        q(f'ds_write_b64 v121, v[118:119] offset:{k*256}')
        if 6 + k >= NPH: q('s_mov_b64 exec, -1')
    stubs(f'B_x:\ns_mov_b32 s{sNX}, 0')
    for k in range(6):
        entry(stubs, k, 118)
        stubs(f'''
        v_cmp_lt_u32 vcc, 32, v{N+k}
        v_add_u32 v118, 192, v118
        v_subrev_u32 v119, {32 + (32 << 16)}, v119
        v_mbcnt_lo_u32_b32 v117, vcc_lo, 0
        v_mbcnt_hi_u32_b32 v117, vcc_hi, v117
        s_bcnt1_i32_b64 s37, vcc
        v_add_u32 v117, s{sNX}, v117
        s_add_u32 s{sNX}, s{sNX}, s37
        s_cmp_gt_u32 s{sNX}, {4*NXMAX}
        s_cselect_b64 vcc, 0, vcc
        s_sub_u32 s37, s{sROW}, 8
        v_lshlrev_b32 v117, 3, v117
        v_sub_u32 v117, s37, v117                ; extra entries grow downwards from the first row
        s_mov_b64 exec, vcc
        ds_write_b64 v117, v[118:119]
        s_mov_b64 exec, -1
        ''')
    for sh in ('row_shr:1 row_mask:0xf', 'row_shr:2 row_mask:0xf', 'row_shr:4 row_mask:0xf', 'row_shr:8 row_mask:0xf', 'row_bcast:15 row_mask:0xa', 'row_bcast:31 row_mask:0xc'):
        stubs(f'v_max_u32_dpp v116, v116, v116 {sh} bank_mask:0xf')
    stubs(f'''
    v_readlane_b32 s36, v116, 63                 ; longest segment of this wave
    s_add_u32 s37, s{sNX}, 3
    s_lshr_b32 s37, s37, 2
    s_lshl_b32 s37, s37, 5
    s_sub_u32 s{sU}, s{sROW}, s37
    s_cmp_gt_u32 s{sNX}, {4*NXMAX}
    s_cselect_b32 s37, 65, 0
    s_max_u32 s37, s37, s36
    s_cmp_gt_u32 s37, 64
    s_cbranch_scc0 B_xb
    s_mov_b32 s{sU}, s{sROW}                     ; general case: every phase once per chunk of 32 records
    s_add_u32 s36, s36, 31
    s_lshr_b32 s36, s36, 5
    s_mul_i32 s36, s36, {8*NPH*32}
    s_add_u32 s{sUE}, s{sROW}, s36
    s_mov_b32 s13, s{sFAR}
    s_branch B_xb
    ''')
    q = Seq()
    SL = list(range(-1, NS))
    pq = lambda s: 20 + 4*s
    pm = lambda s: (40, 42) if s < 0 else ((58 + 4*s, 60 + 4*s) if s < 3 else (60 + 4*s, 62 + 4*s))
    pp = lambda s: 54 + 2*(s + 1)
    row(q, 0)
    q('s_waitcnt lgkmcnt(0)')
    for s in SL:
        q(f's_add_u32 s36, s{sROW}, {32*s}' if s >= 0 else 's_mov_b32 s36, s13')
        q(f'v_add_u32_sdwa v{T0}, s36, v{vX} {SD} src1_sel:WORD_0')
        q(f'ds_read_b64 {vp(pp(s))}, v{T0}', tag=('ent', s))
    for s in SL: L2s(q, s, pq(s), *pm(s), pp(s))
    for k in range(1, 6): row(q, k)
    q(f'''
    s_lshl_b32 s36, s99, 16
    s_and_b32 s37, s99, 0xffff0000
    v_mov_b32 v116, s36
    v_mov_b32 v117, s37
    v_mul_f32 v116, 0.15915494, v116
    v_mul_f32 v117, 0.15915494, v117
    v_readfirstlane_b32 s{sKF}, v116
    v_readfirstlane_b32 s{sKF+1}, v117
    ''')
    a_ = a; a = q
    stamp(q)
    a = a_
    import struct, math
    SQ = struct.unpack('<I', struct.pack('<f', math.sqrt(10*math.log2(math.e))))[0]
    def operands(q):
        for k in range(4):
            q(f'''
            v_lshl_or_b32 v{72+2*k}, v{73+2*k}, 16, v{72+2*k}
            v_cndmask_b32 v{W+4+k}, v{72+2*k}, 0, s[56:57]
            v_cndmask_b32 v{W+k}, 0, v{72+2*k}, s[56:57]
            ''')
        if 'ident' in diag:
            q(f'''
            v_lshrrev_b32 v97, 4, v96                ; lane
            v_and_b32 v72, 15, v97
            v_lshrrev_b32 v73, 5, v97
            v_lshlrev_b32 v73, 3, v73
            v_sub_u32 v72, v72, v73                  ; n - 8h
            s_mov_b32 s36, 0x3f80
            s_mov_b32 s37, 0x3f800000
            ''')
            for k in range(4):
                q(f'''
                v_cmp_eq_u32 vcc, {2*k}, v72
                v_mov_b32 v73, s36
                v_mov_b32 v74, s37
                v_cndmask_b32 v75, 0, v73, vcc
                v_cmp_eq_u32 vcc, {2*k+1}, v72
                s_nop 1
                v_cndmask_b32 v75, v75, v74, vcc
                v_cndmask_b32 v{W+4+k}, v75, 0, s[56:57]
                v_cndmask_b32 v{W+k}, 0, v75, s[56:57]
                ''')
        q(f'''
        s_lshl_b32 s36, s3, 10
        s_add_u32 s36, s36, {DST}
        v_add_u32 v97, s36, v96
        ds_write_b128 v97, v[80:83]
        v_lshl_or_b32 v72, v{R+1}, 16, v{R}          ; w_up
        v_lshl_or_b32 v73, v{R+3}, 16, v{R+2}
        v_lshl_or_b32 v74, v{R+6}, 16, v{R+4}
        v_lshl_or_b32 v75, v{R+7}, 16, v{R+5}
        v_lshl_or_b32 v76, v{R+9}, 16, v{R+8}        ; w_rbf
        v_mov_b32 v77, 0
        v_lshlrev_b32 v78, 16, v{R+10}
        v_lshlrev_b32 v79, 16, v{R+11}
        v_mul_f32 v78, {(SQ | 0x80000000):#x}, v78   ; -center*s
        v_mul_f32 v79, {(SQ | 0x80000000):#x}, v79
        v_add_u32 v97, {WST}, v96
        ds_write_b128 v97, v[72:75]
        ds_write_b128 v97, v[76:79] offset:1024
        ''')
        for k in range(100, 104): q(f'v_mov_b32 v{k}, 0')
        for k in range(8):
            q(f'ds_write_b128 v98, v[100:103] offset:{k*8192}')
            for r in range(104 + 19*k, 104 + 19*k + 19): q(f'v_mov_b32 v{r}, 0')
        q(f'v_add_u32 v98, {8*8192}, v98\ns_mov_b64 exec, s[14:15]\nds_write_b128 v98, v[100:103]\ns_mov_b64 exec, -1')
    q(f's_waitcnt vmcnt({len(SL)})')
    operands(q)
    if 'pro' in diag: stamp(q)
    q('s_waitcnt lgkmcnt(0)\ns_barrier')
    q(f'B_xl:\ns_add_u32 s36, s{sU}, 32\ns_cmp_ge_u32 s36, s{sROW}\ns_cbranch_scc1 B_xe')
    L1s(q, 100, 108, off=0); L2s(q, 100, 104, 44, 46, 108)
    q('s_waitcnt vmcnt(0)'); A1(q, 100, 104, (44, 46), 0, p2=108)
    q('s_waitcnt lgkmcnt(0)'); A2(q, 0, 104, (44, 46), 0, p2=108)
    q(f's_cmp_eq_u32 s{sLIVE}, 0\ns_cbranch_scc1 B_pz\ns_add_u32 s{sU}, s{sU}, 32\ns_branch B_xl\nB_xe:')
    for o in q.o[-60:]:
        if o.get('tag') in (('rec', 100), ('ent', 100), ('ret', 100)) or (o['c'] and o['tag'] is None and 'v[10' in (o['t'] or '')): o['maybe'] = True
    q(f's_mov_b32 s{sU}, s{sROW}')
    if 'pro' in diag: stamp(q)
    TP = lambda s, h: 72 + 4*((s + 1) % 6) + 2*h
    def cos2(ss):
        for st in range(5):
            for s in ss:
                for h in (1, 0):
                    t = TP(s, h)
                    q([f'v_cvt_f32_bf16_sdwa v{t}, v{pq(s)+1} dst_sel:DWORD dst_unused:UNUSED_PAD src0_sel:WORD_{h}',
                       f'v_pk_mul_f32 {vp(t)}, {vp(t)}, {sp(sKF)} op_sel_hi:[0,1]',
                       f'v_fract_f32 v{t}, v{t}\nv_fract_f32 v{t+1}, v{t+1}',
                       f'v_cos_f32 v{t}, v{t}\nv_cos_f32 v{t+1}, v{t+1}',
                       f'v_cvt_pk_bf16_f32 v{pq(s)+1+2*h}, v{t}, v{t+1}'][st])
    for k in range(0, len(SL), 3):
        for s in SL[k:k+3]:
            q.wait('v', [('rec', s)])
            A1(q, s, pq(s), pm(s), 0, live=False, p2=pp(s))
        cos2(SL[k:k+3])
    for s in SL:
        q.wait('l', [('ret', s)]); A2(q, s, pq(s), pm(s), 0, p2=pp(s))
    if 'pro' in diag: stamp(q)
    q('B_pz:')
    q(f'B_pe:\ns_mov_b64 s[72:73], 0')
    for v in range(5): q(f'v_mov_b32 v{PK(v)}, v{vKC}\ns_mov_b64 {sp(MK(v))}, 0')
    for k in list(range(G, G+12)) + list(range(U, U+16)) + list(range(56, 100)) + list(range(104, 110)): q(f'v_mov_b32 v{k}, 0')
    sweep_end(q, None)
    q.resolve(a, False)

    MF = 'v_mfma_f32_16x16x32_bf16'
    GS = lambda v: Q0 if v == 24 else G + 4*(v % 3)
    def setprio(q, v, tag):
        if v in prio:
            if prio.index(v) % 2 == 0:
                q(f's_cmp_eq_u32 s{sW24}, 0\ns_cbranch_scc1 B_pr{tag}_{v}\ns_setprio 1\nB_pr{tag}_{v}:')
            else: q('s_setprio 0')
    def step(q, par, v, LB, visit=True):
        av = (v - 3) % NV; ap = par if v >= 3 else 1-par
        bv = (v - 4) % NV
        if v: q.wait('l', [('pr', par, v - 1)])
        q(f'{MF} {vp(ACC(bv),4)}, {vp(XB,4)}, {vp(U,4)}, {vp(ACC(bv),4)}', drop='nomfma' in diag)
        q(f'{MF} {vp(ACC(bv)+4,4)}, {vp(XB,4)}, {vp(U+4,4)}, {vp(ACC(bv)+4,4)}', drop='nomfma' in diag)
        if not visit and v == 3: return
        if visit:
            if v == 0: q.wait('l', [('lst', par, 0)])
            q(f'''
            v_bfe_u32 v{T0}, v{LP}, 8, 4
            v_and_b32 v{T1}, s{sFFFF}, v{PK(av)}
            v_lshl_add_u32 v{PK(v)}, v{T0}, 4, v{vKC}
            v_and_b32 v{T0}, s{sFFFF}, v{PK(bv)}
            v_cmpx_eq_u32_sdwa {sp(MK(v))}, s{sEP24 if v == 24 else sEPC}, v{LP} src0_sel:DWORD src1_sel:BYTE_0
            v_lshrrev_b32 v{LP}, 7, v{LP}
            v_lshrrev_b32_sdwa v{PK(v)}, v{vHALF}, v{LP+1} dst_sel:WORD_1 dst_unused:UNUSED_PRESERVE src0_sel:DWORD src1_sel:DWORD
            v_and_or_b32 v{LP}, v{LP}, s{sNM32}, v{vHALF}
            ''')
        else: q(f'v_and_b32 v{T1}, s{sFFFF}, v{PK(av)}\nv_and_b32 v{T0}, s{sFFFF}, v{PK(bv)}')
        q.wait('v', [('gat', ap, av)])
        q(f'{MF} {vp(U,4)}, {vp(GS(av),4)}, {vp(W,4)}, 0', drop='nomfma' in diag)
        q(f'{MF} {vp(U+4,4)}, {vp(GS(av),4)}, {vp(W+4,4)}, 0', drop='nomfma' in diag)
        if visit: q(f'buffer_load_dwordx4 {vp(GS(v),4)}, v{LP}, s[4:7], 0 offen', tag=('gat', par, v), drop='nodma' in diag)
        q(f's_mov_b64 exec, {sp(MK(bv))}')
        q(f'ds_write_b16_d16_hi v{T0}, v{vHALF} offset:{PIMM}', drop='nopw' in diag)
        q(f's_mov_b64 exec, {sp(MK(av))}')
        q(f'ds_write_b16_d16_hi v{T1}, v{PK(av)} offset:{PIMM}', drop='nopw' in diag)
        q('s_mov_b64 exec, -1')
        if visit and v + 1 < NV: q(f'ds_read_b64 {vp(LP)}, v{vLB} offset:{LB + (v+1)*256}', tag=('lst', par, v+1))
        for k in range(4): q(f'v_cvt_pk_bf16_f32 v{XB+k}, v{U+2*k}, v{U+2*k+1}')
        q(f'ds_read_b128 {vp(U,4)}, v{vPR}', drop='nopr' in diag)
        q(f'ds_read_b128 {vp(U+4,4)}, v{vPR} offset:1024', tag=('pr', par, v), drop='nopr' in diag)
        if visit and v == 23:
            for k in range(4): q(f'v_mov_b32 v{Q0+k}, 0')
    def cntreset(q, off):
        q(f'''
        v_mbcnt_lo_u32_b32 v{T0}, -1, 0
        v_mbcnt_hi_u32_b32 v{T0}, -1, v{T0}
        v_add_u32 v{T0}, s{sST}, v{T0}
        v_and_b32 v{T1}, 31, v{T0}
        v_lshl_add_u32 v{T0}, v{T0}, 2, {off}
        v_lshlrev_b32 v{T1}, 3, v{T1}
        s_mov_b64 exec, {sp(sNG)}
        ds_write_b32 v{T0}, v{T1} offset:{CNT}
        ''')
    q = Seq()
    for par in range(2):
        LB = [L0, L1][par]
        q(f'B_loop{par}:')
        if MAXSW < 1 << 30: q(f's_cmp_gt_u32 s{sSW}, {MAXSW}\ns_cbranch_scc1 B_epi')
        q(f'''
        s_cmp_lt_u32 s{sU}, s{sUE}
        s_cselect_b32 s36, 1, s{sSP}
        s_cmp_eq_u32 s36, 0
        s_cbranch_scc1 B_free{par}
        ''')
        q(f'ds_read_b64 {vp(LP)}, v{vLB} offset:{LB}', tag=('lst', par, 0))
        for v in range(NV):
            setprio(q, v, par)
            step(q, par, v, LB)
            qd = lambda s: Q1 - 4*(s % 2); mk = lambda s: (40 + 4*(s % 2), 42 + 4*(s % 2))
            for s in range(NS):
                if v == APOS[s] + DA + 1: q.wait('l', [('ret', s)]); A2(q, s, qd(s), mk(s), 1-par)
            if v == APOS[-1] + DA + 1: signal(q, DNA)
            if v == NV - 2: reads_done(q, par)
            for s in range(NS):
                if v == APOS[s]: L2s(q, s, qd(s), *mk(s))
            if v == 1: peek(q, DNR)
            if v == 2: q.wait('l', ['peek']); check(q, DNR); reappend(q, 1-par)
            for s in range(NS):
                if v == APOS[s] - 1: L1s(q, s)
                if v == APOS[s] + DA: q.wait('v', [('rec', s)]); A1(q, s, qd(s), mk(s), 1-par)
            if v == 0:
                if par: q('s_movk_i32 s36, 800')
                cntreset(q, 's36' if par else '0')
                q(f'''
                s_mov_b64 exec, 1
                v_mov_b32 v{T0}, s{sSW}
                v_mov_b32 v{T1}, 0
                ds_max_u32 v{T1}, v{T0} offset:{FLAG}
                s_mov_b64 exec, -1
                ''')
        sweep_end(q, par)
    q('s_branch B_loop0')
    q.resolve(a, True)
    q = Seq()
    q(f'''
    B_free1:
    s_mov_b32 s{sDID}, {L1 - L0}
    s_branch B_free
    B_free0:
    s_mov_b32 s{sDID}, 0
    B_free:
    v_mov_b32 v{T0}, 0
    v_add_u32 v{vLB}, s{sDID}, v{vLB}
    ds_read_b32 v{vF}, v{T0} offset:{FLAG}
    ''')
    q(f'ds_read_b64 {vp(LP)}, v{vLB} offset:{L0}', tag=('lst', 0, 0))
    q(f'''
    s_waitcnt lgkmcnt(1)
    v_readfirstlane_b32 s36, v{vF}
    s_add_u32 s36, s36, 1
    s_cmp_lt_u32 s36, s{sSW}
    s_cbranch_scc1 B_epi
    ''')
    for v in (22, 23, 24): q('buffer_x', tag=('gat', 1, v)); q.o[-1]['t'] = ''
    for v in range(NV):
        setprio(q, v, 'f')
        step(q, 0, v, L0)
        if v == 0:
            q(f's_cmp_lg_u32 s{sDID}, 0\ns_cselect_b32 s36, 800, 0')
            cntreset(q, 's36'); signal(q, DNA)
        if v == NV - 2: reads_done(q, 0)
    sweep_end(q, 0, adv=False)
    q(f'''
    v_subrev_u32 v{vLB}, s{sDID}, v{vLB}
    s_cmp_lg_u32 s{sDID}, 0
    s_cbranch_scc1 B_loop0
    s_branch B_loop1
    ''')
    q.resolve(a, False)

    a.label('B_epi')
    stamp(a)
    a(f'''
    s_setprio 0
    s_load_dwordx2 s[72:73], s[0:1], {K_OUT}
    s_lshl_b32 s36, s{sR0}, 5
    s_lshl_b32 s43, s{sRN}, 5
    v_mbcnt_lo_u32_b32 v{vLB}, -1, 0
    v_mbcnt_hi_u32_b32 v{vLB}, -1, v{vLB}        ; lane
    s_lshl_b32 s38, s{sST}, 9
    s_lshl_b32 s39, s{sST}, 8
    s_add_u32 s40, s39, {L1}                     ; piece 1
    s_add_u32 s39, s39, {L0}                     ; piece 0
    s_mul_i32 s41, s3, {TSZ}
    s_add_u32 s41, s41, {TBL}                    ; piece 2
    v_lshlrev_b32 v{vX}, 4, v{vLB}
    ''')
    srd(a, 12, 's54', 's55', 's36', 's43')
    piece = lambda pr: (39 + min(pr // 6, 2), (pr % 6)*1024)
    q = Seq()
    for v in (22, 23, 24): q('buffer_x', tag=('gat', 1, v)); q.o[-1]['t'] = ''
    q('s_waitcnt lgkmcnt(0)')
    def mdma(pr):
        sg, off = piece(pr)
        q(f's_add_u32 m0, s{sg}, {off}\ns_add_u32 s42, s38, {pr*1024}')
        q(f'buffer_load_dwordx4 v{vX}, s[12:15], s42 offen lds', tag=('m', pr))
    for v in range(4):
        for pr in range(EDM*v, EDM*v + EDM): mdma(pr)
        step(q, 0, v, L0, visit=False)
    t = Asm(); srd(t, 8, 's72', 's73', 's36', 's43'); q('\n'.join(t.l))
    if 'epi' in diag: stamp(q)
    WU, W0, W1, WR, CS, RB, TT, DD, MM, A0, VV = 8, 10, 12, 14, 0, 16, 20, 24, 28, 32, 48
    TMP = 7
    q(f'''
    v_lshrrev_b32 v3, 4, v{vLB}                  ; q
    v_and_b32 v2, 15, v{vLB}                     ; e
    v_add_u32 v5, {WST}, v{vX}
    ds_read_b128 v[44:47], v5
    ds_read_b128 v[48:51], v5 offset:1024
    s_lshl_b32 s37, s3, 10
    s_add_u32 s37, s37, {DST}
    v_lshl_add_u32 v5, v2, 1, s37
    v_lshlrev_b32 v4, 5, v2
    v_lshl_add_u32 v4, v3, 3, v4                 ; e*32 + q*8
    v_add_u32 v2, s39, v4
    v_add_u32 v3, s40, v4
    v_add_u32 v4, s41, v4
    s_mov_b32 s43, 0xffff0000
    s_mov_b32 s44, {SQ:#x}
    s_mov_b32 s45, {SQ:#x}
    v_mov_b32 v{RB+1}, 0
    v_mov_b32 v{RB+3}, 0
    v_mov_b32 v{W0+1}, 0
    v_mov_b32 v{W1+1}, 0
    v_mov_b32 v{WR+1}, 0
    ''')
    def drd(p):
        for h in range(2): q(f'ds_read_u16 v{DD + 2*(p % 2) + h}, v5 offset:{32*(2*p+h)}', tag=('d', p))
    drd(0); drd(1)
    q(f'''
    s_waitcnt lgkmcnt(4)
    v_mov_b32 v{WU}, v44
    v_mov_b32 v{WU+1}, v45
    v_mov_b32 v{W0}, v46
    v_mov_b32 v{W1}, v47
    v_mov_b32 v{WR}, v48
    v_mov_b32 v{CS}, v50
    v_mov_b32 v{CS+1}, v51
    ''')
    MF = 'v_mfma_f32_16x16x16_bf16'
    HS = lambda p: (0, 1) if p < 12 else (0,)
    VR = lambda p, h: VV + 4*h
    lds = lambda v: (2 + min(v // 12, 2), (v % 12)*512)
    def E1(p):
        d = DD + 2*(p % 2); H2 = HS(p)
        q.wait('l', [('d', p)])
        for h in H2: q(f'v_lshlrev_b32 v{d+h}, 16, v{d+h}')
        for h in H2: q(f'v_pk_fma_f32 {vp(TT+2*h)}, {vp(d)}, s[44:45], {vp(CS)} op_sel:[{h},0,0] op_sel_hi:[{h},0,1]')
        if p + 2 <= 12: drd(p + 2)
        for h in H2: q(f'v_pk_mul_f32 {vp(TT+2*h)}, {vp(TT+2*h)}, {vp(TT+2*h)} neg_lo:[0,1] neg_hi:[0,1]')
        for h in H2: q(f'v_exp_f32 v{TT+2*h}, v{TT+2*h}\nv_exp_f32 v{TT+2*h+1}, v{TT+2*h+1}')
        if 4*EDM + p < 13: mdma(4*EDM + p)
        for h in H2: q(f'v_cvt_pk_bf16_f32 v{RB+2*h}, v{TT+2*h}, v{TT+2*h+1}')
        for h in H2:
            q(f'{MF} {vp(A0+8*h,4)}, {vp(W0)}, {vp(RB+2*h)}, 0')
            q(f'{MF} {vp(A0+8*h+4,4)}, {vp(W1)}, {vp(RB+2*h)}, 0')
    def E2(p):
        H2 = HS(p)
        q.wait('v', [('m', p)])
        for h in H2:
            b, off = lds(2*p + h)
            q(f'ds_read_b64 {vp(MM + 2*h)}, v{b} offset:{off}', tag=('mm', p))
        for k in (0, 2):
            for h in H2: q(f'v_pk_mul_f32 {vp(ACC(2*p+h)+k)}, {vp(ACC(2*p+h)+k)}, {vp(A0+8*h+k)}')
        for k in (0, 2):
            for h in H2: q(f'v_pk_fma_f32 {vp(ACC(2*p+h)+k)}, {vp(ACC(2*p+h)+4+k)}, {vp(A0+8*h+4+k)}, {vp(ACC(2*p+h)+k)}')
        for k in (0, 1):
            for h in H2: q(f'v_cvt_pk_bf16_f32 v{ACC(2*p+h)+k}, v{ACC(2*p+h)+2*k}, v{ACC(2*p+h)+2*k+1}')
        for h in H2: q(f'{MF} {vp(VR(p,h),4)}, {vp(WR)}, {vp(RB+2*h)}, 0')
        for h in H2: q(f'{MF} {vp(ACC(2*p+h)+4,4)}, {vp(WU)}, {vp(ACC(2*p+h))}, 0')
    def E3(p):
        H2 = HS(p)
        q.wait('l', [('mm', p)])
        for k in (0, 1):
            for h in H2:
                q(f'v_lshlrev_b32 v{ACC(2*p+h)+2*k}, 16, v{MM+2*h+k}\nv_and_b32 v{ACC(2*p+h)+2*k+1}, s43, v{MM+2*h+k}')
        for k in (0, 2):
            for h in H2: q(f'v_pk_fma_f32 {vp(ACC(2*p+h)+k)}, {vp(ACC(2*p+h)+4+k)}, {vp(VR(p,h)+k)}, {vp(ACC(2*p+h)+k)}')
        for k in (0, 1):
            for h in H2: q(f'v_cvt_pk_bf16_f32 v{ACC(2*p+h)+k}, v{ACC(2*p+h)+2*k}, v{ACC(2*p+h)+2*k+1}')
        sg, off2 = piece(p)
        q(f's_add_u32 s42, s{sg}, {off2}\nv_add_u32 v{TMP}, s42, v{vX}')
        for h in H2:
            b, off = lds(2*p + h)
            q(f'ds_write_b64 v{b}, {vp(ACC(2*p+h))} offset:{off}')
        q(f'ds_read_b128 {vp(ACC(min(2*p+1, 24)),4)}, v{TMP}', tag=('o', p))
    def ST(pr):
        A = ACC(min(2*pr + 1, 24))
        q(f's_add_u32 s42, s38, {pr*1024}')
        q.wait('l', [('o', pr)])
        q(f'buffer_store_dwordx4 {vp(A,4)}, v{vX}, s[8:11], s42 offen {stf}')
    E1(0)
    if 'epi' in diag: stamp(q, T0=TT, T1=TT+1)
    for p in range(12):
        E2(p); E1(p + 1)
        if p >= 1: ST(p - 1)
        E3(p)
    ST(11)
    if 'epi' in diag: stamp(q, T0=TT, T1=TT+1)
    q('s_cmp_ge_u32 s3, 4\ns_cbranch_scc1 B_last')
    E2(12); E3(12)
    q('s_mov_b32 exec_hi, 0')
    ST(12)
    q.resolve(a, False)
    a.label('B_last')
    if 'stamp' in diag:
        a('s_mov_b64 exec, -1\ns_waitcnt vmcnt(0)')
        stamp(a); stamp(a, True)
    a.label('B_end')
    a('s_endpgm')
    out = a.l + stubs.l
    for l in late: out += l
    return out
```

```python
from common import *
import os
NAME = 'bin_kernel'
LDS = 163840
H = int(os.environ.get('HH', 17728)); SB = 12416; WT = 12352
assert 3*H >= TMAX + 256*NPH and (TMAX + 256*NPH)*6 <= TSTRIDE
SD = 'dst_sel:DWORD dst_unused:UNUSED_PAD src0_sel:DWORD'
def gen(PF=8, ldf='nt', mpf=140, stag=0, oob=True, hold=10, stf='sc1', late=False, fused=False, diag=()):
    a = Asm()
    def stamp(real=False):
        if 'stamp' not in diag: return
        a(f'''
        {'s_memrealtime' if real else 's_memtime'} s[76:77]
        s_waitcnt lgkmcnt(0)
        v_mov_b32 v30, s76
        v_mov_b32 v31, 0
        s_mov_b64 exec, 1
        buffer_store_dword v30, v31, s[72:75], s78 offen
        s_mov_b64 exec, -1
        s_add_u32 s78, s78, 4
        ''')
    NGR = 25
    RG = lambda q: 56 + 8*q
    R0 = lambda k: 56 + 2*k
    R1 = lambda k: 57 + 2*k
    TA = lambda q: 56 - 2*PF + 2*(q % PF)
    a.label(FNAME if fused else NAME)
    a(f'''
    s_cmp_ge_u32 s2, {NCU}
    s_cbranch_scc1 {'B_end' if fused else 'A_end'}
    s_load_dwordx2 s[80:81], s[0:1], {K_DBG}
    s_load_dwordx4 s[36:39], s[0:1], {K_II}
    s_load_dwordx2 s[40:41], s[0:1], {K_ANG}
    s_load_dwordx2 s[44:45], s[0:1], {K_WS}
    s_load_dwordx2 s[42:43], s[0:1], {K_M}
    s_load_dwordx2 s[62:63], s[0:1], {K_DIST}
    s_mul_i32 s47, s2, {TILE}
    s_add_u32 s49, s47, {TILE}
    s_and_b32 s47, s47, 0xffffffc0
    s_and_b32 s49, s49, 0xffffffc0
    s_sub_u32 s49, s49, s47
    s_lshl_b32 s46, s47, 2
    s_lshl_b32 s47, s47, 1
    s_lshl_b32 s50, s49, 2
    s_lshl_b32 s51, s49, 1
    s_mul_i32 s48, s2, {TSTRIDE}
    v_lshlrev_b32 v1, 4, v0                      ; x*16
    v_lshlrev_b32 v2, 3, v0                      ; x*8
    v_mov_b32 v3, 1
    v_mov_b32 v4, 0
    v_mov_b32 v5, 0
    v_mov_b32 v6, 0
    v_mov_b32 v7, 0
    s_waitcnt lgkmcnt(0)
    ''')
    srd(a, 4, 's36', 's37', 's46', 's50')
    srd(a, 8, 's38', 's39', 's46', 's50')
    srd(a, 12, 's40', 's41', 's47', 's51')
    def loads(q):
        a(f's_mov_b32 s50, {q*8192}\ns_mov_b32 s51, {q*4096}')
        a(f'buffer_load_dwordx4 v[{RG(q)}:{RG(q)+3}], v1, s[4:7], s50 offen {ldf}')
        a(f'buffer_load_dwordx4 v[{RG(q)+4}:{RG(q)+7}], v1, s[8:11], s50 offen {ldf}')
        a(f'buffer_load_dwordx2 v[{TA(q)}:{TA(q)+1}], v2, s[12:15], s51 offen {ldf}')
    if 'stamp' in diag:
        srd(a, 72, 's44', 's45', 200000000, 1 << 20)
        a('v_lshrrev_b32 v8, 6, v0\ns_nop 1\nv_readfirstlane_b32 s3, v8\ns_lshl_b32 s78, s2, 3\ns_add_u32 s78, s78, s3\ns_lshl_b32 s78, s78, 8')
        stamp(True); stamp(); a('s_waitcnt vmcnt(0)')
    def slow(tag):
        a(f's_bitcmp1_b32 s2, 3\ns_cbranch_scc0 A_f{tag}\ns_waitcnt vmcnt(0)\nA_f{tag}:')
    for q in range(PF):
        loads(q)
        if q < stag: slow(q)
    for k in range(2): a(f'ds_write_b128 v1, v[4:7] offset:{k*8192}')
    srd(a, 16, 's44', 's45', 's48', H*6)
    srd(a, 20, 's44', 's45', TAB_OFF, TAB_BYTES)
    srd(a, 64, 's42', 's43', None, E*32)
    srd(a, 68, 's62', 's63', None, E*2)
    a(f'''
    s_mov_b32 s24, 1374390
    s_mov_b32 s25, {EPC}
    s_mov_b32 s26, {MPH}
    s_mov_b32 s27, 0xffff0000
    s_mov_b32 s28, 0xffff
    s_mov_b32 s29, {H}
    s_mov_b32 s33, 0x07060302
    s_sub_u32 s32, s49, {24*2048}
    s_lshr_b32 s32, s32, 2
    v_cmp_gt_u32 s[30:31], s32, v0
    v_lshrrev_b32 v8, 6, v0
    s_waitcnt lgkmcnt(0)
    v_readfirstlane_b32 s3, v8
    s_barrier
    ''')
    def prefetch(pos):
        if mpf != pos: return
        a(f'''
        v_lshlrev_b32 v9, 7, v0
        s_mul_i32 s50, s2, {EPC*32}
        s_and_b32 s50, s50, 0xffffff80
        s_add_u32 s51, s50, 65536
        s_mul_i32 s52, s2, {EPC*2}
        s_and_b32 s52, s52, 0xffffff80
        s_mov_b32 m0, 160000
        s_nop 0
        buffer_load_dword v9, s[64:67], s50 offen lds
        v_cmp_gt_u32 vcc, {(EPC*32 + 127 + 127)//128 - 512}, v0
        s_mov_b64 exec, vcc
        buffer_load_dword v9, s[64:67], s51 offen lds
        s_mov_b64 exec, -1
        v_cmp_gt_u32 vcc, 50, v0
        s_mov_b64 exec, vcc
        buffer_load_dword v9, s[68:71], s52 offen lds
        s_mov_b64 exec, -1
        ''')
    for q in range(NGR):
        issued = min(NGR, q + PF)
        a(f's_waitcnt vmcnt({3*(issued - q - 1)})')
        if q == NGR-1: a('s_mov_b64 exec, s[30:31]')
        td = [12, 13, 14, 15]; tp = [16, 17, 18, 19]; tl = [20, 21, 22, 23]
        I = lambda e: RG(q) + e; O = lambda e: RG(q) + 4 + e
        for e in range(4): a(f'v_or_b32 v{td[e]}, 3, v{O(e)}')
        for e in range(4): a(f'v_mul_hi_u32_u24 v{tp[e]}, s26, v{I(e)}')
        for e in range(4): a(f'v_mul_hi_u32_u24 v{td[e]}, s24, v{td[e]}')
        for e in range(4): a(f'v_mul_u32_u24 v{tl[e]}, s25, v{td[e]}')
        for e in range(4): a(f'v_and_b32 v{tl[e]}, -4, v{tl[e]}')
        for e in range(4): a(f'v_sub_u32 v{tl[e]}, v{O(e)}, v{tl[e]}')
        for e in range(4): a(f'v_lshl_or_b32 v{tp[e]}, v{tp[e]}, 8, v{td[e]}')
        for e in range(4): a(f'v_lshlrev_b32 v{tp[e]}, 2, v{tp[e]}')
        for e in range(4): a(f'v_and_b32 v{td[e]}, 15, v{tl[e]}')
        for e in range(4):
            a(f'ds_add_u32 v{tp[e]}, v3')
            a(f'v_lshrrev_b32 v{tl[e]}, 4, v{tl[e]}')
            a(f'v_lshl_or_b32 v{td[e]}, v{I(e)}, 4, v{td[e]}')
        for e in range(4):
            k = 4*q + e
            a(f'v_lshl_or_b32 v{R0(k)}, v{td[e]}, 8, v{tl[e]}')
            if e % 2 == 0: a(f'v_lshl_or_b32 v{R1(k)}, v{TA(q)+e//2}, 16, v{tp[e]}')
            else: a(f'v_and_or_b32 v{R1(k)}, v{TA(q)+e//2}, s27, v{tp[e]}')
        if q + PF < NGR: loads(q + PF)
    a('s_mov_b64 exec, -1')
    prefetch(1)
    a('s_waitcnt lgkmcnt(0)')
    stamp()
    a('s_barrier')
    stamp()
    C = 12; Q = 28; PB = 40
    a('v_mul_u32_u24 v11, 24, v0')
    for k in range(3): a(f'ds_read_b64 v[{C+2*k}:{C+2*k+1}], v11 offset:{8*k}')
    a('s_waitcnt lgkmcnt(0)')
    for k in range(6): a(f'v_and_b32 v{PB+k}, 1, v{C+k}')
    for k in range(6): a(f'v_add_u32 v{C+k}, v{C+k}, v{PB+k}')
    for k in range(1, 6): a(f'v_add_u32 v{C+k}, v{C+k}, v{C+k-1}')
    a(f'v_mov_b32 v46, v{C+5}')
    for sh in ('row_shr:1 row_mask:0xf', 'row_shr:2 row_mask:0xf', 'row_shr:4 row_mask:0xf', 'row_shr:8 row_mask:0xf', 'row_bcast:15 row_mask:0xa', 'row_bcast:31 row_mask:0xc'):
        a(f'v_add_u32_dpp v46, v46, v46 {sh} bank_mask:0xf')
    a(f'''
    v_readlane_b32 s35, v46, 63
    s_lshl_b32 s50, s3, 2
    s_add_u32 s50, s50, {WT}
    v_mov_b32 v47, s50
    v_mov_b32 v48, s35
    s_mov_b64 exec, 1
    ds_write_b32 v47, v48
    s_mov_b64 exec, -1
    v_sub_u32 v46, v46, v{C+5}
    v_mov_b32 v47, {WT}
    s_waitcnt lgkmcnt(0)
    s_barrier
    ds_read_b128 v[48:51], v47
    ds_read_b128 v[52:55], v47 offset:16
    s_mov_b32 s35, 0
    s_mov_b32 s34, 0
    s_waitcnt lgkmcnt(0)
    ''')
    for w in range(8):
        a(f'v_readfirstlane_b32 s50, v{48+w}\ns_add_u32 s34, s34, s50\ns_cmp_eq_u32 s3, {w+1}\ns_cselect_b32 s35, s34, s35')
    a(f'v_add_u32 v{Q}, s35, v46')
    for k in range(1, 7): a(f'v_add_u32 v{Q+k}, v{Q}, v{C+k-1}')
    if not late:
        for k in range(6): a(f'v_lshl_or_b32 v{Q+k}, v{PB+k}, 16, v{Q+k}')
    for k in range(3): a(f'ds_write_b64 v11, v[{Q+2*k}:{Q+2*k+1}] offset:{8*k}')
    if late:
        a('s_mul_i32 s34, s34, 6\ns_waitcnt lgkmcnt(0)\ns_barrier')
    else:
        a(f'''
    v_cmp_eq_u32 vcc, 511, v0
    s_mov_b64 exec, vcc
    ds_write_b32 v11, v{Q+6} offset:24
    s_mov_b64 exec, -1
    s_mul_i32 s34, s34, 6
    v_and_b32 v45, 255, v0                       ; d
    v_lshrrev_b32 v46, 8, v0                     ; hh
    v_mul_u32_u24 v47, {6*1024}, v46
    v_lshl_add_u32 v47, v45, 2, v47
    v_mul_u32_u24 v45, {256*48}, v45
    v_mad_u32_u24 v45, v46, 24, v45
    s_mul_i32 s50, s2, 48
    s_waitcnt lgkmcnt(0)
    s_barrier
    ''')
        for k in range(6): a(f'ds_read_b32 v{C+k}, v47 offset:{1024*k}\nds_read_u16 v{Q+k}, v47 offset:{1024*k+4}')
        a('s_waitcnt lgkmcnt(0)\ns_barrier')
        for k in range(6): a(f'v_sub_u32_sdwa v{Q+k}, v{Q+k}, v{C+k} {SD} src1_sel:WORD_0')
        for k in range(6): a(f'v_sub_u32_sdwa v{Q+k}, v{Q+k}, v{C+k} {SD} src1_sel:WORD_1')
        for k in range(6): a(f'v_perm_b32 v{48+k}, v{Q+k}, v{C+k}, s{79}'.replace('s79', 's53'))
        a.l.insert(len(a.l) - 18, '    s_mov_b32 s53, 0x05040100')
        a('''
    buffer_store_dwordx4 v[48:51], v45, s[20:23], s50 offen sc1
    buffer_store_dwordx2 v[52:53], v45, s[20:23], s50 offen offset:16 sc1
    ''')
    stamp()
    prefetch(2)
    NR = 8
    ad = [12 + k for k in range(NR)]; rr = [20 + k for k in range(NR)]
    def issue(k0):
        if k0 == 96:
            for k in range(k0, k0+4): a(f'v_mov_b32 v{rr[k % NR]}, -1')
            a('s_mov_b64 exec, s[30:31]')
        for k in range(k0, k0+4): a(f'v_and_b32 v{ad[k % NR]}, s28, v{R1(k)}')
        for k in range(k0, k0+4): a(f'ds_add_rtn_u32 v{rr[k % NR]}, v{ad[k % NR]}, v3')
        if k0 == 96: a('s_mov_b64 exec, -1')
    def scat(k0, c):
        t = [28, 29, 30, 31]
        if oob:
            for e in range(4): a(f'v_mad_u32_u16 v{t[e]}, v{R1(k0+e)}, 8, s32')
            for e in range(4): a(f'ds_write_b64 v{t[e]}, v[{R0(k0+e)}:{R1(k0+e)}]')
            return
        if c == 0:
            for e in range(4): a(f'v_cmp_gt_u32_sdwa s[{54+2*e}:{55+2*e}], s29, v{R1(k0+e)} src0_sel:DWORD src1_sel:WORD_0')
            for e in range(4): a(f'v_lshlrev_b32_sdwa v{t[e]}, 3, v{R1(k0+e)} {SD} src1_sel:WORD_0')
        else:
            for e in range(4): a(f'v_subrev_u32_sdwa v{t[e]}, s32, v{R1(k0+e)} {SD} src1_sel:WORD_0')
            for e in range(4): a(f'v_cmp_gt_u32 s[{54+2*e}:{55+2*e}], s29, v{t[e]}')
            for e in range(4): a(f'v_lshlrev_b32 v{t[e]}, 3, v{t[e]}')
        for e in range(4):
            a(f's_mov_b64 exec, s[{54+2*e}:{55+2*e}]')
            a(f'ds_write_b64 v{t[e]}, v[{R0(k0+e)}:{R1(k0+e)}] offset:{SB}')
        a('s_mov_b64 exec, -1')
    a(f's_mov_b32 s32, {SB}')
    issue(0)
    for k0 in range(0, 100, 4):
        if k0 + 4 < 100: issue(k0 + 4)
        a(f's_waitcnt lgkmcnt({4 if k0 in (0, 96) else 8})')
        for k in range(k0, k0+4): a(f'v_bfi_b32 v{R1(k)}, s28, v{rr[k % NR]}, v{R1(k)}')
        scat(k0, 0)
        prefetch(100 + k0)
    a(f'''
    v_add_u32 v5, {SB}, v1
    v_add_u32 v6, {SB + 65536}, v1
    v_add_u32 v7, {SB + 131072}, v1
    v_mul_u32_u24 v4, 12, v0
    ''')
    NI = -(-H // 1024); RD = 4
    held = []
    def store(c, it, q): a(f's_mov_b32 s50, {c*H*6 + it*6144}\nbuffer_store_dwordx3 v[{q}:{q+2}], v4, s[16:19], s50 offen {stf}')
    for c in range(3):
        if c:
            a(f's_mov_b32 s32, {(SB - 8*c*H) & 0xffffffff if oob else c*H}')
            for n, k0 in enumerate(range(0, 100, 4)):
                scat(k0, c)
                if n % 2 == 0 and held: store(c - 1, *held.pop(0))
            assert not held
        if fused and c == 0: a(f's_waitcnt vmcnt({3 if mpf >= 100 else 0})')
        a('s_waitcnt lgkmcnt(0)\ns_barrier')
        if fused and c == 0:
            srd(a, 84, 's80', 's81', None, 256)
            a('''
            s_cmp_lg_u32 s3, 0
            s_cbranch_scc1 A_nt
            v_mov_b32 v28, 0
            s_mov_b64 exec, 1
            buffer_atomic_add v3, v28, s[84:87], 0 offen offset:128
            s_mov_b64 exec, -1
            A_nt:
            ''')
        if fused and c == 2: a('v_mov_b32 v28, 0\nbuffer_load_dword v29, v28, s[84:87], 0 offen offset:128 sc1')
        stamp()
        prefetch(3 + c)
        if late and c == 0:
            a(f'''
            v_and_b32 v28, 255, v0                       ; d
            v_lshrrev_b32 v29, 8, v0                     ; hh
            v_mul_u32_u24 v30, {6*1024}, v29
            v_lshl_add_u32 v30, v28, 2, v30
            v_mul_u32_u24 v28, {256*48}, v28
            v_mad_u32_u24 v28, v29, 24, v28
            v_max_u32 v31, 4, v30
            v_subrev_u32 v31, 4, v31
            s_mul_i32 s51, s2, 48
            ''')
            for k in range(6): a(f'ds_read_b32 v{8+k}, v30 offset:{1024*k}\nds_read_b32 v{14+k}, v{31 if k == 0 else 30} offset:{max(1024*k - 4, 0)}')
            a('v_cmp_ne_u32 vcc, 0, v0\ns_waitcnt lgkmcnt(0)\nv_cndmask_b32 v14, 0, v14, vcc')
            for k in range(6): a(f'v_add_u32 v{14+k}, 1, v{14+k}')
            for k in range(6): a(f'v_and_b32 v{14+k}, -2, v{14+k}')
            for k in range(6): a(f'v_sub_u32 v{8+k}, v{8+k}, v{14+k}')
            for k in range(6): a(f'v_lshl_or_b32 v{20+k}, v{8+k}, 16, v{14+k}')
            a('buffer_store_dwordx4 v[20:23], v28, s[20:23], s51 offen\nbuffer_store_dwordx2 v[24:25], v28, s[20:23], s51 offen offset:16')
        a(f's_min_u32 s18, s34, {(c+1)*H*6}')
        nh = hold if c < 2 else 0
        def QD(it):
            if it >= NI - nh: return [8, 12, 16, 20, 24, 32, 36, 40, 44, 48, 52][11 - nh + it - (NI - nh)] if False else HR[it - (NI - nh)]
            return RR[it % len(RR)]
        HR = [8, 12, 16, 20, 24, 32, 36, 40, 44, 48, 52][:nh]
        RR = [x for x in [52, 48, 44, 40, 36, 32]]
        def rd(it):
            a(f'ds_read_b128 v[{QD(it)}:{QD(it)+3}], v{5 + it // 8} offset:{(it % 8)*8192}')
        for it in range(RD-1): rd(it)
        for it in range(NI):
            if it + RD - 1 < NI: rd(it + RD - 1)
            q = QD(it)
            a(f's_waitcnt lgkmcnt({min(RD-1, NI-1-it)})\nv_perm_b32 v{q+1}, v{q+3}, v{q+1}, s33')
            if it >= NI - nh: held.append((it, q))
            else: store(c, it, q)
        if c < 2: a('s_barrier')
        stamp()
    if 'stamp' in diag:
        a('s_waitcnt vmcnt(0)'); stamp(); stamp(True)
    if fused:
        a(f'''
        s_waitcnt vmcnt({NI})
        s_mov_b32 s37, 0
        A_tl:
        v_readfirstlane_b32 s36, v29
        s_cmp_ge_u32 s36, 256
        s_cbranch_scc1 A_tw
        s_add_u32 s37, s37, 1
        s_cmp_gt_u32 s37, 100000
        s_cbranch_scc1 A_tw
        buffer_load_dword v29, v28, s[84:87], 0 offen offset:128 sc1
        s_waitcnt vmcnt(0)
        s_branch A_tl
        A_tw:
        ''')
        return a.l
    a.label('A_end')
    a('s_endpgm')
    return a.l
```

```python
from common import *
NAME = 'agg_kernel'
CNT = 0; FLAG = 1600; DNA = 1604; DNR = 1608; L0 = 1664; L1 = L0 + 196*256
PST = L1 + 196*256; PIMM = 65280
NXMAX = {10: 15, 11: 7, 12: 7}[NPH]
TSZ = (NXMAX + 8*NPH + 1)*32
TBL = PST + 8*2048
SPILL = TBL + 8*TSZ; SPCAP = 128
DST = SPILL + 8*SPCAP*8
WST = DST + 8192
LDS = 163840
assert WST + 2048 <= LDS and TSZ <= 4096
NV = 25
import os
MAXSW = int(os.environ.get('MAXSW', 20000))
T0, T1, vLB, vHALF, vKC, vPR, vX = range(7)
W = 8; G = 16; LP = 28; U = 30; XB = 38; Q0 = 42; Q1 = 46; vP2 = 50
PK = lambda v: [7, 52, 53, 54, 55][v % 5]
vF = Q1
ACC = lambda v: 56 + 8*v
sEPC, sEP24, sNM32, sLIM, sF8, sEPA, sFFFF = 16, 17, 18, 19, 20, 21, 22
sROW, sNX, sU, sUE, sSP, sRES, sDID = 23, 24, 25, 26, 27, 28, 29
sLIVE, sSKIP, sSW, sD, sSPB, sFAR, sST = 30, 32, 34, 35, 48, 49, 51
sR0, sRN = 100, 101
sTG = 72
sKF = 70
sNG = 52
sW24 = 50
MK = lambda v: 60 + 2*(v % 5)
INC = 8 + (1 << 16)
def sp(r): return f's[{r}:{r+1}]'
def vp(r, n=2): return f'v[{r}:{r+n-1}]'
SD = 'dst_sel:DWORD dst_unused:UNUSED_PAD src0_sel:DWORD'

class Seq:
    def __init__(s): s.o = []
    def __call__(s, t, tag=None, maybe=False, drop=False):
        ls = [x.strip() for x in t.strip('\n').split('\n') if x.strip()]
        for x in ls:
            c = 'v' if x.startswith('buffer_') else ('l' if x.startswith('ds_') else None)
            s.o.append(dict(t='' if drop else x, c=c, tag=tag if c else None, maybe=maybe or drop))
    def wait(s, c, tags): s.o.append(dict(t=None, c=None, w=c, tags=tags))
    def resolve(s, a, cyclic):
        n = len(s.o)
        for k, x in enumerate(s.o):
            if x['t'] is not None: a(x['t']); continue
            cnt = 0; found = None; j = k - 1; steps = 0
            while steps < n:
                if j < 0:
                    if not cyclic: break
                    j += n
                y = s.o[j]
                if y['c'] == x['w']:
                    if y['tag'] in x['tags']: found = cnt; break
                    if not y['maybe']: cnt += 1
                j -= 1; steps += 1
            assert found is not None, x
            a(f's_waitcnt vmcnt({min(found,63)})' if x['w'] == 'v' else f's_waitcnt lgkmcnt({min(found,15)})')

def gen(APOS=(1,3,5,7,9,11,13,15), DA=2, recflags='', prio=(0,12), wpf=False, EDM=2, gatf='', fused=False, stf='nt', diag=()):
    NS = 8
    a = Asm(); stubs = Asm(); late = []
    uid = [0]
    def nid(): uid[0] += 1; return uid[0]
    def stamp(q, real=False, T0=T0, T1=T1):
        if 'stamp' not in diag: return
        q(f'''
        {'s_memrealtime' if real else 's_memtime'} s[96:97]
        s_waitcnt lgkmcnt(0)
        v_mov_b32 v{T0}, s96
        v_mov_b32 v{T1}, 0
        s_mov_b64 exec, 1
        ''')
        t = f'buffer_store_dword v{T0}, v{T1}, s[92:95], s98 offen'
        q(t, maybe=True) if isinstance(q, Seq) else q(t)
        q('s_mov_b64 exec, -1\ns_add_u32 s98, s98, 4')
    def k2(q, extra='0'):
        q(f'''
        v_mbcnt_lo_u32_b32 v{T0}, -1, 0
        v_mbcnt_hi_u32_b32 v{T0}, -1, v{T0}
        v_and_b32 v{T0}, 15, v{T0}
        v_lshl_add_u32 v{T0}, v{T0}, 1, {extra}
        v_mov_b32_sdwa v{vX}, v{T0} dst_sel:WORD_1 dst_unused:UNUSED_PRESERVE src0_sel:WORD_0
        ''')
    def L1s(q, sig, p2=vP2, off=None):
        k = nid()
        q(f'''
        s_add_u32 s36, s{sU}, {32*(sig if off is None else off)}
        s_cmp_ge_u32 s36, s{sFAR}
        s_cbranch_scc1 B_far{k}
        B_farb{k}:
        v_add_u32_sdwa v{T0}, s36, v{vX} {SD} src1_sel:WORD_0
        ''')
        q(f'ds_read_b64 {vp(p2)}, v{T0}', tag=('ent', sig))
        stubs(f'''
        B_far{k}:
        s_cmp_ge_u32 s36, s{sUE}
        s_cselect_b32 s36, s{sFAR}, s36
        s_cbranch_scc1 B_farb{k}
        s_sub_u32 s37, s36, s{sROW}
        s_lshr_b32 s37, s37, 5
        s_mov_b32 s38, {-(-(1 << 32) // (8*NPH))}
        s_mul_hi_u32 s37, s37, s38
        s_mul_i32 s38, s37, {8*NPH*32}
        s_sub_u32 s36, s36, s38
        s_lshl_b32 s37, s37, 5
        ''')
        k2(stubs, 's37'); stubs(f's_branch B_farb{k}')
    def L2s(q, sig, quad, m0, m1, p2=vP2, wait=True):
        if wait: q.wait('l', [('ent', sig)])
        q(f'''
        v_cmp_lt_u32_sdwa {sp(m0)}, v{vX}, v{p2+1} src0_sel:WORD_1 src1_sel:WORD_0
        v_mad_u32_u16 v{T0}, v{vX}, 6, v{p2} op_sel:[1,0,0,0]
        v_cmp_lt_u32_sdwa {sp(m1)}, v{vX}, v{p2+1} src0_sel:WORD_1 src1_sel:WORD_1
        s_mov_b64 exec, {sp(m0)}
        ''')
        q(f'buffer_load_dwordx3 {vp(quad,3)}, v{T0}, s[8:11], 0 offen {recflags}', tag=('rec', sig))
        q('s_mov_b64 exec, -1')
        if sig == 0: q(f's_andn2_b64 {sp(m0)}, {sp(m0)}, {sp(sSKIP)}')
    def COS(q, quad, h, filler):
        if 'nocos' in diag: q(filler); return
        q(f'''
        v_cvt_f32_bf16_sdwa v{T0}, v{quad+1} dst_sel:DWORD dst_unused:UNUSED_PAD src0_sel:WORD_{h}
        v_pk_mul_f32 {vp(T0)}, {vp(T0)}, {sp(sKF)} op_sel_hi:[0,1]
        ''')
        q(f'''
        v_cos_f32 v{T0}, v{T0}
        v_cos_f32 v{T1}, v{T1}
        {filler}
        v_cvt_pk_bf16_f32 v{quad+1+2*h}, v{T0}, v{T1}
        ''')
    def A1(q, sig, quad, masks, par, live=True, p2=vP2):
        ex = lambda h: f's_and_b64 exec, {sp(masks[h])}, {sp(sLIVE)}' if live else f's_mov_b64 exec, {sp(masks[h])}'
        if live:
            COS(q, quad, 1, f'v_mov_b32 v{p2+1}, {INC}'); COS(q, quad, 0, ex(0))
        else: q(f'v_mov_b32 v{p2+1}, {INC}\n{ex(0)}')
        for h in range(2):
            if h: q(ex(1))
            q(f'v_lshlrev_b32_sdwa v{T0}, 2, v{quad+2*h} {SD} src1_sel:BYTE_0')
            q(f'ds_add_rtn_u32 v{p2+h}, v{T0}, v{p2+1} offset:{CNT+800*par}', tag=('ret', sig))
        q('s_mov_b64 exec, -1')
    def A2(q, sig, quad, masks, par, live=True, p2=vP2):
        for h in range(2):
            k = nid()
            q(f's_and_b64 exec, {sp(masks[h])}, {sp(sLIVE)}' if live else f's_mov_b64 exec, {sp(masks[h])}')
            q(f'''
            v_lshlrev_b32_sdwa v{T0}, 8, v{quad+2*h} {SD} src1_sel:BYTE_0
            v_cmp_le_u32 vcc, s{sLIM}, v{p2+h}
            v_and_or_b32 v{T0}, v{p2+h}, s{sF8}, v{T0}
            s_cbranch_vccnz B_sp{k}
            B_spb{k}:
            v_mov_b32_sdwa v{quad+2*h}, s{sEPA} dst_sel:BYTE_0 dst_unused:UNUSED_PRESERVE src0_sel:BYTE_0
            ''')
            q(f'ds_write_b64 v{T0}, {vp(quad+2*h)} offset:{[L0, L1][par]}')
            stubs(f'''
            B_sp{k}:
            v_mbcnt_lo_u32_b32 v{T1}, vcc_lo, 0
            v_mbcnt_hi_u32_b32 v{T1}, vcc_hi, v{T1}
            s_lshl_b32 s36, s{sSP}, 3
            s_add_u32 s36, s36, s{sSPB}
            v_lshl_add_u32 v{T1}, v{T1}, 3, s36
            s_bcnt1_i32_b64 s37, vcc
            s_add_u32 s{sSP}, s{sSP}, s37
            s_andn2_b64 s[36:37], exec, vcc
            s_mov_b64 exec, vcc
            ds_write_b64 v{T1}, {vp(quad+2*h)}
            s_mov_b64 exec, s[36:37]
            ''')
            if live:
                stubs(f'''
                s_cmp_le_u32 s{sSP}, {SPCAP-64}
                s_cbranch_scc1 B_spb{k}
                s_mov_b64 {sp(sLIVE)}, 0
                s_add_u32 s{sRES}, s{sU}, {32*sig + 16*(h+1)}
                ''')
            stubs(f's_branch B_spb{k}')
        q('s_mov_b64 exec, -1')
    def signal(q, off):
        q(f'''
        s_mov_b64 exec, 1
        v_mov_b32 v{T0}, 0
        v_mov_b32 v{T1}, 1
        ds_add_u32 v{T0}, v{T1} offset:{off}
        s_mov_b64 exec, -1
        ''')
    def peek(q, off): q(f'v_mov_b32 v{T0}, 0'); q(f'ds_read_b32 v{vP2}, v{T0} offset:{off}', tag='peek')
    def check(q, off):
        k = nid()
        q(f'''
        v_readfirstlane_b32 s36, v{vP2}
        s_cmp_lt_u32 s36, s{sTG}
        s_cbranch_scc1 B_sy{k}
        B_syb{k}:
        ''')
        stubs(f'''
        B_sy{k}:
        v_mov_b32 v{T0}, 0
        ds_read_b32 v{vP2}, v{T0} offset:{off}
        s_waitcnt lgkmcnt(0)
        v_readfirstlane_b32 s36, v{vP2}
        ''')
        if MAXSW < 1 << 30: stubs(f's_add_u32 s73, s73, 1\ns_cmp_gt_u32 s73, 2000000\ns_cbranch_scc1 B_syb{k}')
        stubs(f'''
        s_cmp_lt_u32 s36, s{sTG}
        s_cbranch_scc1 B_sy{k}
        s_branch B_syb{k}
        ''')
    def reads_done(q, par):
        k = nid()
        q(f's_add_u32 s36, s{sSW}, 1\ns_and_b32 s36, s36, 126\ns_cbranch_scc0 B_cl{k}\nB_clb{k}:')
        stubs(f'B_cl{k}:\nv_mov_b32 v{Q1}, s{sEPC}\nv_mov_b32 v{Q1+1}, 0')
        for v in range(24): stubs(f'ds_write_b64 v{vLB}, {vp(Q1)} offset:{[L0, L1][par] + v*256}')
        stubs(f's_cmp_lg_u32 s{sW24}, 0\ns_cbranch_scc1 B_clb{k}')
        stubs(f'ds_write_b64 v{vLB}, {vp(Q1)} offset:{[L0, L1][par] + 24*256}\ns_branch B_clb{k}')
        signal(q, DNR)
    def sweep_end(q, par, adv=True):
        k = nid()
        if par is not None: peek(q, DNA)
        if adv: q(f'''
        s_add_u32 s{sU}, s{sU}, {32*NS}
        s_mov_b64 {sp(sSKIP)}, 0
        s_cmp_eq_u32 s{sLIVE}, 0
        s_cbranch_scc1 B_st{k}
        B_stb{k}:
        ''')
        q(f's_add_u32 s{sSW}, s{sSW}, 1')
        if par is not None: q(f's_add_u32 s{sTG}, s{sTG}, 8')
        q(f'''
        s_mov_b32 s{sEPC}, s{sEPA}
        s_add_u32 s{sEPA}, s{sEPA}, 1
        s_and_b32 s{sEPA}, s{sEPA}, 255
        s_or_b32 s{sEP24}, s{sEPC}, s{sW24}
        s_waitcnt lgkmcnt(0)
        ''')
        if 'prebar' in diag: stamp(q)
        if par is None: q('s_barrier')
        else: check(q, DNA)
        stamp(q)
        if not adv: return
        stubs(f'''
        B_st{k}:
        s_and_b32 s{sU}, s{sRES}, 0xffffffe0
        s_bitcmp1_b32 s{sRES}, 4
        s_cselect_b64 {sp(sSKIP)}, -1, 0
        s_mov_b64 {sp(sLIVE)}, -1
        ''')
        k2(stubs); stubs(f's_branch B_stb{k}')
    def reappend(q, par):
        k = nid()
        q(f's_cmp_lg_u32 s{sSP}, 0\ns_cbranch_scc1 B_ra{k}\nB_rab{k}:')
        r = Seq()
        r(f'''
        B_ra{k}:
        v_mbcnt_lo_u32_b32 v{T0}, -1, 0
        v_mbcnt_hi_u32_b32 v{T0}, -1, v{T0}
        v_lshl_add_u32 v{T1}, v{T0}, 3, s{sSPB}
        ds_read_b64 {vp(Q0)}, v{T1}
        ds_read_b64 {vp(Q0+2)}, v{T1} offset:512
        v_cmp_gt_u32 s[44:45], s{sSP}, v{T0}
        v_add_u32 v{T0}, 64, v{T0}
        v_cmp_gt_u32 s[46:47], s{sSP}, v{T0}
        s_mov_b32 s{sSP}, 0
        s_waitcnt lgkmcnt(0)
        ''')
        A1(r, 99, Q0, (44, 46), par, live=False)
        r('s_waitcnt lgkmcnt(0)')
        A2(r, 99, Q0, (44, 46), par, live=False)
        r(f'''
        s_waitcnt lgkmcnt(0)
        s_cmp_le_u32 s{sSP}, {SPCAP-64}
        s_cbranch_scc1 B_rab{k}
        s_mov_b64 {sp(sLIVE)}, 0
        s_and_b32 s36, s{sSKIP}, 16
        s_add_u32 s{sRES}, s{sU}, s36
        s_branch B_rab{k}
        ''')
        tmp = Asm(); r.resolve(tmp, False); late.append(tmp.l)

    def poll(q, off, tag):
        q(f'''
        s_cmp_lg_u32 s3, 0
        s_cbranch_scc1 B_pw{tag}
        s_mov_b32 s37, 0
        B_pl{tag}:
        v_mov_b32 v122, 0
        buffer_load_dword v123, v122, s[40:43], 0 offen offset:{off} sc1
        s_waitcnt vmcnt(0)
        v_readfirstlane_b32 s36, v123
        s_add_u32 s37, s37, 1
        s_cmp_gt_u32 s37, 100000
        s_cbranch_scc1 B_pw{tag}
        s_cmp_lt_u32 s36, 256
        s_cbranch_scc1 B_pl{tag}
        B_pw{tag}:
        s_barrier
        ''')
    if fused:
        recflags = 'sc1'
        a('s_mov_b32 s40, s84\ns_mov_b32 s41, s85\ns_mov_b32 s42, 256\ns_mov_b32 s43, 0x20000')
    else:
        a.label(NAME)
        a(f's_cmp_ge_u32 s2, {NCU}\ns_cbranch_scc1 B_end')
    a(f'''
    s_load_dwordx2 s[56:57], s[0:1], {K_WS}
    s_load_dwordx2 s[54:55], s[0:1], {K_M}
    s_load_dwordx2 s[58:59], s[0:1], {K_DIST}
    s_load_dwordx4 s[60:63], s[0:1], {K_CEN}     ; centers, ang_freq
    s_load_dwordx8 s[64:71], s[0:1], {K_WRBF}
    s_and_b32 s{sD}, s2, 7
    s_lshl_b32 s{sD}, s{sD}, 5
    s_lshr_b32 s36, s2, 3
    s_add_u32 s{sD}, s{sD}, s36
    v_lshrrev_b32 v34, 6, v0
    v_mul_u32_u24 v35, 24, v0
    v_lshlrev_b32 v36, 2, v0                     ; x*4
    v_readfirstlane_b32 s3, v34
    s_mul_i32 s36, s{sD}, {256*48}
    v_and_b32 v37, 63, v0                        ; lane
    v_and_b32 v38, 15, v0                        ; n
    v_lshrrev_b32 v39, 5, v37                    ; h
    v_lshrrev_b32 v33, 4, v37                    ; q
    v_lshlrev_b32 v41, 1, v38
    v_lshl_add_u32 v40, v39, 8, v41              ; (8h)*32 + n*2
    s_mul_i32 s{sST}, s3, 25
    s_sub_i32 s37, s3, 4
    s_max_i32 s37, s37, 0
    s_sub_u32 s{sST}, s{sST}, s37
    s_mul_i32 s{sR0}, s{sD}, {EPC}
    s_add_u32 s{sRN}, s{sR0}, {EPC}
    s_and_b32 s{sR0}, s{sR0}, -4
    s_and_b32 s{sRN}, s{sRN}, -4
    s_sub_u32 s{sRN}, s{sRN}, s{sR0}
    s_lshl_b32 s37, s{sR0}, 1
    s_lshl_b32 s38, s{sRN}, 1
    s_waitcnt lgkmcnt(0)
    ''')
    srd(a, 12, 's56', 's57', TAB_OFF, TAB_BYTES)
    def table(): a(f'''
    buffer_load_dwordx4 v[104:107], v35, s[12:15], s39 offen {recflags}
    buffer_load_dwordx2 v[108:109], v35, s[12:15], s39 offen offset:16 {recflags}
    ''')
    a('s_load_dword s99, s[62:63], 0\ns_mov_b32 s39, s36')
    table()
    srd(a, 76, 's68', 's69', None, 512)
    for k in range(8): a(f'buffer_load_ushort v{72+k}, v40, s[76:79], 0 offen offset:{32*k}')
    srd(a, 80, 's58', 's59', 's37', 's38')
    a(f'''
    s_lshl_b32 s36, s{sST}, 5
    v_lshlrev_b32 v32, 4, v37                    ; lane*16
    v_mov_b32 v96, v32
    buffer_load_dwordx4 v[80:83], v32, s[80:83], s36 offen
    v_lshl_add_u32 v42, v33, 7, v41              ; (4q)*32 + n*2
    v_lshl_add_u32 v43, v33, 6, v41              ; (2q)*32 + n*2
    v_lshlrev_b32 v44, 2, v33                    ; (2q)*2
    ''')
    R = 84
    srd(a, 84, 's70', 's71', None, 512)
    for k in range(4): a(f'buffer_load_ushort v{R+k}, v42, s[84:87], 0 offen offset:{32*k}')
    srd(a, 88, 's66', 's67', None, 512)
    for k in range(4): a(f'buffer_load_ushort v{R+4+k}, v42, s[88:91], 0 offen offset:{32*k}')
    srd(a, 72, 's64', 's65', None, 256)
    for k in range(2): a(f'buffer_load_ushort v{R+8+k}, v43, s[72:75], 0 offen offset:{32*k}')
    srd(a, 44, 's60', 's61', None, 16)
    for k in range(2): a(f'buffer_load_ushort v{R+10+k}, v44, s[44:47], 0 offen offset:{2*k}')
    srd(a, 4, 's54', 's55', None, 0 if 'nogather' in diag else E*32)
    srd(a, 8, 's56', 's57', None, REC_BYTES + 16)
    if 'stamp' in diag:
        srd(a, 92, 's56', 's57', 200000000, 1 << 20)
        a('s_lshl_b32 s98, s2, 3\ns_add_u32 s98, s98, s3\ns_lshl_b32 s98, s98, 8\nv_mov_b32 v42, v0')
        stamp(a, True); stamp(a); a('v_mov_b32 v0, v42')
    if fused: a('s_barrier')
    a(f'''
    v_lshlrev_b32 v41, 4, v0
    v_mov_b32 v42, 0
    v_mov_b32 v43, 0
    v_mov_b32 v44, 0
    v_mov_b32 v45, 0
    v_add_u32 v52, {L0}, v41
    v_add_u32 v53, {L1}, v41
    s_mul_i32 s39, s3, {TSZ}
    s_add_u32 s39, s39, {TBL}
    v_add_u32 v54, s39, v32
    ''')
    for k in range(6): a(f'ds_write_b128 v52, v[42:45] offset:{k*8192}')
    for k in range(TSZ // 1024): a(f'ds_write_b128 v54, v[42:45] offset:{k*1024}')
    if TSZ % 1024: a(f's_mov_b64 exec, {(1 << (TSZ % 1024 // 16)) - 1}\nds_write_b128 v54, v[42:45] offset:{TSZ // 1024 * 1024}\ns_mov_b64 exec, -1')
    assert L1 - L0 == 6*8192 + 1024 and TBL - L1 == 8*8192 + 1024
    a(f'''
    v_mov_b32 v98, v53
    v_cmp_gt_u32 s[14:15], 64, v0
    s_mov_b64 exec, s[14:15]
    ds_write_b128 v52, v[42:45] offset:{6*8192}
    s_mov_b64 exec, -1
    v_and_b32 v52, 31, v0
    v_lshlrev_b32 v52, 3, v52
    v_cmp_gt_u32 vcc, 200, v0
    s_mov_b64 exec, vcc
    ds_write_b32 v36, v52 offset:{CNT}
    ds_write_b32 v36, v52 offset:{CNT+800}
    ds_write_b96 v42, v[42:44] offset:{FLAG}
    s_mov_b64 exec, -1
    s_mov_b32 s{sEPC}, 0
    s_mov_b32 s{sEPA}, 1
    s_mov_b32 s{sNM32}, 0xffffffe0
    s_mov_b32 s{sLIM}, {32 << 16}
    s_mov_b32 s{sF8}, 0xf8
    s_mov_b32 s{sFFFF}, 0xffff
    s_mov_b32 s{sSP}, 0
    s_mov_b32 s{sRES}, 0
    s_mov_b64 {sp(sLIVE)}, -1
    s_mov_b64 {sp(sSKIP)}, 0
    s_mov_b32 s{sSW}, 0
    s_mul_i32 s{sSPB}, s3, {SPCAP*8}
    s_add_u32 s{sSPB}, s{sSPB}, {SPILL}
    s_cmp_lt_u32 s3, 4
    s_cselect_b32 s37, 25, 24
    s_cselect_b32 s{sW24}, 0, 0x100
    s_bfm_b32 s{sNG}, s37, 0
    s_mov_b32 s{sNG+1}, 0
    s_lshl_b32 s36, s{sST}, 8
    v_and_b32 v52, 31, v37                       ; record rho
    v_lshl_add_u32 v{vLB}, v52, 3, s36
    v_lshlrev_b32 v{vHALF}, 4, v39
    s_lshl_b32 s36, s3, 11
    s_add_u32 s36, s36, {PST}
    s_sub_u32 s37, s36, {PIMM}
    v_lshl_add_u32 v53, v39, 10, s37
    v_bfe_u32 v54, v52, 2, 2
    v_lshl_add_u32 v53, v54, 8, v53              ; + q*256
    v_lshrrev_b32 v54, 4, v52
    v_lshl_add_u32 v53, v54, 3, v53              ; + j*8
    v_and_b32 v54, 3, v52
    v_lshl_add_u32 v{vKC}, v54, 1, v53           ; + r*2
    v_lshl_add_u32 v54, v33, 8, s36
    v_lshl_add_u32 v{vPR}, v38, 4, v54           ; P base + q*256 + e*16
    v_lshlrev_b32 v{vX}, 3, v33
    v_lshl_or_b32 v{vX}, v38, 17, v{vX}          ; q*8 | (2e << 16)
    s_add_u32 s{sROW}, s39, {NXMAX*32}
    s_add_u32 s{sFAR}, s{sROW}, {8*NPH*32}
    v_and_b32 v53, 1, v33
    v_cmp_eq_u32 s[56:57], 0, v53                ; lanes whose record is in 0..15
    v_lshrrev_b32 v52, 1, v0                     ; tile j
    s_mov_b32 s36, {TSTRIDE}
    v_mul_u32_u24 v120, s36, v52
    v_and_b32 v53, 1, v0                         ; hh
    v_mul_u32_u24 v54, {6*256}, v53
    v_lshrrev_b32 v55, 1, v37
    v_lshl_add_u32 v54, v55, 3, v54
    v_add_u32 v121, s{sROW}, v54
    s_mov_b32 s{sU}, s{sROW}
    s_mov_b32 s{sUE}, s{sFAR}
    s_sub_u32 s13, s{sROW}, 32
    ''')
    if fused:
        a('''
        s_waitcnt vmcnt(23)
        s_barrier
        s_cmp_lg_u32 s3, 0
        s_cbranch_scc1 B_nd
        v_mov_b32 v122, 0
        v_mov_b32 v123, 1
        s_mov_b64 exec, 1
        buffer_atomic_add v123, v122, s[40:43], 0 offen
        s_mov_b64 exec, -1
        B_nd:
        ''')
    if 'pro' in diag: stamp(a, T0=56, T1=57)
    a('s_waitcnt vmcnt(21)')
    if 'pro' in diag: stamp(a, T0=56, T1=57)
    N = 110
    for k in range(6): a(f'v_lshrrev_b32 v{N+k}, 16, v{104+k}')
    a(f'''
    v_max3_u32 v116, v{N}, v{N+1}, v{N+2}
    v_max3_u32 v116, v116, v{N+3}, v{N+4}
    v_max_u32 v116, v116, v{N+5}
    v_cmp_lt_u32 vcc, 32, v116
    s_cbranch_vccnz B_x
    B_xb:
    ''')
    def entry(q, k, r):
        q(f'''
        v_max_u32 v{r+1}, 1, v{N+k}
        v_mad_u32_u16 v{r}, v{104+k}, 6, v120
        v_subrev_u32 v{r+1}, 1, v{r+1}
        v_lshl_or_b32 v{r+1}, v{r+1}, 16, v{N+k}
        ''')
    def row(q, k):
        entry(q, k, 118)
        if 6 + k >= NPH: q('s_mov_b32 exec_lo, 0x55555555\ns_mov_b32 exec_hi, 0x55555555')
        q(f'ds_write_b64 v121, v[118:119] offset:{k*256}')
        if 6 + k >= NPH: q('s_mov_b64 exec, -1')
    stubs(f'B_x:\ns_mov_b32 s{sNX}, 0')
    for k in range(6):
        entry(stubs, k, 118)
        stubs(f'''
        v_cmp_lt_u32 vcc, 32, v{N+k}
        v_add_u32 v118, 192, v118
        v_subrev_u32 v119, {32 + (32 << 16)}, v119
        v_mbcnt_lo_u32_b32 v117, vcc_lo, 0
        v_mbcnt_hi_u32_b32 v117, vcc_hi, v117
        s_bcnt1_i32_b64 s37, vcc
        v_add_u32 v117, s{sNX}, v117
        s_add_u32 s{sNX}, s{sNX}, s37
        s_cmp_gt_u32 s{sNX}, {4*NXMAX}
        s_cselect_b64 vcc, 0, vcc
        s_sub_u32 s37, s{sROW}, 8
        v_lshlrev_b32 v117, 3, v117
        v_sub_u32 v117, s37, v117                ; extra entries grow downwards from the first row
        s_mov_b64 exec, vcc
        ds_write_b64 v117, v[118:119]
        s_mov_b64 exec, -1
        ''')
    for sh in ('row_shr:1 row_mask:0xf', 'row_shr:2 row_mask:0xf', 'row_shr:4 row_mask:0xf', 'row_shr:8 row_mask:0xf', 'row_bcast:15 row_mask:0xa', 'row_bcast:31 row_mask:0xc'):
        stubs(f'v_max_u32_dpp v116, v116, v116 {sh} bank_mask:0xf')
    stubs(f'''
    v_readlane_b32 s36, v116, 63                 ; longest segment of this wave
    s_add_u32 s37, s{sNX}, 3
    s_lshr_b32 s37, s37, 2
    s_lshl_b32 s37, s37, 5
    s_sub_u32 s{sU}, s{sROW}, s37
    s_cmp_gt_u32 s{sNX}, {4*NXMAX}
    s_cselect_b32 s37, 65, 0
    s_max_u32 s37, s37, s36
    s_cmp_gt_u32 s37, 64
    s_cbranch_scc0 B_xb
    s_mov_b32 s{sU}, s{sROW}                     ; general case: every phase once per chunk of 32 records
    s_add_u32 s36, s36, 31
    s_lshr_b32 s36, s36, 5
    s_mul_i32 s36, s36, {8*NPH*32}
    s_add_u32 s{sUE}, s{sROW}, s36
    s_mov_b32 s13, s{sFAR}
    s_branch B_xb
    ''')
    q = Seq()
    SL = list(range(-1, NS))
    pq = lambda s: 20 + 4*s
    pm = lambda s: (40, 42) if s < 0 else ((58 + 4*s, 60 + 4*s) if s < 3 else (60 + 4*s, 62 + 4*s))
    pp = lambda s: 54 + 2*(s + 1)
    row(q, 0)
    if fused:
        for k in range(1, 6): row(q, k)
        poll(q, 0, 'd')
    q('s_waitcnt lgkmcnt(0)')
    for s in SL:
        q(f's_add_u32 s36, s{sROW}, {32*s}' if s >= 0 else 's_mov_b32 s36, s13')
        q(f'v_add_u32_sdwa v{T0}, s36, v{vX} {SD} src1_sel:WORD_0')
        q(f'ds_read_b64 {vp(pp(s))}, v{T0}', tag=('ent', s))
    for s in SL: L2s(q, s, pq(s), *pm(s), pp(s))
    if not fused:
        for k in range(1, 6): row(q, k)
    q(f'''
    s_lshl_b32 s36, s99, 16
    s_and_b32 s37, s99, 0xffff0000
    v_mov_b32 v116, s36
    v_mov_b32 v117, s37
    v_mul_f32 v116, 0.15915494, v116
    v_mul_f32 v117, 0.15915494, v117
    v_readfirstlane_b32 s{sKF}, v116
    v_readfirstlane_b32 s{sKF+1}, v117
    ''')
    a_ = a; a = q
    stamp(q)
    a = a_
    import struct, math
    SQ = struct.unpack('<I', struct.pack('<f', math.sqrt(10*math.log2(math.e))))[0]
    def operands(q):
        for k in range(4):
            q(f'''
            v_lshl_or_b32 v{72+2*k}, v{73+2*k}, 16, v{72+2*k}
            v_cndmask_b32 v{W+4+k}, v{72+2*k}, 0, s[56:57]
            v_cndmask_b32 v{W+k}, 0, v{72+2*k}, s[56:57]
            ''')
        if 'ident' in diag:
            q(f'''
            v_lshrrev_b32 v97, 4, v96                ; lane
            v_and_b32 v72, 15, v97
            v_lshrrev_b32 v73, 5, v97
            v_lshlrev_b32 v73, 3, v73
            v_sub_u32 v72, v72, v73                  ; n - 8h
            s_mov_b32 s36, 0x3f80
            s_mov_b32 s37, 0x3f800000
            ''')
            for k in range(4):
                q(f'''
                v_cmp_eq_u32 vcc, {2*k}, v72
                v_mov_b32 v73, s36
                v_mov_b32 v74, s37
                v_cndmask_b32 v75, 0, v73, vcc
                v_cmp_eq_u32 vcc, {2*k+1}, v72
                s_nop 1
                v_cndmask_b32 v75, v75, v74, vcc
                v_cndmask_b32 v{W+4+k}, v75, 0, s[56:57]
                v_cndmask_b32 v{W+k}, 0, v75, s[56:57]
                ''')
        q(f'''
        s_lshl_b32 s36, s3, 10
        s_add_u32 s36, s36, {DST}
        v_add_u32 v97, s36, v96
        ds_write_b128 v97, v[80:83]
        v_lshl_or_b32 v72, v{R+1}, 16, v{R}          ; w_up
        v_lshl_or_b32 v73, v{R+3}, 16, v{R+2}
        v_lshl_or_b32 v74, v{R+6}, 16, v{R+4}
        v_lshl_or_b32 v75, v{R+7}, 16, v{R+5}
        v_lshl_or_b32 v76, v{R+9}, 16, v{R+8}        ; w_rbf
        v_mov_b32 v77, 0
        v_lshlrev_b32 v78, 16, v{R+10}
        v_lshlrev_b32 v79, 16, v{R+11}
        v_mul_f32 v78, {(SQ | 0x80000000):#x}, v78   ; -center*s
        v_mul_f32 v79, {(SQ | 0x80000000):#x}, v79
        v_add_u32 v97, {WST}, v96
        ds_write_b128 v97, v[72:75]
        ds_write_b128 v97, v[76:79] offset:1024
        ''')
        for k in range(100, 104): q(f'v_mov_b32 v{k}, 0')
        for k in range(8):
            q(f'ds_write_b128 v98, v[100:103] offset:{k*8192}')
            for r in range(104 + 19*k, 104 + 19*k + 19): q(f'v_mov_b32 v{r}, 0')
        q(f'v_add_u32 v98, {8*8192}, v98\ns_mov_b64 exec, s[14:15]\nds_write_b128 v98, v[100:103]\ns_mov_b64 exec, -1')
    q(f's_waitcnt vmcnt({len(SL)})')
    operands(q)
    if 'pro' in diag: stamp(q)
    q('s_waitcnt lgkmcnt(0)\ns_barrier')
    q(f'B_xl:\ns_add_u32 s36, s{sU}, 32\ns_cmp_ge_u32 s36, s{sROW}\ns_cbranch_scc1 B_xe')
    L1s(q, 100, 108, off=0); L2s(q, 100, 104, 44, 46, 108)
    q('s_waitcnt vmcnt(0)'); A1(q, 100, 104, (44, 46), 0, p2=108)
    q('s_waitcnt lgkmcnt(0)'); A2(q, 0, 104, (44, 46), 0, p2=108)
    q(f's_cmp_eq_u32 s{sLIVE}, 0\ns_cbranch_scc1 B_pz\ns_add_u32 s{sU}, s{sU}, 32\ns_branch B_xl\nB_xe:')
    for o in q.o[-60:]:
        if o.get('tag') in (('rec', 100), ('ent', 100), ('ret', 100)) or (o['c'] and o['tag'] is None and 'v[10' in (o['t'] or '')): o['maybe'] = True
    q(f's_mov_b32 s{sU}, s{sROW}')
    if 'pro' in diag: stamp(q)
    TP = lambda s, h: 72 + 4*((s + 1) % 6) + 2*h
    def cos2(ss):
        for st in range(4):
            for s in ss:
                for h in (1, 0):
                    t = TP(s, h)
                    q([f'v_cvt_f32_bf16_sdwa v{t}, v{pq(s)+1} dst_sel:DWORD dst_unused:UNUSED_PAD src0_sel:WORD_{h}',
                       f'v_pk_mul_f32 {vp(t)}, {vp(t)}, {sp(sKF)} op_sel_hi:[0,1]',
                       f'v_cos_f32 v{t}, v{t}\nv_cos_f32 v{t+1}, v{t+1}',
                       f'v_cvt_pk_bf16_f32 v{pq(s)+1+2*h}, v{t}, v{t+1}'][st])
    for k in range(0, len(SL), 3):
        for s in SL[k:k+3]:
            q.wait('v', [('rec', s)])
            A1(q, s, pq(s), pm(s), 0, live=False, p2=pp(s))
        cos2(SL[k:k+3])
    for s in SL:
        q.wait('l', [('ret', s)]); A2(q, s, pq(s), pm(s), 0, p2=pp(s))
    if 'pro' in diag: stamp(q)
    q('B_pz:')
    q(f'B_pe:\ns_mov_b64 s[72:73], 0')
    for v in range(5): q(f'v_mov_b32 v{PK(v)}, v{vKC}\ns_mov_b64 {sp(MK(v))}, 0')
    for k in list(range(G, G+12)) + list(range(U, U+16)) + list(range(56, 100)) + list(range(104, 110)): q(f'v_mov_b32 v{k}, 0')
    sweep_end(q, None)
    q.resolve(a, False)

    MF = 'v_mfma_f32_16x16x32_bf16'
    GS = lambda v: Q0 if v == 24 else G + 4*(v % 3)
    def setprio(q, v, tag):
        if v in prio:
            if prio.index(v) % 2 == 0:
                q(f's_cmp_eq_u32 s{sW24}, 0\ns_cbranch_scc1 B_pr{tag}_{v}\ns_setprio 1\nB_pr{tag}_{v}:')
            else: q('s_setprio 0')
    def step(q, par, v, LB, visit=True):
        av = (v - 3) % NV; ap = par if v >= 3 else 1-par
        bv = (v - 4) % NV
        if v: q.wait('l', [('pr', par, v - 1)])
        q(f'{MF} {vp(ACC(bv),4)}, {vp(XB,4)}, {vp(U,4)}, {vp(ACC(bv),4)}', drop='nomfma' in diag)
        q(f'{MF} {vp(ACC(bv)+4,4)}, {vp(XB,4)}, {vp(U+4,4)}, {vp(ACC(bv)+4,4)}', drop='nomfma' in diag)
        if not visit and v == 3: return
        if visit:
            if v == 0: q.wait('l', [('lst', par, 0)])
            q(f'''
            v_lshrrev_b32 v{T0}, 7, v{LP}
            v_and_or_b32 v{T0}, v{T0}, s{sNM32}, v{vHALF}
            v_cmpx_eq_u32_sdwa {sp(MK(v))}, s{sEP24 if v == 24 else sEPC}, v{LP} src0_sel:DWORD src1_sel:BYTE_0
            v_bfe_u32 v{T1}, v{LP}, 8, 4
            v_lshl_add_u32 v{PK(v)}, v{T1}, 4, v{vKC}
            v_lshrrev_b32_sdwa v{PK(v)}, v{vHALF}, v{LP+1} dst_sel:WORD_1 dst_unused:UNUSED_PRESERVE src0_sel:DWORD src1_sel:DWORD
            ''')
        q.wait('v', [('gat', ap, av)])
        q(f'{MF} {vp(U,4)}, {vp(GS(av),4)}, {vp(W,4)}, 0', drop='nomfma' in diag)
        q(f'{MF} {vp(U+4,4)}, {vp(GS(av),4)}, {vp(W+4,4)}, 0', drop='nomfma' in diag)
        if visit: q(f'buffer_load_dwordx4 {vp(GS(v),4)}, v{T0}, s[4:7], 0 offen {gatf}', tag=('gat', par, v), drop='nodma' in diag)
        q(f's_mov_b64 exec, {sp(MK(bv))}')
        q(f'v_and_b32 v{T0}, s{sFFFF}, v{PK(bv)}')
        q(f'ds_write_b16_d16_hi v{T0}, v{vHALF} offset:{PIMM}', drop='nopw' in diag)
        q(f's_mov_b64 exec, {sp(MK(av))}')
        q(f'v_and_b32 v{T1}, s{sFFFF}, v{PK(av)}')
        q(f'ds_write_b16_d16_hi v{T1}, v{PK(av)} offset:{PIMM}', drop='nopw' in diag)
        q('s_mov_b64 exec, -1')
        if visit and v + 1 < NV: q(f'ds_read_b64 {vp(LP)}, v{vLB} offset:{LB + (v+1)*256}', tag=('lst', par, v+1))
        for k in range(4): q(f'v_cvt_pk_bf16_f32 v{XB+k}, v{U+2*k}, v{U+2*k+1}')
        q(f'ds_read_b128 {vp(U,4)}, v{vPR}', drop='nopr' in diag)
        q(f'ds_read_b128 {vp(U+4,4)}, v{vPR} offset:1024', tag=('pr', par, v), drop='nopr' in diag)
        if visit and v == 23:
            for k in range(4): q(f'v_mov_b32 v{Q0+k}, 0')
    def cntreset(q, off):
        q(f'''
        v_mbcnt_lo_u32_b32 v{T0}, -1, 0
        v_mbcnt_hi_u32_b32 v{T0}, -1, v{T0}
        v_add_u32 v{T0}, s{sST}, v{T0}
        v_and_b32 v{T1}, 31, v{T0}
        v_lshl_add_u32 v{T0}, v{T0}, 2, {off}
        v_lshlrev_b32 v{T1}, 3, v{T1}
        s_mov_b64 exec, {sp(sNG)}
        ds_write_b32 v{T0}, v{T1} offset:{CNT}
        ''')
    q = Seq()
    for par in range(2):
        LB = [L0, L1][par]
        q(f'B_loop{par}:')
        if MAXSW < 1 << 30: q(f's_cmp_gt_u32 s{sSW}, {MAXSW}\ns_cbranch_scc1 B_epi')
        q(f'''
        s_cmp_lt_u32 s{sU}, s{sUE}
        s_cselect_b32 s36, 1, s{sSP}
        s_cmp_eq_u32 s36, 0
        s_cbranch_scc1 B_free{par}
        ''')
        q(f'ds_read_b64 {vp(LP)}, v{vLB} offset:{LB}', tag=('lst', par, 0))
        for v in range(NV):
            setprio(q, v, par)
            step(q, par, v, LB)
            qd = lambda s: Q1 - 4*(s % 2); mk = lambda s: (40 + 4*(s % 2), 42 + 4*(s % 2))
            for s in range(NS):
                if v == APOS[s] + DA + 1: q.wait('l', [('ret', s)]); A2(q, s, qd(s), mk(s), 1-par)
            if v == APOS[-1] + DA + 1: signal(q, DNA)
            if v == NV - 2: reads_done(q, par)
            for s in range(NS):
                if v == APOS[s]: L2s(q, s, qd(s), *mk(s))
            if v == 1: peek(q, DNR)
            if v == 2: q.wait('l', ['peek']); check(q, DNR); reappend(q, 1-par)
            for s in range(NS):
                if v == APOS[s] - 1: L1s(q, s)
                if v == APOS[s] + DA: q.wait('v', [('rec', s)]); A1(q, s, qd(s), mk(s), 1-par)
            if v == 0:
                if par: q('s_movk_i32 s36, 800')
                cntreset(q, 's36' if par else '0')
                q(f'''
                s_mov_b64 exec, 1
                v_mov_b32 v{T0}, s{sSW}
                v_mov_b32 v{T1}, 0
                ds_max_u32 v{T1}, v{T0} offset:{FLAG}
                s_mov_b64 exec, -1
                ''')
        sweep_end(q, par)
    q('s_branch B_loop0')
    q.resolve(a, True)
    q = Seq()
    q(f'''
    B_free1:
    s_mov_b32 s{sDID}, {L1 - L0}
    s_branch B_free
    B_free0:
    s_mov_b32 s{sDID}, 0
    B_free:
    v_mov_b32 v{T0}, 0
    v_add_u32 v{vLB}, s{sDID}, v{vLB}
    ds_read_b32 v{vF}, v{T0} offset:{FLAG}
    ''')
    q(f'ds_read_b64 {vp(LP)}, v{vLB} offset:{L0}', tag=('lst', 0, 0))
    q(f'''
    s_waitcnt lgkmcnt(1)
    v_readfirstlane_b32 s36, v{vF}
    s_add_u32 s36, s36, 1
    s_cmp_lt_u32 s36, s{sSW}
    s_cbranch_scc1 B_epi
    ''')
    for v in (22, 23, 24): q('buffer_x', tag=('gat', 1, v)); q.o[-1]['t'] = ''
    for v in range(NV):
        setprio(q, v, 'f')
        step(q, 0, v, L0)
        if v == 0:
            q(f's_cmp_lg_u32 s{sDID}, 0\ns_cselect_b32 s36, 800, 0')
            cntreset(q, 's36'); signal(q, DNA)
        if v == NV - 2: reads_done(q, 0)
    sweep_end(q, 0, adv=False)
    q(f'''
    v_subrev_u32 v{vLB}, s{sDID}, v{vLB}
    s_cmp_lg_u32 s{sDID}, 0
    s_cbranch_scc1 B_loop0
    s_branch B_loop1
    ''')
    q.resolve(a, False)

    a.label('B_epi')
    stamp(a)
    a(f'''
    s_setprio 0
    s_load_dwordx2 s[72:73], s[0:1], {K_OUT}
    s_lshl_b32 s36, s{sR0}, 5
    s_lshl_b32 s43, s{sRN}, 5
    v_mbcnt_lo_u32_b32 v{vLB}, -1, 0
    v_mbcnt_hi_u32_b32 v{vLB}, -1, v{vLB}        ; lane
    s_lshl_b32 s38, s{sST}, 9
    s_lshl_b32 s39, s{sST}, 8
    s_add_u32 s40, s39, {L1}                     ; piece 1
    s_add_u32 s39, s39, {L0}                     ; piece 0
    s_mul_i32 s41, s3, {TSZ}
    s_add_u32 s41, s41, {TBL}                    ; piece 2
    v_lshlrev_b32 v{vX}, 4, v{vLB}
    ''')
    srd(a, 12, 's54', 's55', 's36', 's43')
    piece = lambda pr: (39 + min(pr // 6, 2), (pr % 6)*1024)
    q = Seq()
    for v in (22, 23, 24): q('buffer_x', tag=('gat', 1, v)); q.o[-1]['t'] = ''
    q('s_waitcnt lgkmcnt(0)')
    def mdma(pr):
        sg, off = piece(pr)
        q(f's_add_u32 m0, s{sg}, {off}\ns_add_u32 s42, s38, {pr*1024}')
        q(f'buffer_load_dwordx4 v{vX}, s[12:15], s42 offen lds', tag=('m', pr))
    for v in range(4):
        for pr in range(EDM*v, EDM*v + EDM): mdma(pr)
        step(q, 0, v, L0, visit=False)
    t = Asm(); srd(t, 8, 's72', 's73', 's36', 's43'); q('\n'.join(t.l))
    if 'epi' in diag: stamp(q)
    WU, W0, W1, WR, CS, RB, TT, DD, MM, A0, VV = 8, 10, 12, 14, 0, 16, 20, 24, 28, 32, 48
    TMP = 7
    q(f'''
    v_lshrrev_b32 v3, 4, v{vLB}                  ; q
    v_and_b32 v2, 15, v{vLB}                     ; e
    v_add_u32 v5, {WST}, v{vX}
    ds_read_b128 v[44:47], v5
    ds_read_b128 v[48:51], v5 offset:1024
    s_lshl_b32 s37, s3, 10
    s_add_u32 s37, s37, {DST}
    v_lshl_add_u32 v5, v2, 1, s37
    v_lshlrev_b32 v4, 5, v2
    v_lshl_add_u32 v4, v3, 3, v4                 ; e*32 + q*8
    v_add_u32 v2, s39, v4
    v_add_u32 v3, s40, v4
    v_add_u32 v4, s41, v4
    s_mov_b32 s43, 0xffff0000
    s_mov_b32 s44, {SQ:#x}
    s_mov_b32 s45, {SQ:#x}
    v_mov_b32 v{RB+1}, 0
    v_mov_b32 v{RB+3}, 0
    v_mov_b32 v{W0+1}, 0
    v_mov_b32 v{W1+1}, 0
    v_mov_b32 v{WR+1}, 0
    ''')
    def drd(p):
        for h in range(2): q(f'ds_read_u16 v{DD + 2*(p % 2) + h}, v5 offset:{32*(2*p+h)}', tag=('d', p))
    drd(0); drd(1)
    q(f'''
    s_waitcnt lgkmcnt(4)
    v_mov_b32 v{WU}, v44
    v_mov_b32 v{WU+1}, v45
    v_mov_b32 v{W0}, v46
    v_mov_b32 v{W1}, v47
    v_mov_b32 v{WR}, v48
    v_mov_b32 v{CS}, v50
    v_mov_b32 v{CS+1}, v51
    ''')
    MF = 'v_mfma_f32_16x16x16_bf16'
    HS = lambda p: (0, 1) if p < 12 else (0,)
    VR = lambda p, h: VV + 4*h
    lds = lambda v: (2 + min(v // 12, 2), (v % 12)*512)
    def E1(p):
        d = DD + 2*(p % 2); H2 = HS(p)
        q.wait('l', [('d', p)])
        for h in H2: q(f'v_lshlrev_b32 v{d+h}, 16, v{d+h}')
        for h in H2: q(f'v_pk_fma_f32 {vp(TT+2*h)}, {vp(d)}, s[44:45], {vp(CS)} op_sel:[{h},0,0] op_sel_hi:[{h},0,1]')
        if p + 2 <= 12: drd(p + 2)
        for h in H2: q(f'v_pk_mul_f32 {vp(TT+2*h)}, {vp(TT+2*h)}, {vp(TT+2*h)} neg_lo:[0,1] neg_hi:[0,1]')
        for h in H2: q(f'v_exp_f32 v{TT+2*h}, v{TT+2*h}\nv_exp_f32 v{TT+2*h+1}, v{TT+2*h+1}')
        if 4*EDM + p < 13: mdma(4*EDM + p)
        for h in H2: q(f'v_cvt_pk_bf16_f32 v{RB+2*h}, v{TT+2*h}, v{TT+2*h+1}')
        for h in H2:
            q(f'{MF} {vp(A0+8*h,4)}, {vp(W0)}, {vp(RB+2*h)}, 0')
            q(f'{MF} {vp(A0+8*h+4,4)}, {vp(W1)}, {vp(RB+2*h)}, 0')
    def E2(p):
        H2 = HS(p)
        q.wait('v', [('m', p)])
        for h in H2:
            b, off = lds(2*p + h)
            q(f'ds_read_b64 {vp(MM + 2*h)}, v{b} offset:{off}', tag=('mm', p))
        for k in (0, 2):
            for h in H2: q(f'v_pk_mul_f32 {vp(ACC(2*p+h)+k)}, {vp(ACC(2*p+h)+k)}, {vp(A0+8*h+k)}')
        for k in (0, 2):
            for h in H2: q(f'v_pk_fma_f32 {vp(ACC(2*p+h)+k)}, {vp(ACC(2*p+h)+4+k)}, {vp(A0+8*h+4+k)}, {vp(ACC(2*p+h)+k)}')
        for k in (0, 1):
            for h in H2: q(f'v_cvt_pk_bf16_f32 v{ACC(2*p+h)+k}, v{ACC(2*p+h)+2*k}, v{ACC(2*p+h)+2*k+1}')
        for h in H2: q(f'{MF} {vp(VR(p,h),4)}, {vp(WR)}, {vp(RB+2*h)}, 0')
        for h in H2: q(f'{MF} {vp(ACC(2*p+h)+4,4)}, {vp(WU)}, {vp(ACC(2*p+h))}, 0')
    def E3(p):
        H2 = HS(p)
        q.wait('l', [('mm', p)])
        for k in (0, 1):
            for h in H2:
                q(f'v_lshlrev_b32 v{ACC(2*p+h)+2*k}, 16, v{MM+2*h+k}\nv_and_b32 v{ACC(2*p+h)+2*k+1}, s43, v{MM+2*h+k}')
        for k in (0, 2):
            for h in H2: q(f'v_pk_fma_f32 {vp(ACC(2*p+h)+k)}, {vp(ACC(2*p+h)+4+k)}, {vp(VR(p,h)+k)}, {vp(ACC(2*p+h)+k)}')
        for k in (0, 1):
            for h in H2: q(f'v_cvt_pk_bf16_f32 v{ACC(2*p+h)+k}, v{ACC(2*p+h)+2*k}, v{ACC(2*p+h)+2*k+1}')
        sg, off2 = piece(p)
        q(f's_add_u32 s42, s{sg}, {off2}\nv_add_u32 v{TMP}, s42, v{vX}')
        for h in H2:
            b, off = lds(2*p + h)
            q(f'ds_write_b64 v{b}, {vp(ACC(2*p+h))} offset:{off}')
        q(f'ds_read_b128 {vp(ACC(min(2*p+1, 24)),4)}, v{TMP}', tag=('o', p))
    def ST(pr):
        A = ACC(min(2*pr + 1, 24))
        q(f's_add_u32 s42, s38, {pr*1024}')
        q.wait('l', [('o', pr)])
        q(f'buffer_store_dwordx4 {vp(A,4)}, v{vX}, s[8:11], s42 offen {stf}')
    E1(0)
    if 'epi' in diag: stamp(q, T0=TT, T1=TT+1)
    for p in range(12):
        E2(p); E1(p + 1)
        if p >= 1: ST(p - 1)
        E3(p)
    ST(11)
    if 'epi' in diag: stamp(q, T0=TT, T1=TT+1)
    q('s_cmp_ge_u32 s3, 4\ns_cbranch_scc1 B_last')
    E2(12); E3(12)
    q('s_mov_b32 exec_hi, 0')
    ST(12)
    q.resolve(a, False)
    a.label('B_last')
    if 'stamp' in diag:
        a('s_mov_b64 exec, -1\ns_waitcnt vmcnt(0)')
        stamp(a); stamp(a, True)
    a.label('B_end')
    a('s_endpgm')
    out = a.l + stubs.l
    for l in late: out += l
    return out
```

```python
import sys
sys.path.insert(0, 'gen')
import build, passa, passb
passb.MAXSW = 0x7fffffff
hdr = ''.join(open('gather_scatter__molecular_angular_gemnet__graph.s.ref').readlines()[:15])
out = sys.argv[1] if len(sys.argv) > 1 else 'gather_scatter__molecular_angular_gemnet__graph.s'
ka = eval('dict(%s)' % (sys.argv[2] if len(sys.argv) > 2 else ''))
kb = eval('dict(%s)' % (sys.argv[3] if len(sys.argv) > 3 else ''))
parts = [(passa.NAME, 512, passa.LDS, passa.gen(**ka), 256, 80), (passb.NAME, 512, passb.LDS, passb.gen(**kb), 256, 102)]
doc = ''';
;              {idx_in, local output edge, angle} plus a table of segment starts and lengths.
'''
open(out, 'w').write(hdr + doc + build.source(parts))
```

```python
from common import *
import os
NAME = 'bin_kernel'
LDS = 163840
H = int(os.environ.get('HH', 17728)); SB = 12416; WT = 12352
assert 3*H >= TMAX + 256*NPH and (TMAX + 256*NPH)*6 <= TSTRIDE
SD = 'dst_sel:DWORD dst_unused:UNUSED_PAD src0_sel:DWORD'
def gen(PF=8, ldf='nt', mpf=140, stag=0, oob=True, hold=10, stf='sc1', late=False, fused=False, tbf='', diag=()):
    a = Asm()
    def stamp(real=False):
        if 'stamp' not in diag: return
        a(f'''
        {'s_memrealtime' if real else 's_memtime'} s[76:77]
        s_waitcnt lgkmcnt(0)
        v_mov_b32 v30, s76
        v_mov_b32 v31, 0
        s_mov_b64 exec, 1
        buffer_store_dword v30, v31, s[72:75], s78 offen
        s_mov_b64 exec, -1
        s_add_u32 s78, s78, 4
        ''')
    NGR = 25
    RG = lambda q: 56 + 8*q
    R0 = lambda k: 56 + 2*k
    R1 = lambda k: 57 + 2*k
    TA = lambda q: 56 - 2*PF + 2*(q % PF)
    a.label(FNAME if fused else NAME)
    a(f'''
    s_cmp_ge_u32 s2, {NCU}
    s_cbranch_scc1 {'B_end' if fused else 'A_end'}
    {f's_load_dwordx2 s[80:81], s[0:1], {K_DBG}' if fused else ''}
    s_load_dwordx4 s[36:39], s[0:1], {K_II}
    s_load_dwordx2 s[40:41], s[0:1], {K_ANG}
    s_load_dwordx2 s[44:45], s[0:1], {K_WS}
    s_load_dwordx2 s[42:43], s[0:1], {K_M}
    s_load_dwordx2 s[62:63], s[0:1], {K_DIST}
    s_mul_i32 s47, s2, {TILE}
    s_add_u32 s49, s47, {TILE}
    s_and_b32 s47, s47, 0xffffffc0
    s_and_b32 s49, s49, 0xffffffc0
    s_sub_u32 s49, s49, s47
    s_lshl_b32 s46, s47, 2
    s_lshl_b32 s47, s47, 1
    s_lshl_b32 s50, s49, 2
    s_lshl_b32 s51, s49, 1
    s_mul_i32 s48, s2, {TSTRIDE}
    v_lshlrev_b32 v1, 4, v0                      ; x*16
    v_lshlrev_b32 v2, 3, v0                      ; x*8
    v_mov_b32 v3, 1
    v_mov_b32 v4, 0
    v_mov_b32 v5, 0
    v_mov_b32 v6, 0
    v_mov_b32 v7, 0
    s_waitcnt lgkmcnt(0)
    ''')
    srd(a, 4, 's36', 's37', 's46', 's50')
    srd(a, 8, 's38', 's39', 's46', 's50')
    srd(a, 12, 's40', 's41', 's47', 's51')
    def loads(q):
        a(f's_mov_b32 s50, {q*8192}\ns_mov_b32 s51, {q*4096}')
        a(f'buffer_load_dwordx4 v[{RG(q)}:{RG(q)+3}], v1, s[4:7], s50 offen {ldf}')
        a(f'buffer_load_dwordx4 v[{RG(q)+4}:{RG(q)+7}], v1, s[8:11], s50 offen {ldf}')
        a(f'buffer_load_dwordx2 v[{TA(q)}:{TA(q)+1}], v2, s[12:15], s51 offen {ldf}')
    if 'stamp' in diag:
        srd(a, 72, 's44', 's45', 200000000, 1 << 20)
        a('v_lshrrev_b32 v8, 6, v0\ns_nop 1\nv_readfirstlane_b32 s3, v8\ns_lshl_b32 s78, s2, 3\ns_add_u32 s78, s78, s3\ns_lshl_b32 s78, s78, 8')
        stamp(True); stamp(); a('s_waitcnt vmcnt(0)')
    def slow(tag):
        a(f's_bitcmp1_b32 s2, 3\ns_cbranch_scc0 A_f{tag}\ns_waitcnt vmcnt(0)\nA_f{tag}:')
    for q in range(PF):
        loads(q)
        if q < stag: slow(q)
    for k in range(2): a(f'ds_write_b128 v1, v[4:7] offset:{k*8192}')
    srd(a, 16, 's44', 's45', 's48', H*6)
    srd(a, 20, 's44', 's45', TAB_OFF, TAB_BYTES)
    srd(a, 64, 's42', 's43', None, E*32)
    srd(a, 68, 's62', 's63', None, E*2)
    a(f'''
    s_mov_b32 s24, 1374390
    s_mov_b32 s25, {EPC}
    s_mov_b32 s26, {MPH}
    s_mov_b32 s27, 0xffff0000
    s_mov_b32 s28, 0xffff
    s_mov_b32 s29, {H}
    s_mov_b32 s33, 0x07060302
    s_sub_u32 s32, s49, {24*2048}
    s_lshr_b32 s32, s32, 2
    v_cmp_gt_u32 s[30:31], s32, v0
    v_lshrrev_b32 v8, 6, v0
    s_waitcnt lgkmcnt(0)
    v_readfirstlane_b32 s3, v8
    s_barrier
    ''')
    def prefetch(pos):
        if mpf != pos: return
        a(f'''
        v_lshlrev_b32 v9, 7, v0
        s_mul_i32 s50, s2, {EPC*32}
        s_and_b32 s50, s50, 0xffffff80
        s_add_u32 s51, s50, 65536
        s_mul_i32 s52, s2, {EPC*2}
        s_and_b32 s52, s52, 0xffffff80
        s_mov_b32 m0, 160000
        s_nop 0
        buffer_load_dword v9, s[64:67], s50 offen lds
        v_cmp_gt_u32 vcc, {(EPC*32 + 127 + 127)//128 - 512}, v0
        s_mov_b64 exec, vcc
        buffer_load_dword v9, s[64:67], s51 offen lds
        s_mov_b64 exec, -1
        v_cmp_gt_u32 vcc, 50, v0
        s_mov_b64 exec, vcc
        buffer_load_dword v9, s[68:71], s52 offen lds
        s_mov_b64 exec, -1
        ''')
    for q in range(NGR):
        issued = min(NGR, q + PF)
        a(f's_waitcnt vmcnt({3*(issued - q - 1)})')
        if q == NGR-1: a('s_mov_b64 exec, s[30:31]')
        td = [12, 13, 14, 15]; tp = [16, 17, 18, 19]; tl = [20, 21, 22, 23]
        I = lambda e: RG(q) + e; O = lambda e: RG(q) + 4 + e
        for e in range(4): a(f'v_or_b32 v{td[e]}, 3, v{O(e)}')
        for e in range(4): a(f'v_mul_hi_u32_u24 v{tp[e]}, s26, v{I(e)}')
        for e in range(4): a(f'v_mul_hi_u32_u24 v{td[e]}, s24, v{td[e]}')
        for e in range(4): a(f'v_mul_u32_u24 v{tl[e]}, s25, v{td[e]}')
        for e in range(4): a(f'v_and_b32 v{tl[e]}, -4, v{tl[e]}')
        for e in range(4): a(f'v_sub_u32 v{tl[e]}, v{O(e)}, v{tl[e]}')
        for e in range(4): a(f'v_lshl_or_b32 v{tp[e]}, v{tp[e]}, 8, v{td[e]}')
        for e in range(4): a(f'v_lshlrev_b32 v{tp[e]}, 2, v{tp[e]}')
        for e in range(4): a(f'v_and_b32 v{td[e]}, 15, v{tl[e]}')
        for e in range(4):
            a(f'ds_add_u32 v{tp[e]}, v3')
            a(f'v_lshrrev_b32 v{tl[e]}, 4, v{tl[e]}')
            a(f'v_lshl_or_b32 v{td[e]}, v{I(e)}, 4, v{td[e]}')
        for e in range(4):
            k = 4*q + e
            a(f'v_lshl_or_b32 v{R0(k)}, v{td[e]}, 8, v{tl[e]}')
            if e % 2 == 0: a(f'v_lshl_or_b32 v{R1(k)}, v{TA(q)+e//2}, 16, v{tp[e]}')
            else: a(f'v_and_or_b32 v{R1(k)}, v{TA(q)+e//2}, s27, v{tp[e]}')
        if q + PF < NGR: loads(q + PF)
    a('s_mov_b64 exec, -1')
    prefetch(1)
    a('s_waitcnt lgkmcnt(0)')
    stamp()
    a('s_barrier')
    stamp()
    C = 12; Q = 28; PB = 40
    a('v_mul_u32_u24 v11, 24, v0')
    for k in range(3): a(f'ds_read_b64 v[{C+2*k}:{C+2*k+1}], v11 offset:{8*k}')
    a('s_waitcnt lgkmcnt(0)')
    for k in range(6): a(f'v_and_b32 v{PB+k}, 1, v{C+k}')
    for k in range(6): a(f'v_add_u32 v{C+k}, v{C+k}, v{PB+k}')
    for k in range(1, 6): a(f'v_add_u32 v{C+k}, v{C+k}, v{C+k-1}')
    a(f'v_mov_b32 v46, v{C+5}')
    for sh in ('row_shr:1 row_mask:0xf', 'row_shr:2 row_mask:0xf', 'row_shr:4 row_mask:0xf', 'row_shr:8 row_mask:0xf', 'row_bcast:15 row_mask:0xa', 'row_bcast:31 row_mask:0xc'):
        a(f'v_add_u32_dpp v46, v46, v46 {sh} bank_mask:0xf')
    a(f'''
    v_readlane_b32 s35, v46, 63
    s_lshl_b32 s50, s3, 2
    s_add_u32 s50, s50, {WT}
    v_mov_b32 v47, s50
    v_mov_b32 v48, s35
    s_mov_b64 exec, 1
    ds_write_b32 v47, v48
    s_mov_b64 exec, -1
    v_sub_u32 v46, v46, v{C+5}
    v_mov_b32 v47, {WT}
    s_waitcnt lgkmcnt(0)
    s_barrier
    ds_read_b128 v[48:51], v47
    ds_read_b128 v[52:55], v47 offset:16
    s_mov_b32 s35, 0
    s_mov_b32 s34, 0
    s_waitcnt lgkmcnt(0)
    ''')
    for w in range(8):
        a(f'v_readfirstlane_b32 s50, v{48+w}\ns_add_u32 s34, s34, s50\ns_cmp_eq_u32 s3, {w+1}\ns_cselect_b32 s35, s34, s35')
    a(f'v_add_u32 v{Q}, s35, v46')
    for k in range(1, 7): a(f'v_add_u32 v{Q+k}, v{Q}, v{C+k-1}')
    if not late:
        for k in range(6): a(f'v_lshl_or_b32 v{Q+k}, v{PB+k}, 16, v{Q+k}')
    for k in range(3): a(f'ds_write_b64 v11, v[{Q+2*k}:{Q+2*k+1}] offset:{8*k}')
    if late:
        a('s_mul_i32 s34, s34, 6\ns_waitcnt lgkmcnt(0)\ns_barrier')
    else:
        a(f'''
    v_cmp_eq_u32 vcc, 511, v0
    s_mov_b64 exec, vcc
    ds_write_b32 v11, v{Q+6} offset:24
    s_mov_b64 exec, -1
    s_mul_i32 s34, s34, 6
    v_and_b32 v45, 255, v0                       ; d
    v_lshrrev_b32 v46, 8, v0                     ; hh
    v_mul_u32_u24 v47, {6*1024}, v46
    v_lshl_add_u32 v47, v45, 2, v47
    v_mul_u32_u24 v45, {256*48}, v45
    v_mad_u32_u24 v45, v46, 24, v45
    s_mul_i32 s50, s2, 48
    s_waitcnt lgkmcnt(0)
    s_barrier
    ''')
        for k in range(6): a(f'ds_read_b32 v{C+k}, v47 offset:{1024*k}\nds_read_u16 v{Q+k}, v47 offset:{1024*k+4}')
        a('s_waitcnt lgkmcnt(0)\ns_barrier')
        for k in range(6): a(f'v_sub_u32_sdwa v{Q+k}, v{Q+k}, v{C+k} {SD} src1_sel:WORD_0')
        for k in range(6): a(f'v_sub_u32_sdwa v{Q+k}, v{Q+k}, v{C+k} {SD} src1_sel:WORD_1')
        for k in range(6): a(f'v_perm_b32 v{48+k}, v{Q+k}, v{C+k}, s{79}'.replace('s79', 's53'))
        a.l.insert(len(a.l) - 18, '    s_mov_b32 s53, 0x05040100')
        a(f'''
    buffer_store_dwordx4 v[48:51], v45, s[20:23], s50 offen {tbf}
    buffer_store_dwordx2 v[52:53], v45, s[20:23], s50 offen offset:16 {tbf}
    ''')
    stamp()
    prefetch(2)
    NR = 8
    ad = [12 + k for k in range(NR)]; rr = [20 + k for k in range(NR)]
    def issue(k0):
        if k0 == 96:
            for k in range(k0, k0+4): a(f'v_mov_b32 v{rr[k % NR]}, -1')
            a('s_mov_b64 exec, s[30:31]')
        for k in range(k0, k0+4): a(f'v_and_b32 v{ad[k % NR]}, s28, v{R1(k)}')
        for k in range(k0, k0+4): a(f'ds_add_rtn_u32 v{rr[k % NR]}, v{ad[k % NR]}, v3')
        if k0 == 96: a('s_mov_b64 exec, -1')
    def scat(k0, c):
        t = [28, 29, 30, 31]
        if oob:
            for e in range(4): a(f'v_mad_u32_u16 v{t[e]}, v{R1(k0+e)}, 8, s32')
            for e in range(4): a(f'ds_write_b64 v{t[e]}, v[{R0(k0+e)}:{R1(k0+e)}]')
            return
        if c == 0:
            for e in range(4): a(f'v_cmp_gt_u32_sdwa s[{54+2*e}:{55+2*e}], s29, v{R1(k0+e)} src0_sel:DWORD src1_sel:WORD_0')
            for e in range(4): a(f'v_lshlrev_b32_sdwa v{t[e]}, 3, v{R1(k0+e)} {SD} src1_sel:WORD_0')
        else:
            for e in range(4): a(f'v_subrev_u32_sdwa v{t[e]}, s32, v{R1(k0+e)} {SD} src1_sel:WORD_0')
            for e in range(4): a(f'v_cmp_gt_u32 s[{54+2*e}:{55+2*e}], s29, v{t[e]}')
            for e in range(4): a(f'v_lshlrev_b32 v{t[e]}, 3, v{t[e]}')
        for e in range(4):
            a(f's_mov_b64 exec, s[{54+2*e}:{55+2*e}]')
            a(f'ds_write_b64 v{t[e]}, v[{R0(k0+e)}:{R1(k0+e)}] offset:{SB}')
        a('s_mov_b64 exec, -1')
    a(f's_mov_b32 s32, {SB}')
    issue(0)
    for k0 in range(0, 100, 4):
        if k0 + 4 < 100: issue(k0 + 4)
        a(f's_waitcnt lgkmcnt({4 if k0 in (0, 96) else 8})')
        for k in range(k0, k0+4): a(f'v_bfi_b32 v{R1(k)}, s28, v{rr[k % NR]}, v{R1(k)}')
        scat(k0, 0)
        prefetch(100 + k0)
    a(f'''
    v_add_u32 v5, {SB}, v1
    v_add_u32 v6, {SB + 65536}, v1
    v_add_u32 v7, {SB + 131072}, v1
    v_mul_u32_u24 v4, 12, v0
    ''')
    NI = -(-H // 1024); RD = 4
    held = []
    def store(c, it, q): a(f's_mov_b32 s50, {c*H*6 + it*6144}\nbuffer_store_dwordx3 v[{q}:{q+2}], v4, s[16:19], s50 offen {stf}')
    for c in range(3):
        if c:
            a(f's_mov_b32 s32, {(SB - 8*c*H) & 0xffffffff if oob else c*H}')
            for n, k0 in enumerate(range(0, 100, 4)):
                scat(k0, c)
                if n % 2 == 0 and held: store(c - 1, *held.pop(0))
            assert not held
        if fused and c == 0: a(f's_waitcnt vmcnt({3 if mpf >= 100 else 0})')
        a('s_waitcnt lgkmcnt(0)\ns_barrier')
        if fused and c == 0:
            srd(a, 84, 's80', 's81', None, 256)
            a('''
            s_cmp_lg_u32 s3, 0
            s_cbranch_scc1 A_nt
            v_mov_b32 v28, 0
            s_mov_b64 exec, 1
            buffer_atomic_add v3, v28, s[84:87], 0 offen offset:128
            s_mov_b64 exec, -1
            A_nt:
            ''')
        if fused and c == 2: a('v_mov_b32 v28, 0\nbuffer_load_dword v29, v28, s[84:87], 0 offen offset:128 sc1')
        stamp()
        prefetch(3 + c)
        if late and c == 0:
            a(f'''
            v_and_b32 v28, 255, v0                       ; d
            v_lshrrev_b32 v29, 8, v0                     ; hh
            v_mul_u32_u24 v30, {6*1024}, v29
            v_lshl_add_u32 v30, v28, 2, v30
            v_mul_u32_u24 v28, {256*48}, v28
            v_mad_u32_u24 v28, v29, 24, v28
            v_max_u32 v31, 4, v30
            v_subrev_u32 v31, 4, v31
            s_mul_i32 s51, s2, 48
            ''')
            for k in range(6): a(f'ds_read_b32 v{8+k}, v30 offset:{1024*k}\nds_read_b32 v{14+k}, v{31 if k == 0 else 30} offset:{max(1024*k - 4, 0)}')
            a('v_cmp_ne_u32 vcc, 0, v0\ns_waitcnt lgkmcnt(0)\nv_cndmask_b32 v14, 0, v14, vcc')
            for k in range(6): a(f'v_add_u32 v{14+k}, 1, v{14+k}')
            for k in range(6): a(f'v_and_b32 v{14+k}, -2, v{14+k}')
            for k in range(6): a(f'v_sub_u32 v{8+k}, v{8+k}, v{14+k}')
            for k in range(6): a(f'v_lshl_or_b32 v{20+k}, v{8+k}, 16, v{14+k}')
            a('buffer_store_dwordx4 v[20:23], v28, s[20:23], s51 offen\nbuffer_store_dwordx2 v[24:25], v28, s[20:23], s51 offen offset:16')
        a(f's_min_u32 s18, s34, {(c+1)*H*6}')
        nh = hold if c < 2 else 0
        def QD(it):
            if it >= NI - nh: return [8, 12, 16, 20, 24, 32, 36, 40, 44, 48, 52][11 - nh + it - (NI - nh)] if False else HR[it - (NI - nh)]
            return RR[it % len(RR)]
        HR = [8, 12, 16, 20, 24, 32, 36, 40, 44, 48, 52][:nh]
        RR = [x for x in [52, 48, 44, 40, 36, 32]]
        def rd(it):
            a(f'ds_read_b128 v[{QD(it)}:{QD(it)+3}], v{5 + it // 8} offset:{(it % 8)*8192}')
        for it in range(RD-1): rd(it)
        for it in range(NI):
            if it + RD - 1 < NI: rd(it + RD - 1)
            q = QD(it)
            a(f's_waitcnt lgkmcnt({min(RD-1, NI-1-it)})\nv_perm_b32 v{q+1}, v{q+3}, v{q+1}, s33')
            if it >= NI - nh: held.append((it, q))
            else: store(c, it, q)
        if c < 2: a('s_barrier')
        stamp()
    if 'stamp' in diag:
        a('s_waitcnt vmcnt(0)'); stamp(); stamp(True)
    if fused:
        a(f'''
        s_waitcnt vmcnt({NI})
        s_mov_b32 s37, 0
        A_tl:
        v_readfirstlane_b32 s36, v29
        s_cmp_ge_u32 s36, 256
        s_cbranch_scc1 A_tw
        s_add_u32 s37, s37, 1
        s_cmp_gt_u32 s37, 100000
        s_cbranch_scc1 A_tw
        buffer_load_dword v29, v28, s[84:87], 0 offen offset:128 sc1
        s_waitcnt vmcnt(0)
        s_branch A_tl
        A_tw:
        ''')
        return a.l
    a.label('A_end')
    a('s_endpgm')
    return a.l
```

```python
from common import *
import os
NAME = 'bin_kernel'
LDS = 163840
H = int(os.environ.get('HH', 17728)); SB = 12416; WT = 12352
assert 3*H >= TMAX + 256*NPH and (TMAX + 256*NPH)*6 <= TSTRIDE
SD = 'dst_sel:DWORD dst_unused:UNUSED_PAD src0_sel:DWORD'
def gen(PF=8, ldf='nt', mpf=140, stag=0, oob=True, hold=10, stf='sc1', late=False, fused=False, tbf='', diag=()):
    a = Asm()
    def stamp(real=False):
        if 'stamp' not in diag: return
        a(f'''
        {'s_memrealtime' if real else 's_memtime'} s[76:77]
        s_waitcnt lgkmcnt(0)
        v_mov_b32 v30, s76
        v_mov_b32 v31, 0
        s_mov_b64 exec, 1
        buffer_store_dword v30, v31, s[72:75], s78 offen
        s_mov_b64 exec, -1
        s_add_u32 s78, s78, 4
        ''')
    NGR = 25
    RG = lambda q: 56 + 8*q
    R0 = lambda k: 56 + 2*k
    R1 = lambda k: 57 + 2*k
    TA = lambda q: 56 - 2*PF + 2*(q % PF)
    a.label(FNAME if fused else NAME)
    a(f'''
    s_cmp_ge_u32 s2, {NCU}
    s_cbranch_scc1 {'B_end' if fused else 'A_end'}
    {f's_load_dwordx2 s[80:81], s[0:1], {K_DBG}' if fused else ''}
    s_load_dwordx4 s[36:39], s[0:1], {K_II}
    s_load_dwordx2 s[40:41], s[0:1], {K_ANG}
    s_load_dwordx2 s[44:45], s[0:1], {K_WS}
    s_load_dwordx2 s[42:43], s[0:1], {K_M}
    s_load_dwordx2 s[62:63], s[0:1], {K_DIST}
    s_mul_i32 s47, s2, {TILE}
    s_add_u32 s49, s47, {TILE}
    s_and_b32 s47, s47, 0xffffffc0
    s_and_b32 s49, s49, 0xffffffc0
    s_sub_u32 s49, s49, s47
    s_lshl_b32 s46, s47, 2
    s_lshl_b32 s47, s47, 1
    s_lshl_b32 s50, s49, 2
    s_lshl_b32 s51, s49, 1
    s_mul_i32 s48, s2, {TSTRIDE}
    v_lshlrev_b32 v1, 4, v0                      ; x*16
    v_lshlrev_b32 v2, 3, v0                      ; x*8
    v_mov_b32 v3, 1
    v_mov_b32 v4, 0
    v_mov_b32 v5, 0
    v_mov_b32 v6, 0
    v_mov_b32 v7, 0
    s_waitcnt lgkmcnt(0)
    ''')
    srd(a, 4, 's36', 's37', 's46', 's50')
    srd(a, 8, 's38', 's39', 's46', 's50')
    srd(a, 12, 's40', 's41', 's47', 's51')
    def loads(q):
        a(f's_mov_b32 s50, {q*8192}\ns_mov_b32 s51, {q*4096}')
        a(f'buffer_load_dwordx4 v[{RG(q)}:{RG(q)+3}], v1, s[4:7], s50 offen {ldf}')
        a(f'buffer_load_dwordx4 v[{RG(q)+4}:{RG(q)+7}], v1, s[8:11], s50 offen {ldf}')
        a(f'buffer_load_dwordx2 v[{TA(q)}:{TA(q)+1}], v2, s[12:15], s51 offen {ldf}')
    if 'stamp' in diag:
        srd(a, 72, 's44', 's45', 200000000, 1 << 20)
        a('v_lshrrev_b32 v8, 6, v0\ns_nop 1\nv_readfirstlane_b32 s3, v8\ns_lshl_b32 s78, s2, 3\ns_add_u32 s78, s78, s3\ns_lshl_b32 s78, s78, 8')
        stamp(True); stamp(); a('s_waitcnt vmcnt(0)')
    def slow(tag):
        a(f's_bitcmp1_b32 s2, 3\ns_cbranch_scc0 A_f{tag}\ns_waitcnt vmcnt(0)\nA_f{tag}:')
    for q in range(PF):
        loads(q)
        if q < stag: slow(q)
    for k in range(2): a(f'ds_write_b128 v1, v[4:7] offset:{k*8192}')
    srd(a, 16, 's44', 's45', 's48', H*6)
    srd(a, 20, 's44', 's45', TAB_OFF, TAB_BYTES)
    srd(a, 64, 's42', 's43', None, E*32)
    srd(a, 68, 's62', 's63', None, E*2)
    a(f'''
    s_mov_b32 s24, 1374390
    s_mov_b32 s25, {EPC}
    s_mov_b32 s26, {MPH}
    s_mov_b32 s27, 0xffff0000
    s_mov_b32 s28, 0xffff
    s_mov_b32 s29, {H}
    s_mov_b32 s33, 0x07060302
    s_sub_u32 s32, s49, {24*2048}
    s_lshr_b32 s32, s32, 2
    v_cmp_gt_u32 s[30:31], s32, v0
    v_lshrrev_b32 v8, 6, v0
    s_waitcnt lgkmcnt(0)
    v_readfirstlane_b32 s3, v8
    s_barrier
    ''')
    def prefetch(pos):
        if mpf != pos: return
        a(f'''
        v_lshlrev_b32 v9, 7, v0
        s_mul_i32 s50, s2, {EPC*32}
        s_and_b32 s50, s50, 0xffffff80
        s_add_u32 s51, s50, 65536
        s_mul_i32 s52, s2, {EPC*2}
        s_and_b32 s52, s52, 0xffffff80
        s_mov_b32 m0, 160000
        s_nop 0
        buffer_load_dword v9, s[64:67], s50 offen lds
        v_cmp_gt_u32 vcc, {(EPC*32 + 127 + 127)//128 - 512}, v0
        s_mov_b64 exec, vcc
        buffer_load_dword v9, s[64:67], s51 offen lds
        s_mov_b64 exec, -1
        v_cmp_gt_u32 vcc, 50, v0
        s_mov_b64 exec, vcc
        buffer_load_dword v9, s[68:71], s52 offen lds
        s_mov_b64 exec, -1
        ''')
    for q in range(NGR):
        issued = min(NGR, q + PF)
        a(f's_waitcnt vmcnt({3*(issued - q - 1)})')
        if q == NGR-1: a('s_mov_b64 exec, s[30:31]')
        td = [12, 13, 14, 15]; tp = [16, 17, 18, 19]; tl = [20, 21, 22, 23]
        I = lambda e: RG(q) + e; O = lambda e: RG(q) + 4 + e
        for e in range(4): a(f'v_or_b32 v{td[e]}, 3, v{O(e)}')
        for e in range(4): a(f'v_mul_hi_u32_u24 v{tp[e]}, s26, v{I(e)}')
        for e in range(4): a(f'v_mul_hi_u32_u24 v{td[e]}, s24, v{td[e]}')
        for e in range(4): a(f'v_mul_u32_u24 v{tl[e]}, s25, v{td[e]}')
        for e in range(4): a(f'v_and_b32 v{tl[e]}, -4, v{tl[e]}')
        for e in range(4): a(f'v_sub_u32 v{tl[e]}, v{O(e)}, v{tl[e]}')
        for e in range(4): a(f'v_lshl_or_b32 v{tp[e]}, v{tp[e]}, 8, v{td[e]}')
        for e in range(4): a(f'v_lshlrev_b32 v{tp[e]}, 2, v{tp[e]}')
        for e in range(4): a(f'v_and_b32 v{td[e]}, 15, v{tl[e]}')
        for e in range(4):
            a(f'ds_add_u32 v{tp[e]}, v3')
            a(f'v_lshrrev_b32 v{tl[e]}, 4, v{tl[e]}')
            a(f'v_lshl_or_b32 v{td[e]}, v{I(e)}, 4, v{td[e]}')
        for e in range(4):
            k = 4*q + e
            a(f'v_lshl_or_b32 v{R0(k)}, v{td[e]}, 8, v{tl[e]}')
            if e % 2 == 0: a(f'v_lshl_or_b32 v{R1(k)}, v{TA(q)+e//2}, 16, v{tp[e]}')
            else: a(f'v_and_or_b32 v{R1(k)}, v{TA(q)+e//2}, s27, v{tp[e]}')
        if q + PF < NGR: loads(q + PF)
    a('s_mov_b64 exec, -1')
    prefetch(1)
    a('s_waitcnt lgkmcnt(0)')
    stamp()
    a('s_barrier')
    stamp()
    C = 12; Q = 28; PB = 40
    a('v_mul_u32_u24 v11, 24, v0')
    for k in range(3): a(f'ds_read_b64 v[{C+2*k}:{C+2*k+1}], v11 offset:{8*k}')
    a('s_waitcnt lgkmcnt(0)')
    for k in range(6): a(f'v_and_b32 v{PB+k}, 1, v{C+k}')
    for k in range(6): a(f'v_add_u32 v{C+k}, v{C+k}, v{PB+k}')
    for k in range(1, 6): a(f'v_add_u32 v{C+k}, v{C+k}, v{C+k-1}')
    a(f'v_mov_b32 v46, v{C+5}')
    for sh in ('row_shr:1 row_mask:0xf', 'row_shr:2 row_mask:0xf', 'row_shr:4 row_mask:0xf', 'row_shr:8 row_mask:0xf', 'row_bcast:15 row_mask:0xa', 'row_bcast:31 row_mask:0xc'):
        a(f'v_add_u32_dpp v46, v46, v46 {sh} bank_mask:0xf')
    a(f'''
    v_readlane_b32 s35, v46, 63
    s_lshl_b32 s50, s3, 2
    s_add_u32 s50, s50, {WT}
    v_mov_b32 v47, s50
    v_mov_b32 v48, s35
    s_mov_b64 exec, 1
    ds_write_b32 v47, v48
    s_mov_b64 exec, -1
    v_sub_u32 v46, v46, v{C+5}
    v_mov_b32 v47, {WT}
    s_waitcnt lgkmcnt(0)
    s_barrier
    ds_read_b128 v[48:51], v47
    ds_read_b128 v[52:55], v47 offset:16
    s_mov_b32 s35, 0
    s_mov_b32 s34, 0
    s_waitcnt lgkmcnt(0)
    ''')
    for w in range(8):
        a(f'v_readfirstlane_b32 s50, v{48+w}\ns_add_u32 s34, s34, s50\ns_cmp_eq_u32 s3, {w+1}\ns_cselect_b32 s35, s34, s35')
    a(f'v_add_u32 v{Q}, s35, v46')
    for k in range(1, 7): a(f'v_add_u32 v{Q+k}, v{Q}, v{C+k-1}')
    if not late:
        for k in range(6): a(f'v_lshl_or_b32 v{Q+k}, v{PB+k}, 16, v{Q+k}')
    for k in range(3): a(f'ds_write_b64 v11, v[{Q+2*k}:{Q+2*k+1}] offset:{8*k}')
    if late:
        a('s_mul_i32 s34, s34, 6\ns_waitcnt lgkmcnt(0)\ns_barrier')
    else:
        a(f'''
    v_cmp_eq_u32 vcc, 511, v0
    s_mov_b64 exec, vcc
    ds_write_b32 v11, v{Q+6} offset:24
    s_mov_b64 exec, -1
    s_mul_i32 s34, s34, 6
    v_lshrrev_b32 v45, 1, v0                     ; d
    v_and_b32 v46, 1, v0                         ; hh
    v_mul_u32_u24 v47, {6*1024}, v46
    v_lshl_add_u32 v47, v45, 2, v47
    v_mul_u32_u24 v45, 24, v0
    s_mul_i32 s50, s2, {256*48}
    s_waitcnt lgkmcnt(0)
    s_barrier
    ''')
        for k in range(6): a(f'ds_read_b32 v{C+k}, v47 offset:{1024*k}\nds_read_u16 v{Q+k}, v47 offset:{1024*k+4}')
        a('s_waitcnt lgkmcnt(0)\ns_barrier')
        for k in range(6): a(f'v_sub_u32_sdwa v{Q+k}, v{Q+k}, v{C+k} {SD} src1_sel:WORD_0')
        for k in range(6): a(f'v_sub_u32_sdwa v{Q+k}, v{Q+k}, v{C+k} {SD} src1_sel:WORD_1')
        for k in range(6): a(f'v_perm_b32 v{48+k}, v{Q+k}, v{C+k}, s{79}'.replace('s79', 's53'))
        a.l.insert(len(a.l) - 18, '    s_mov_b32 s53, 0x05040100')
        a(f'''
    buffer_store_dwordx4 v[48:51], v45, s[20:23], s50 offen {tbf}
    buffer_store_dwordx2 v[52:53], v45, s[20:23], s50 offen offset:16 {tbf}
    ''')
    stamp()
    prefetch(2)
    NR = 8
    ad = [12 + k for k in range(NR)]; rr = [20 + k for k in range(NR)]
    def issue(k0):
        if k0 == 96:
            for k in range(k0, k0+4): a(f'v_mov_b32 v{rr[k % NR]}, -1')
            a('s_mov_b64 exec, s[30:31]')
        for k in range(k0, k0+4): a(f'v_and_b32 v{ad[k % NR]}, s28, v{R1(k)}')
        for k in range(k0, k0+4): a(f'ds_add_rtn_u32 v{rr[k % NR]}, v{ad[k % NR]}, v3')
        if k0 == 96: a('s_mov_b64 exec, -1')
    def scat(k0, c):
        t = [28, 29, 30, 31]
        if oob:
            for e in range(4): a(f'v_mad_u32_u16 v{t[e]}, v{R1(k0+e)}, 8, s32')
            for e in range(4): a(f'ds_write_b64 v{t[e]}, v[{R0(k0+e)}:{R1(k0+e)}]')
            return
        if c == 0:
            for e in range(4): a(f'v_cmp_gt_u32_sdwa s[{54+2*e}:{55+2*e}], s29, v{R1(k0+e)} src0_sel:DWORD src1_sel:WORD_0')
            for e in range(4): a(f'v_lshlrev_b32_sdwa v{t[e]}, 3, v{R1(k0+e)} {SD} src1_sel:WORD_0')
        else:
            for e in range(4): a(f'v_subrev_u32_sdwa v{t[e]}, s32, v{R1(k0+e)} {SD} src1_sel:WORD_0')
            for e in range(4): a(f'v_cmp_gt_u32 s[{54+2*e}:{55+2*e}], s29, v{t[e]}')
            for e in range(4): a(f'v_lshlrev_b32 v{t[e]}, 3, v{t[e]}')
        for e in range(4):
            a(f's_mov_b64 exec, s[{54+2*e}:{55+2*e}]')
            a(f'ds_write_b64 v{t[e]}, v[{R0(k0+e)}:{R1(k0+e)}] offset:{SB}')
        a('s_mov_b64 exec, -1')
    a(f's_mov_b32 s32, {SB}')
    issue(0)
    for k0 in range(0, 100, 4):
        if k0 + 4 < 100: issue(k0 + 4)
        a(f's_waitcnt lgkmcnt({4 if k0 in (0, 96) else 8})')
        for k in range(k0, k0+4): a(f'v_bfi_b32 v{R1(k)}, s28, v{rr[k % NR]}, v{R1(k)}')
        scat(k0, 0)
        prefetch(100 + k0)
    a(f'''
    v_add_u32 v5, {SB}, v1
    v_add_u32 v6, {SB + 65536}, v1
    v_add_u32 v7, {SB + 131072}, v1
    v_mul_u32_u24 v4, 12, v0
    ''')
    NI = -(-H // 1024); RD = 4
    held = []
    def store(c, it, q): a(f's_mov_b32 s50, {c*H*6 + it*6144}\nbuffer_store_dwordx3 v[{q}:{q+2}], v4, s[16:19], s50 offen {stf}')
    for c in range(3):
        if c:
            a(f's_mov_b32 s32, {(SB - 8*c*H) & 0xffffffff if oob else c*H}')
            for n, k0 in enumerate(range(0, 100, 4)):
                scat(k0, c)
                if n % 2 == 0 and held: store(c - 1, *held.pop(0))
            assert not held
        if fused and c == 0: a(f's_waitcnt vmcnt({3 if mpf >= 100 else 0})')
        a('s_waitcnt lgkmcnt(0)\ns_barrier')
        if fused and c == 0:
            srd(a, 84, 's80', 's81', None, 256)
            a('''
            s_cmp_lg_u32 s3, 0
            s_cbranch_scc1 A_nt
            v_mov_b32 v28, 0
            s_mov_b64 exec, 1
            buffer_atomic_add v3, v28, s[84:87], 0 offen offset:128
            s_mov_b64 exec, -1
            A_nt:
            ''')
        if fused and c == 2: a('v_mov_b32 v28, 0\nbuffer_load_dword v29, v28, s[84:87], 0 offen offset:128 sc1')
        stamp()
        prefetch(3 + c)
        if late and c == 0:
            a(f'''
            v_and_b32 v28, 255, v0                       ; d
            v_lshrrev_b32 v29, 8, v0                     ; hh
            v_mul_u32_u24 v30, {6*1024}, v29
            v_lshl_add_u32 v30, v28, 2, v30
            v_mul_u32_u24 v28, {256*48}, v28
            v_mad_u32_u24 v28, v29, 24, v28
            v_max_u32 v31, 4, v30
            v_subrev_u32 v31, 4, v31
            s_mul_i32 s51, s2, 48
            ''')
            for k in range(6): a(f'ds_read_b32 v{8+k}, v30 offset:{1024*k}\nds_read_b32 v{14+k}, v{31 if k == 0 else 30} offset:{max(1024*k - 4, 0)}')
            a('v_cmp_ne_u32 vcc, 0, v0\ns_waitcnt lgkmcnt(0)\nv_cndmask_b32 v14, 0, v14, vcc')
            for k in range(6): a(f'v_add_u32 v{14+k}, 1, v{14+k}')
            for k in range(6): a(f'v_and_b32 v{14+k}, -2, v{14+k}')
            for k in range(6): a(f'v_sub_u32 v{8+k}, v{8+k}, v{14+k}')
            for k in range(6): a(f'v_lshl_or_b32 v{20+k}, v{8+k}, 16, v{14+k}')
            a('buffer_store_dwordx4 v[20:23], v28, s[20:23], s51 offen\nbuffer_store_dwordx2 v[24:25], v28, s[20:23], s51 offen offset:16')
        a(f's_min_u32 s18, s34, {(c+1)*H*6}')
        nh = hold if c < 2 else 0
        def QD(it):
            if it >= NI - nh: return [8, 12, 16, 20, 24, 32, 36, 40, 44, 48, 52][11 - nh + it - (NI - nh)] if False else HR[it - (NI - nh)]
            return RR[it % len(RR)]
        HR = [8, 12, 16, 20, 24, 32, 36, 40, 44, 48, 52][:nh]
        RR = [x for x in [52, 48, 44, 40, 36, 32]]
        def rd(it):
            a(f'ds_read_b128 v[{QD(it)}:{QD(it)+3}], v{5 + it // 8} offset:{(it % 8)*8192}')
        for it in range(RD-1): rd(it)
        for it in range(NI):
            if it + RD - 1 < NI: rd(it + RD - 1)
            q = QD(it)
            a(f's_waitcnt lgkmcnt({min(RD-1, NI-1-it)})\nv_perm_b32 v{q+1}, v{q+3}, v{q+1}, s33')
            if it >= NI - nh: held.append((it, q))
            else: store(c, it, q)
        if c < 2: a('s_barrier')
        stamp()
    if 'stamp' in diag:
        a('s_waitcnt vmcnt(0)'); stamp(); stamp(True)
    if fused:
        a(f'''
        s_waitcnt vmcnt({NI})
        s_mov_b32 s37, 0
        A_tl:
        v_readfirstlane_b32 s36, v29
        s_cmp_ge_u32 s36, 256
        s_cbranch_scc1 A_tw
        s_add_u32 s37, s37, 1
        s_cmp_gt_u32 s37, 100000
        s_cbranch_scc1 A_tw
        buffer_load_dword v29, v28, s[84:87], 0 offen offset:128 sc1
        s_waitcnt vmcnt(0)
        s_branch A_tl
        A_tw:
        ''')
        return a.l
    a.label('A_end')
    a('s_endpgm')
    return a.l
```

```python
from common import *
NAME = 'agg_kernel'
CNT = 0; FLAG = 1600; DNA = 1604; DNR = 1608; L0 = 1664; L1 = L0 + 196*256
PST = L1 + 196*256; PIMM = 65280
NXMAX = {10: 15, 11: 7, 12: 7}[NPH]
TSZ = (NXMAX + 8*NPH + 1)*32
TBL = PST + 8*2048
SPILL = TBL + 8*TSZ; SPCAP = 128
DST = SPILL + 8*SPCAP*8
WST = DST + 8192
LDS = 163840
assert WST + 2048 <= LDS and TSZ <= 4096
NV = 25
import os
MAXSW = int(os.environ.get('MAXSW', 20000))
T0, T1, vLB, vHALF, vKC, vPR, vX = range(7)
W = 8; G = 16; LP = 28; U = 30; XB = 38; Q0 = 42; Q1 = 46; vP2 = 50
PK = lambda v: [7, 52, 53, 54, 55][v % 5]
vF = Q1
ACC = lambda v: 56 + 8*v
sEPC, sEP24, sNM32, sLIM, sF8, sEPA, sFFFF = 16, 17, 18, 19, 20, 21, 22
sROW, sNX, sU, sUE, sSP, sRES, sDID = 23, 24, 25, 26, 27, 28, 29
sLIVE, sSKIP, sSW, sD, sSPB, sFAR, sST = 30, 32, 34, 35, 48, 49, 51
sR0, sRN = 100, 101
sTG = 72
sKF = 70
sNG = 52
sW24 = 50
MK = lambda v: 60 + 2*(v % 5)
INC = 8 + (1 << 16)
def sp(r): return f's[{r}:{r+1}]'
def vp(r, n=2): return f'v[{r}:{r+n-1}]'
SD = 'dst_sel:DWORD dst_unused:UNUSED_PAD src0_sel:DWORD'

class Seq:
    def __init__(s): s.o = []
    def __call__(s, t, tag=None, maybe=False, drop=False):
        ls = [x.strip() for x in t.strip('\n').split('\n') if x.strip()]
        for x in ls:
            c = 'v' if x.startswith('buffer_') else ('l' if x.startswith('ds_') else None)
            s.o.append(dict(t='' if drop else x, c=c, tag=tag if c else None, maybe=maybe or drop))
    def wait(s, c, tags): s.o.append(dict(t=None, c=None, w=c, tags=tags))
    def resolve(s, a, cyclic):
        n = len(s.o)
        for k, x in enumerate(s.o):
            if x['t'] is not None: a(x['t']); continue
            cnt = 0; found = None; j = k - 1; steps = 0
            while steps < n:
                if j < 0:
                    if not cyclic: break
                    j += n
                y = s.o[j]
                if y['c'] == x['w']:
                    if y['tag'] in x['tags']: found = cnt; break
                    if not y['maybe']: cnt += 1
                j -= 1; steps += 1
            assert found is not None, x
            a(f's_waitcnt vmcnt({min(found,63)})' if x['w'] == 'v' else f's_waitcnt lgkmcnt({min(found,15)})')

def gen(APOS=(1,3,5,7,9,11,13,15), DA=2, recflags='', prio=(0,12), wpf=False, EDM=2, gatf='', fused=False, stf='nt', diag=()):
    NS = 8
    a = Asm(); stubs = Asm(); late = []
    uid = [0]
    def nid(): uid[0] += 1; return uid[0]
    def stamp(q, real=False, T0=T0, T1=T1):
        if 'stamp' not in diag: return
        q(f'''
        {'s_memrealtime' if real else 's_memtime'} s[96:97]
        s_waitcnt lgkmcnt(0)
        v_mov_b32 v{T0}, s96
        v_mov_b32 v{T1}, 0
        s_mov_b64 exec, 1
        ''')
        t = f'buffer_store_dword v{T0}, v{T1}, s[92:95], s98 offen'
        q(t, maybe=True) if isinstance(q, Seq) else q(t)
        q('s_mov_b64 exec, -1\ns_add_u32 s98, s98, 4')
    def k2(q, extra='0'):
        q(f'''
        v_mbcnt_lo_u32_b32 v{T0}, -1, 0
        v_mbcnt_hi_u32_b32 v{T0}, -1, v{T0}
        v_and_b32 v{T0}, 15, v{T0}
        v_lshl_add_u32 v{T0}, v{T0}, 1, {extra}
        v_mov_b32_sdwa v{vX}, v{T0} dst_sel:WORD_1 dst_unused:UNUSED_PRESERVE src0_sel:WORD_0
        ''')
    def L1s(q, sig, p2=vP2, off=None):
        k = nid()
        q(f'''
        s_add_u32 s36, s{sU}, {32*(sig if off is None else off)}
        s_cmp_ge_u32 s36, s{sFAR}
        s_cbranch_scc1 B_far{k}
        B_farb{k}:
        v_add_u32_sdwa v{T0}, s36, v{vX} {SD} src1_sel:WORD_0
        ''')
        q(f'ds_read_b64 {vp(p2)}, v{T0}', tag=('ent', sig))
        stubs(f'''
        B_far{k}:
        s_cmp_ge_u32 s36, s{sUE}
        s_cselect_b32 s36, s{sFAR}, s36
        s_cbranch_scc1 B_farb{k}
        s_sub_u32 s37, s36, s{sROW}
        s_lshr_b32 s37, s37, 5
        s_mov_b32 s38, {-(-(1 << 32) // (8*NPH))}
        s_mul_hi_u32 s37, s37, s38
        s_mul_i32 s38, s37, {8*NPH*32}
        s_sub_u32 s36, s36, s38
        s_lshl_b32 s37, s37, 5
        ''')
        k2(stubs, 's37'); stubs(f's_branch B_farb{k}')
    def L2s(q, sig, quad, m0, m1, p2=vP2, wait=True):
        if wait: q.wait('l', [('ent', sig)])
        q(f'''
        v_cmp_lt_u32_sdwa {sp(m0)}, v{vX}, v{p2+1} src0_sel:WORD_1 src1_sel:WORD_0
        v_mad_u32_u16 v{T0}, v{vX}, 6, v{p2} op_sel:[1,0,0,0]
        v_cmp_lt_u32_sdwa {sp(m1)}, v{vX}, v{p2+1} src0_sel:WORD_1 src1_sel:WORD_1
        s_mov_b64 exec, {sp(m0)}
        ''')
        q(f'buffer_load_dwordx3 {vp(quad,3)}, v{T0}, s[8:11], 0 offen {recflags}', tag=('rec', sig))
        q('s_mov_b64 exec, -1')
        if sig == 0: q(f's_andn2_b64 {sp(m0)}, {sp(m0)}, {sp(sSKIP)}')
    def COS(q, quad, h, filler):
        if 'nocos' in diag: q(filler); return
        q(f'''
        v_cvt_f32_bf16_sdwa v{T0}, v{quad+1} dst_sel:DWORD dst_unused:UNUSED_PAD src0_sel:WORD_{h}
        v_pk_mul_f32 {vp(T0)}, {vp(T0)}, {sp(sKF)} op_sel_hi:[0,1]
        ''')
        q(f'''
        v_cos_f32 v{T0}, v{T0}
        v_cos_f32 v{T1}, v{T1}
        {filler}
        v_cvt_pk_bf16_f32 v{quad+1+2*h}, v{T0}, v{T1}
        ''')
    def A1(q, sig, quad, masks, par, live=True, p2=vP2):
        ex = lambda h: f's_and_b64 exec, {sp(masks[h])}, {sp(sLIVE)}' if live else f's_mov_b64 exec, {sp(masks[h])}'
        if live:
            COS(q, quad, 1, f'v_mov_b32 v{p2+1}, {INC}'); COS(q, quad, 0, ex(0))
        else: q(f'v_mov_b32 v{p2+1}, {INC}\n{ex(0)}')
        for h in range(2):
            if h: q(ex(1))
            q(f'v_lshlrev_b32_sdwa v{T0}, 2, v{quad+2*h} {SD} src1_sel:BYTE_0')
            q(f'ds_add_rtn_u32 v{p2+h}, v{T0}, v{p2+1} offset:{CNT+800*par}', tag=('ret', sig))
        q('s_mov_b64 exec, -1')
    def A2(q, sig, quad, masks, par, live=True, p2=vP2):
        for h in range(2):
            k = nid()
            q(f's_and_b64 exec, {sp(masks[h])}, {sp(sLIVE)}' if live else f's_mov_b64 exec, {sp(masks[h])}')
            q(f'''
            v_lshlrev_b32_sdwa v{T0}, 8, v{quad+2*h} {SD} src1_sel:BYTE_0
            v_cmp_le_u32 vcc, s{sLIM}, v{p2+h}
            v_and_or_b32 v{T0}, v{p2+h}, s{sF8}, v{T0}
            s_cbranch_vccnz B_sp{k}
            B_spb{k}:
            v_mov_b32_sdwa v{quad+2*h}, s{sEPA} dst_sel:BYTE_0 dst_unused:UNUSED_PRESERVE src0_sel:BYTE_0
            ''')
            q(f'ds_write_b64 v{T0}, {vp(quad+2*h)} offset:{[L0, L1][par]}')
            stubs(f'''
            B_sp{k}:
            v_mbcnt_lo_u32_b32 v{T1}, vcc_lo, 0
            v_mbcnt_hi_u32_b32 v{T1}, vcc_hi, v{T1}
            s_lshl_b32 s36, s{sSP}, 3
            s_add_u32 s36, s36, s{sSPB}
            v_lshl_add_u32 v{T1}, v{T1}, 3, s36
            s_bcnt1_i32_b64 s37, vcc
            s_add_u32 s{sSP}, s{sSP}, s37
            s_andn2_b64 s[36:37], exec, vcc
            s_mov_b64 exec, vcc
            ds_write_b64 v{T1}, {vp(quad+2*h)}
            s_mov_b64 exec, s[36:37]
            ''')
            if live:
                stubs(f'''
                s_cmp_le_u32 s{sSP}, {SPCAP-64}
                s_cbranch_scc1 B_spb{k}
                s_mov_b64 {sp(sLIVE)}, 0
                s_add_u32 s{sRES}, s{sU}, {32*sig + 16*(h+1)}
                ''')
            stubs(f's_branch B_spb{k}')
        q('s_mov_b64 exec, -1')
    def signal(q, off):
        q(f'''
        s_mov_b64 exec, 1
        v_mov_b32 v{T0}, 0
        v_mov_b32 v{T1}, 1
        ds_add_u32 v{T0}, v{T1} offset:{off}
        s_mov_b64 exec, -1
        ''')
    def peek(q, off): q(f'v_mov_b32 v{T0}, 0'); q(f'ds_read_b32 v{vP2}, v{T0} offset:{off}', tag='peek')
    def check(q, off):
        k = nid()
        q(f'''
        v_readfirstlane_b32 s36, v{vP2}
        s_cmp_lt_u32 s36, s{sTG}
        s_cbranch_scc1 B_sy{k}
        B_syb{k}:
        ''')
        stubs(f'''
        B_sy{k}:
        v_mov_b32 v{T0}, 0
        ds_read_b32 v{vP2}, v{T0} offset:{off}
        s_waitcnt lgkmcnt(0)
        v_readfirstlane_b32 s36, v{vP2}
        ''')
        if MAXSW < 1 << 30: stubs(f's_add_u32 s73, s73, 1\ns_cmp_gt_u32 s73, 2000000\ns_cbranch_scc1 B_syb{k}')
        stubs(f'''
        s_cmp_lt_u32 s36, s{sTG}
        s_cbranch_scc1 B_sy{k}
        s_branch B_syb{k}
        ''')
    def reads_done(q, par):
        k = nid()
        q(f's_add_u32 s36, s{sSW}, 1\ns_and_b32 s36, s36, 126\ns_cbranch_scc0 B_cl{k}\nB_clb{k}:')
        stubs(f'B_cl{k}:\nv_mov_b32 v{Q1}, s{sEPC}\nv_mov_b32 v{Q1+1}, 0')
        for v in range(24): stubs(f'ds_write_b64 v{vLB}, {vp(Q1)} offset:{[L0, L1][par] + v*256}')
        stubs(f's_cmp_lg_u32 s{sW24}, 0\ns_cbranch_scc1 B_clb{k}')
        stubs(f'ds_write_b64 v{vLB}, {vp(Q1)} offset:{[L0, L1][par] + 24*256}\ns_branch B_clb{k}')
        signal(q, DNR)
    def sweep_end(q, par, adv=True):
        k = nid()
        if par is not None: peek(q, DNA)
        if adv: q(f'''
        s_add_u32 s{sU}, s{sU}, {32*NS}
        s_mov_b64 {sp(sSKIP)}, 0
        s_cmp_eq_u32 s{sLIVE}, 0
        s_cbranch_scc1 B_st{k}
        B_stb{k}:
        ''')
        q(f's_add_u32 s{sSW}, s{sSW}, 1')
        if par is not None: q(f's_add_u32 s{sTG}, s{sTG}, 8')
        q(f'''
        s_mov_b32 s{sEPC}, s{sEPA}
        s_add_u32 s{sEPA}, s{sEPA}, 1
        s_and_b32 s{sEPA}, s{sEPA}, 255
        s_or_b32 s{sEP24}, s{sEPC}, s{sW24}
        s_waitcnt lgkmcnt(0)
        ''')
        if 'prebar' in diag: stamp(q)
        if par is None: q('s_barrier')
        else: check(q, DNA)
        stamp(q)
        if not adv: return
        stubs(f'''
        B_st{k}:
        s_and_b32 s{sU}, s{sRES}, 0xffffffe0
        s_bitcmp1_b32 s{sRES}, 4
        s_cselect_b64 {sp(sSKIP)}, -1, 0
        s_mov_b64 {sp(sLIVE)}, -1
        ''')
        k2(stubs); stubs(f's_branch B_stb{k}')
    def reappend(q, par):
        k = nid()
        q(f's_cmp_lg_u32 s{sSP}, 0\ns_cbranch_scc1 B_ra{k}\nB_rab{k}:')
        r = Seq()
        r(f'''
        B_ra{k}:
        v_mbcnt_lo_u32_b32 v{T0}, -1, 0
        v_mbcnt_hi_u32_b32 v{T0}, -1, v{T0}
        v_lshl_add_u32 v{T1}, v{T0}, 3, s{sSPB}
        ds_read_b64 {vp(Q0)}, v{T1}
        ds_read_b64 {vp(Q0+2)}, v{T1} offset:512
        v_cmp_gt_u32 s[44:45], s{sSP}, v{T0}
        v_add_u32 v{T0}, 64, v{T0}
        v_cmp_gt_u32 s[46:47], s{sSP}, v{T0}
        s_mov_b32 s{sSP}, 0
        s_waitcnt lgkmcnt(0)
        ''')
        A1(r, 99, Q0, (44, 46), par, live=False)
        r('s_waitcnt lgkmcnt(0)')
        A2(r, 99, Q0, (44, 46), par, live=False)
        r(f'''
        s_waitcnt lgkmcnt(0)
        s_cmp_le_u32 s{sSP}, {SPCAP-64}
        s_cbranch_scc1 B_rab{k}
        s_mov_b64 {sp(sLIVE)}, 0
        s_and_b32 s36, s{sSKIP}, 16
        s_add_u32 s{sRES}, s{sU}, s36
        s_branch B_rab{k}
        ''')
        tmp = Asm(); r.resolve(tmp, False); late.append(tmp.l)

    def poll(q, off, tag):
        q(f'''
        s_cmp_lg_u32 s3, 0
        s_cbranch_scc1 B_pw{tag}
        s_mov_b32 s37, 0
        B_pl{tag}:
        v_mov_b32 v122, 0
        buffer_load_dword v123, v122, s[40:43], 0 offen offset:{off} sc1
        s_waitcnt vmcnt(0)
        v_readfirstlane_b32 s36, v123
        s_add_u32 s37, s37, 1
        s_cmp_gt_u32 s37, 100000
        s_cbranch_scc1 B_pw{tag}
        s_cmp_lt_u32 s36, 256
        s_cbranch_scc1 B_pl{tag}
        B_pw{tag}:
        s_barrier
        ''')
    if fused:
        recflags = 'sc1'
        a('s_mov_b32 s40, s84\ns_mov_b32 s41, s85\ns_mov_b32 s42, 256\ns_mov_b32 s43, 0x20000')
    else:
        a.label(NAME)
        a(f's_cmp_ge_u32 s2, {NCU}\ns_cbranch_scc1 B_end')
    a(f'''
    s_load_dwordx2 s[56:57], s[0:1], {K_WS}
    s_load_dwordx2 s[54:55], s[0:1], {K_M}
    s_load_dwordx2 s[58:59], s[0:1], {K_DIST}
    s_load_dwordx4 s[60:63], s[0:1], {K_CEN}     ; centers, ang_freq
    s_load_dwordx8 s[64:71], s[0:1], {K_WRBF}
    s_and_b32 s{sD}, s2, 7
    s_lshl_b32 s{sD}, s{sD}, 5
    s_lshr_b32 s36, s2, 3
    s_add_u32 s{sD}, s{sD}, s36
    v_lshrrev_b32 v34, 6, v0
    v_lshrrev_b32 v35, 1, v0
    v_mul_u32_u24 v35, {256*48}, v35
    v_and_b32 v36, 1, v0
    v_mad_u32_u24 v35, v36, 24, v35              ; j*12288 + hh*24
    v_lshlrev_b32 v36, 2, v0                     ; x*4
    v_readfirstlane_b32 s3, v34
    s_mul_i32 s36, s{sD}, 48
    v_and_b32 v37, 63, v0                        ; lane
    v_and_b32 v38, 15, v0                        ; n
    v_lshrrev_b32 v39, 5, v37                    ; h
    v_lshrrev_b32 v33, 4, v37                    ; q
    v_lshlrev_b32 v41, 1, v38
    v_lshl_add_u32 v40, v39, 8, v41              ; (8h)*32 + n*2
    s_mul_i32 s{sST}, s3, 25
    s_sub_i32 s37, s3, 4
    s_max_i32 s37, s37, 0
    s_sub_u32 s{sST}, s{sST}, s37
    s_mul_i32 s{sR0}, s{sD}, {EPC}
    s_add_u32 s{sRN}, s{sR0}, {EPC}
    s_and_b32 s{sR0}, s{sR0}, -4
    s_and_b32 s{sRN}, s{sRN}, -4
    s_sub_u32 s{sRN}, s{sRN}, s{sR0}
    s_lshl_b32 s37, s{sR0}, 1
    s_lshl_b32 s38, s{sRN}, 1
    s_waitcnt lgkmcnt(0)
    ''')
    srd(a, 12, 's56', 's57', TAB_OFF, TAB_BYTES)
    def table(): a(f'''
    buffer_load_dwordx4 v[104:107], v35, s[12:15], s39 offen {recflags}
    buffer_load_dwordx2 v[108:109], v35, s[12:15], s39 offen offset:16 {recflags}
    ''')
    a('s_load_dword s99, s[62:63], 0\ns_mov_b32 s39, s36')
    table()
    srd(a, 76, 's68', 's69', None, 512)
    for k in range(8): a(f'buffer_load_ushort v{72+k}, v40, s[76:79], 0 offen offset:{32*k}')
    srd(a, 80, 's58', 's59', 's37', 's38')
    a(f'''
    s_lshl_b32 s36, s{sST}, 5
    v_lshlrev_b32 v32, 4, v37                    ; lane*16
    v_mov_b32 v96, v32
    buffer_load_dwordx4 v[80:83], v32, s[80:83], s36 offen
    v_lshl_add_u32 v42, v33, 7, v41              ; (4q)*32 + n*2
    v_lshl_add_u32 v43, v33, 6, v41              ; (2q)*32 + n*2
    v_lshlrev_b32 v44, 2, v33                    ; (2q)*2
    ''')
    R = 84
    srd(a, 84, 's70', 's71', None, 512)
    for k in range(4): a(f'buffer_load_ushort v{R+k}, v42, s[84:87], 0 offen offset:{32*k}')
    srd(a, 88, 's66', 's67', None, 512)
    for k in range(4): a(f'buffer_load_ushort v{R+4+k}, v42, s[88:91], 0 offen offset:{32*k}')
    srd(a, 72, 's64', 's65', None, 256)
    for k in range(2): a(f'buffer_load_ushort v{R+8+k}, v43, s[72:75], 0 offen offset:{32*k}')
    srd(a, 44, 's60', 's61', None, 16)
    for k in range(2): a(f'buffer_load_ushort v{R+10+k}, v44, s[44:47], 0 offen offset:{2*k}')
    srd(a, 4, 's54', 's55', None, 0 if 'nogather' in diag else E*32)
    srd(a, 8, 's56', 's57', None, REC_BYTES + 16)
    if 'stamp' in diag:
        srd(a, 92, 's56', 's57', 200000000, 1 << 20)
        a('s_lshl_b32 s98, s2, 3\ns_add_u32 s98, s98, s3\ns_lshl_b32 s98, s98, 8\nv_mov_b32 v42, v0')
        stamp(a, True); stamp(a); a('v_mov_b32 v0, v42')
    if fused: a('s_barrier')
    a(f'''
    v_lshlrev_b32 v41, 4, v0
    v_mov_b32 v42, 0
    v_mov_b32 v43, 0
    v_mov_b32 v44, 0
    v_mov_b32 v45, 0
    v_add_u32 v52, {L0}, v41
    v_add_u32 v53, {L1}, v41
    s_mul_i32 s39, s3, {TSZ}
    s_add_u32 s39, s39, {TBL}
    v_add_u32 v54, s39, v32
    ''')
    for k in range(6): a(f'ds_write_b128 v52, v[42:45] offset:{k*8192}')
    for k in range(TSZ // 1024): a(f'ds_write_b128 v54, v[42:45] offset:{k*1024}')
    if TSZ % 1024: a(f's_mov_b64 exec, {(1 << (TSZ % 1024 // 16)) - 1}\nds_write_b128 v54, v[42:45] offset:{TSZ // 1024 * 1024}\ns_mov_b64 exec, -1')
    assert L1 - L0 == 6*8192 + 1024 and TBL - L1 == 8*8192 + 1024
    a(f'''
    v_mov_b32 v98, v53
    v_cmp_gt_u32 s[14:15], 64, v0
    s_mov_b64 exec, s[14:15]
    ds_write_b128 v52, v[42:45] offset:{6*8192}
    s_mov_b64 exec, -1
    v_and_b32 v52, 31, v0
    v_lshlrev_b32 v52, 3, v52
    v_cmp_gt_u32 vcc, 200, v0
    s_mov_b64 exec, vcc
    ds_write_b32 v36, v52 offset:{CNT}
    ds_write_b32 v36, v52 offset:{CNT+800}
    ds_write_b96 v42, v[42:44] offset:{FLAG}
    s_mov_b64 exec, -1
    s_mov_b32 s{sEPC}, 0
    s_mov_b32 s{sEPA}, 1
    s_mov_b32 s{sNM32}, 0xffffffe0
    s_mov_b32 s{sLIM}, {32 << 16}
    s_mov_b32 s{sF8}, 0xf8
    s_mov_b32 s{sFFFF}, 0xffff
    s_mov_b32 s{sSP}, 0
    s_mov_b32 s{sRES}, 0
    s_mov_b64 {sp(sLIVE)}, -1
    s_mov_b64 {sp(sSKIP)}, 0
    s_mov_b32 s{sSW}, 0
    s_mul_i32 s{sSPB}, s3, {SPCAP*8}
    s_add_u32 s{sSPB}, s{sSPB}, {SPILL}
    s_cmp_lt_u32 s3, 4
    s_cselect_b32 s37, 25, 24
    s_cselect_b32 s{sW24}, 0, 0x100
    s_bfm_b32 s{sNG}, s37, 0
    s_mov_b32 s{sNG+1}, 0
    s_lshl_b32 s36, s{sST}, 8
    v_and_b32 v52, 31, v37                       ; record rho
    v_lshl_add_u32 v{vLB}, v52, 3, s36
    v_lshlrev_b32 v{vHALF}, 4, v39
    s_lshl_b32 s36, s3, 11
    s_add_u32 s36, s36, {PST}
    s_sub_u32 s37, s36, {PIMM}
    v_lshl_add_u32 v53, v39, 10, s37
    v_bfe_u32 v54, v52, 2, 2
    v_lshl_add_u32 v53, v54, 8, v53              ; + q*256
    v_lshrrev_b32 v54, 4, v52
    v_lshl_add_u32 v53, v54, 3, v53              ; + j*8
    v_and_b32 v54, 3, v52
    v_lshl_add_u32 v{vKC}, v54, 1, v53           ; + r*2
    v_lshl_add_u32 v54, v33, 8, s36
    v_lshl_add_u32 v{vPR}, v38, 4, v54           ; P base + q*256 + e*16
    v_lshlrev_b32 v{vX}, 3, v33
    v_lshl_or_b32 v{vX}, v38, 17, v{vX}          ; q*8 | (2e << 16)
    s_add_u32 s{sROW}, s39, {NXMAX*32}
    s_add_u32 s{sFAR}, s{sROW}, {8*NPH*32}
    v_and_b32 v53, 1, v33
    v_cmp_eq_u32 s[56:57], 0, v53                ; lanes whose record is in 0..15
    v_lshrrev_b32 v52, 1, v0                     ; tile j
    s_mov_b32 s36, {TSTRIDE}
    v_mul_u32_u24 v120, s36, v52
    v_and_b32 v53, 1, v0                         ; hh
    v_mul_u32_u24 v54, {6*256}, v53
    v_lshrrev_b32 v55, 1, v37
    v_lshl_add_u32 v54, v55, 3, v54
    v_add_u32 v121, s{sROW}, v54
    s_mov_b32 s{sU}, s{sROW}
    s_mov_b32 s{sUE}, s{sFAR}
    s_sub_u32 s13, s{sROW}, 32
    ''')
    if fused:
        a('''
        s_waitcnt vmcnt(23)
        s_barrier
        s_cmp_lg_u32 s3, 0
        s_cbranch_scc1 B_nd
        v_mov_b32 v122, 0
        v_mov_b32 v123, 1
        s_mov_b64 exec, 1
        buffer_atomic_add v123, v122, s[40:43], 0 offen
        s_mov_b64 exec, -1
        B_nd:
        ''')
    if 'pro' in diag: stamp(a, T0=56, T1=57)
    a('s_waitcnt vmcnt(21)')
    if 'pro' in diag: stamp(a, T0=56, T1=57)
    N = 110
    for k in range(6): a(f'v_lshrrev_b32 v{N+k}, 16, v{104+k}')
    a(f'''
    v_max3_u32 v116, v{N}, v{N+1}, v{N+2}
    v_max3_u32 v116, v116, v{N+3}, v{N+4}
    v_max_u32 v116, v116, v{N+5}
    v_cmp_lt_u32 vcc, 32, v116
    s_cbranch_vccnz B_x
    B_xb:
    ''')
    def entry(q, k, r):
        q(f'''
        v_max_u32 v{r+1}, 1, v{N+k}
        v_mad_u32_u16 v{r}, v{104+k}, 6, v120
        v_subrev_u32 v{r+1}, 1, v{r+1}
        v_lshl_or_b32 v{r+1}, v{r+1}, 16, v{N+k}
        ''')
    def row(q, k):
        entry(q, k, 118)
        if 6 + k >= NPH: q('s_mov_b32 exec_lo, 0x55555555\ns_mov_b32 exec_hi, 0x55555555')
        q(f'ds_write_b64 v121, v[118:119] offset:{k*256}')
        if 6 + k >= NPH: q('s_mov_b64 exec, -1')
    stubs(f'B_x:\ns_mov_b32 s{sNX}, 0')
    for k in range(6):
        entry(stubs, k, 118)
        stubs(f'''
        v_cmp_lt_u32 vcc, 32, v{N+k}
        v_add_u32 v118, 192, v118
        v_subrev_u32 v119, {32 + (32 << 16)}, v119
        v_mbcnt_lo_u32_b32 v117, vcc_lo, 0
        v_mbcnt_hi_u32_b32 v117, vcc_hi, v117
        s_bcnt1_i32_b64 s37, vcc
        v_add_u32 v117, s{sNX}, v117
        s_add_u32 s{sNX}, s{sNX}, s37
        s_cmp_gt_u32 s{sNX}, {4*NXMAX}
        s_cselect_b64 vcc, 0, vcc
        s_sub_u32 s37, s{sROW}, 8
        v_lshlrev_b32 v117, 3, v117
        v_sub_u32 v117, s37, v117                ; extra entries grow downwards from the first row
        s_mov_b64 exec, vcc
        ds_write_b64 v117, v[118:119]
        s_mov_b64 exec, -1
        ''')
    for sh in ('row_shr:1 row_mask:0xf', 'row_shr:2 row_mask:0xf', 'row_shr:4 row_mask:0xf', 'row_shr:8 row_mask:0xf', 'row_bcast:15 row_mask:0xa', 'row_bcast:31 row_mask:0xc'):
        stubs(f'v_max_u32_dpp v116, v116, v116 {sh} bank_mask:0xf')
    stubs(f'''
    v_readlane_b32 s36, v116, 63                 ; longest segment of this wave
    s_add_u32 s37, s{sNX}, 3
    s_lshr_b32 s37, s37, 2
    s_lshl_b32 s37, s37, 5
    s_sub_u32 s{sU}, s{sROW}, s37
    s_cmp_gt_u32 s{sNX}, {4*NXMAX}
    s_cselect_b32 s37, 65, 0
    s_max_u32 s37, s37, s36
    s_cmp_gt_u32 s37, 64
    s_cbranch_scc0 B_xb
    s_mov_b32 s{sU}, s{sROW}                     ; general case: every phase once per chunk of 32 records
    s_add_u32 s36, s36, 31
    s_lshr_b32 s36, s36, 5
    s_mul_i32 s36, s36, {8*NPH*32}
    s_add_u32 s{sUE}, s{sROW}, s36
    s_mov_b32 s13, s{sFAR}
    s_branch B_xb
    ''')
    q = Seq()
    SL = list(range(-1, NS))
    pq = lambda s: 20 + 4*s
    pm = lambda s: (40, 42) if s < 0 else ((58 + 4*s, 60 + 4*s) if s < 3 else (60 + 4*s, 62 + 4*s))
    pp = lambda s: 54 + 2*(s + 1)
    row(q, 0)
    if fused:
        for k in range(1, 6): row(q, k)
        poll(q, 0, 'd')
    q('s_waitcnt lgkmcnt(0)')
    for s in SL:
        q(f's_add_u32 s36, s{sROW}, {32*s}' if s >= 0 else 's_mov_b32 s36, s13')
        q(f'v_add_u32_sdwa v{T0}, s36, v{vX} {SD} src1_sel:WORD_0')
        q(f'ds_read_b64 {vp(pp(s))}, v{T0}', tag=('ent', s))
    for s in SL: L2s(q, s, pq(s), *pm(s), pp(s))
    if not fused:
        for k in range(1, 6): row(q, k)
    q(f'''
    s_lshl_b32 s36, s99, 16
    s_and_b32 s37, s99, 0xffff0000
    v_mov_b32 v116, s36
    v_mov_b32 v117, s37
    v_mul_f32 v116, 0.15915494, v116
    v_mul_f32 v117, 0.15915494, v117
    v_readfirstlane_b32 s{sKF}, v116
    v_readfirstlane_b32 s{sKF+1}, v117
    ''')
    a_ = a; a = q
    stamp(q)
    a = a_
    import struct, math
    SQ = struct.unpack('<I', struct.pack('<f', math.sqrt(10*math.log2(math.e))))[0]
    def operands(q):
        for k in range(4):
            q(f'''
            v_lshl_or_b32 v{72+2*k}, v{73+2*k}, 16, v{72+2*k}
            v_cndmask_b32 v{W+4+k}, v{72+2*k}, 0, s[56:57]
            v_cndmask_b32 v{W+k}, 0, v{72+2*k}, s[56:57]
            ''')
        if 'ident' in diag:
            q(f'''
            v_lshrrev_b32 v97, 4, v96                ; lane
            v_and_b32 v72, 15, v97
            v_lshrrev_b32 v73, 5, v97
            v_lshlrev_b32 v73, 3, v73
            v_sub_u32 v72, v72, v73                  ; n - 8h
            s_mov_b32 s36, 0x3f80
            s_mov_b32 s37, 0x3f800000
            ''')
            for k in range(4):
                q(f'''
                v_cmp_eq_u32 vcc, {2*k}, v72
                v_mov_b32 v73, s36
                v_mov_b32 v74, s37
                v_cndmask_b32 v75, 0, v73, vcc
                v_cmp_eq_u32 vcc, {2*k+1}, v72
                s_nop 1
                v_cndmask_b32 v75, v75, v74, vcc
                v_cndmask_b32 v{W+4+k}, v75, 0, s[56:57]
                v_cndmask_b32 v{W+k}, 0, v75, s[56:57]
                ''')
        q(f'''
        s_lshl_b32 s36, s3, 10
        s_add_u32 s36, s36, {DST}
        v_add_u32 v97, s36, v96
        ds_write_b128 v97, v[80:83]
        v_lshl_or_b32 v72, v{R+1}, 16, v{R}          ; w_up
        v_lshl_or_b32 v73, v{R+3}, 16, v{R+2}
        v_lshl_or_b32 v74, v{R+6}, 16, v{R+4}
        v_lshl_or_b32 v75, v{R+7}, 16, v{R+5}
        v_lshl_or_b32 v76, v{R+9}, 16, v{R+8}        ; w_rbf
        v_mov_b32 v77, 0
        v_lshlrev_b32 v78, 16, v{R+10}
        v_lshlrev_b32 v79, 16, v{R+11}
        v_mul_f32 v78, {(SQ | 0x80000000):#x}, v78   ; -center*s
        v_mul_f32 v79, {(SQ | 0x80000000):#x}, v79
        v_add_u32 v97, {WST}, v96
        ds_write_b128 v97, v[72:75]
        ds_write_b128 v97, v[76:79] offset:1024
        ''')
        for k in range(100, 104): q(f'v_mov_b32 v{k}, 0')
        for k in range(8):
            q(f'ds_write_b128 v98, v[100:103] offset:{k*8192}')
            for r in range(104 + 19*k, 104 + 19*k + 19): q(f'v_mov_b32 v{r}, 0')
        q(f'v_add_u32 v98, {8*8192}, v98\ns_mov_b64 exec, s[14:15]\nds_write_b128 v98, v[100:103]\ns_mov_b64 exec, -1')
    q(f's_waitcnt vmcnt({len(SL)})')
    operands(q)
    if 'pro' in diag: stamp(q)
    q('s_waitcnt lgkmcnt(0)\ns_barrier')
    q(f'B_xl:\ns_add_u32 s36, s{sU}, 32\ns_cmp_ge_u32 s36, s{sROW}\ns_cbranch_scc1 B_xe')
    L1s(q, 100, 108, off=0); L2s(q, 100, 104, 44, 46, 108)
    q('s_waitcnt vmcnt(0)'); A1(q, 100, 104, (44, 46), 0, p2=108)
    q('s_waitcnt lgkmcnt(0)'); A2(q, 0, 104, (44, 46), 0, p2=108)
    q(f's_cmp_eq_u32 s{sLIVE}, 0\ns_cbranch_scc1 B_pz\ns_add_u32 s{sU}, s{sU}, 32\ns_branch B_xl\nB_xe:')
    for o in q.o[-60:]:
        if o.get('tag') in (('rec', 100), ('ent', 100), ('ret', 100)) or (o['c'] and o['tag'] is None and 'v[10' in (o['t'] or '')): o['maybe'] = True
    q(f's_mov_b32 s{sU}, s{sROW}')
    if 'pro' in diag: stamp(q)
    TP = lambda s, h: 72 + 4*((s + 1) % 6) + 2*h
    def cos2(ss):
        for st in range(4):
            for s in ss:
                for h in (1, 0):
                    t = TP(s, h)
                    q([f'v_cvt_f32_bf16_sdwa v{t}, v{pq(s)+1} dst_sel:DWORD dst_unused:UNUSED_PAD src0_sel:WORD_{h}',
                       f'v_pk_mul_f32 {vp(t)}, {vp(t)}, {sp(sKF)} op_sel_hi:[0,1]',
                       f'v_cos_f32 v{t}, v{t}\nv_cos_f32 v{t+1}, v{t+1}',
                       f'v_cvt_pk_bf16_f32 v{pq(s)+1+2*h}, v{t}, v{t+1}'][st])
    for k in range(0, len(SL), 3):
        for s in SL[k:k+3]:
            q.wait('v', [('rec', s)])
            A1(q, s, pq(s), pm(s), 0, live=False, p2=pp(s))
        cos2(SL[k:k+3])
    for s in SL:
        q.wait('l', [('ret', s)]); A2(q, s, pq(s), pm(s), 0, p2=pp(s))
    if 'pro' in diag: stamp(q)
    q('B_pz:')
    q(f'B_pe:\ns_mov_b64 s[72:73], 0')
    for v in range(5): q(f'v_mov_b32 v{PK(v)}, v{vKC}\ns_mov_b64 {sp(MK(v))}, 0')
    for k in list(range(G, G+12)) + list(range(U, U+16)) + list(range(56, 100)) + list(range(104, 110)): q(f'v_mov_b32 v{k}, 0')
    sweep_end(q, None)
    q.resolve(a, False)

    MF = 'v_mfma_f32_16x16x32_bf16'
    GS = lambda v: Q0 if v == 24 else G + 4*(v % 3)
    def setprio(q, v, tag):
        if v in prio:
            if prio.index(v) % 2 == 0:
                q(f's_cmp_eq_u32 s{sW24}, 0\ns_cbranch_scc1 B_pr{tag}_{v}\ns_setprio 1\nB_pr{tag}_{v}:')
            else: q('s_setprio 0')
    def step(q, par, v, LB, visit=True):
        av = (v - 3) % NV; ap = par if v >= 3 else 1-par
        bv = (v - 4) % NV
        if v: q.wait('l', [('pr', par, v - 1)])
        q(f'{MF} {vp(ACC(bv),4)}, {vp(XB,4)}, {vp(U,4)}, {vp(ACC(bv),4)}', drop='nomfma' in diag)
        q(f'{MF} {vp(ACC(bv)+4,4)}, {vp(XB,4)}, {vp(U+4,4)}, {vp(ACC(bv)+4,4)}', drop='nomfma' in diag)
        if not visit and v == 3: return
        if visit:
            if v == 0: q.wait('l', [('lst', par, 0)])
            q(f'''
            v_lshrrev_b32 v{T0}, 7, v{LP}
            v_and_or_b32 v{T0}, v{T0}, s{sNM32}, v{vHALF}
            v_cmpx_eq_u32_sdwa {sp(MK(v))}, s{sEP24 if v == 24 else sEPC}, v{LP} src0_sel:DWORD src1_sel:BYTE_0
            v_bfe_u32 v{T1}, v{LP}, 8, 4
            v_lshl_add_u32 v{PK(v)}, v{T1}, 4, v{vKC}
            v_lshrrev_b32_sdwa v{PK(v)}, v{vHALF}, v{LP+1} dst_sel:WORD_1 dst_unused:UNUSED_PRESERVE src0_sel:DWORD src1_sel:DWORD
            ''')
        q.wait('v', [('gat', ap, av)])
        q(f'{MF} {vp(U,4)}, {vp(GS(av),4)}, {vp(W,4)}, 0', drop='nomfma' in diag)
        q(f'{MF} {vp(U+4,4)}, {vp(GS(av),4)}, {vp(W+4,4)}, 0', drop='nomfma' in diag)
        if visit: q(f'buffer_load_dwordx4 {vp(GS(v),4)}, v{T0}, s[4:7], 0 offen {gatf}', tag=('gat', par, v), drop='nodma' in diag)
        q(f's_mov_b64 exec, {sp(MK(bv))}')
        q(f'v_and_b32 v{T0}, s{sFFFF}, v{PK(bv)}')
        q(f'ds_write_b16_d16_hi v{T0}, v{vHALF} offset:{PIMM}', drop='nopw' in diag)
        q(f's_mov_b64 exec, {sp(MK(av))}')
        q(f'v_and_b32 v{T1}, s{sFFFF}, v{PK(av)}')
        q(f'ds_write_b16_d16_hi v{T1}, v{PK(av)} offset:{PIMM}', drop='nopw' in diag)
        q('s_mov_b64 exec, -1')
        if visit and v + 1 < NV: q(f'ds_read_b64 {vp(LP)}, v{vLB} offset:{LB + (v+1)*256}', tag=('lst', par, v+1))
        for k in range(4): q(f'v_cvt_pk_bf16_f32 v{XB+k}, v{U+2*k}, v{U+2*k+1}')
        q(f'ds_read_b128 {vp(U,4)}, v{vPR}', drop='nopr' in diag)
        q(f'ds_read_b128 {vp(U+4,4)}, v{vPR} offset:1024', tag=('pr', par, v), drop='nopr' in diag)
        if visit and v == 23:
            for k in range(4): q(f'v_mov_b32 v{Q0+k}, 0')
    def cntreset(q, off):
        q(f'''
        v_mbcnt_lo_u32_b32 v{T0}, -1, 0
        v_mbcnt_hi_u32_b32 v{T0}, -1, v{T0}
        v_add_u32 v{T0}, s{sST}, v{T0}
        v_and_b32 v{T1}, 31, v{T0}
        v_lshl_add_u32 v{T0}, v{T0}, 2, {off}
        v_lshlrev_b32 v{T1}, 3, v{T1}
        s_mov_b64 exec, {sp(sNG)}
        ds_write_b32 v{T0}, v{T1} offset:{CNT}
        ''')
    q = Seq()
    for par in range(2):
        LB = [L0, L1][par]
        q(f'B_loop{par}:')
        if MAXSW < 1 << 30: q(f's_cmp_gt_u32 s{sSW}, {MAXSW}\ns_cbranch_scc1 B_epi')
        q(f'''
        s_cmp_lt_u32 s{sU}, s{sUE}
        s_cselect_b32 s36, 1, s{sSP}
        s_cmp_eq_u32 s36, 0
        s_cbranch_scc1 B_free{par}
        ''')
        q(f'ds_read_b64 {vp(LP)}, v{vLB} offset:{LB}', tag=('lst', par, 0))
        for v in range(NV):
            setprio(q, v, par)
            step(q, par, v, LB)
            qd = lambda s: Q1 - 4*(s % 2); mk = lambda s: (40 + 4*(s % 2), 42 + 4*(s % 2))
            for s in range(NS):
                if v == APOS[s] + DA + 1: q.wait('l', [('ret', s)]); A2(q, s, qd(s), mk(s), 1-par)
            if v == APOS[-1] + DA + 1: signal(q, DNA)
            if v == NV - 2: reads_done(q, par)
            for s in range(NS):
                if v == APOS[s]: L2s(q, s, qd(s), *mk(s))
            if v == 1: peek(q, DNR)
            if v == 2: q.wait('l', ['peek']); check(q, DNR); reappend(q, 1-par)
            for s in range(NS):
                if v == APOS[s] - 1: L1s(q, s)
                if v == APOS[s] + DA: q.wait('v', [('rec', s)]); A1(q, s, qd(s), mk(s), 1-par)
            if v == 0:
                if par: q('s_movk_i32 s36, 800')
                cntreset(q, 's36' if par else '0')
                q(f'''
                s_mov_b64 exec, 1
                v_mov_b32 v{T0}, s{sSW}
                v_mov_b32 v{T1}, 0
                ds_max_u32 v{T1}, v{T0} offset:{FLAG}
                s_mov_b64 exec, -1
                ''')
        sweep_end(q, par)
    q('s_branch B_loop0')
    q.resolve(a, True)
    q = Seq()
    q(f'''
    B_free1:
    s_mov_b32 s{sDID}, {L1 - L0}
    s_branch B_free
    B_free0:
    s_mov_b32 s{sDID}, 0
    B_free:
    v_mov_b32 v{T0}, 0
    v_add_u32 v{vLB}, s{sDID}, v{vLB}
    ds_read_b32 v{vF}, v{T0} offset:{FLAG}
    ''')
    q(f'ds_read_b64 {vp(LP)}, v{vLB} offset:{L0}', tag=('lst', 0, 0))
    q(f'''
    s_waitcnt lgkmcnt(1)
    v_readfirstlane_b32 s36, v{vF}
    s_add_u32 s36, s36, 1
    s_cmp_lt_u32 s36, s{sSW}
    s_cbranch_scc1 B_epi
    ''')
    for v in (22, 23, 24): q('buffer_x', tag=('gat', 1, v)); q.o[-1]['t'] = ''
    for v in range(NV):
        setprio(q, v, 'f')
        step(q, 0, v, L0)
        if v == 0:
            q(f's_cmp_lg_u32 s{sDID}, 0\ns_cselect_b32 s36, 800, 0')
            cntreset(q, 's36'); signal(q, DNA)
        if v == NV - 2: reads_done(q, 0)
    sweep_end(q, 0, adv=False)
    q(f'''
    v_subrev_u32 v{vLB}, s{sDID}, v{vLB}
    s_cmp_lg_u32 s{sDID}, 0
    s_cbranch_scc1 B_loop0
    s_branch B_loop1
    ''')
    q.resolve(a, False)

    a.label('B_epi')
    stamp(a)
    a(f'''
    s_setprio 0
    s_load_dwordx2 s[72:73], s[0:1], {K_OUT}
    s_lshl_b32 s36, s{sR0}, 5
    s_lshl_b32 s43, s{sRN}, 5
    v_mbcnt_lo_u32_b32 v{vLB}, -1, 0
    v_mbcnt_hi_u32_b32 v{vLB}, -1, v{vLB}        ; lane
    s_lshl_b32 s38, s{sST}, 9
    s_lshl_b32 s39, s{sST}, 8
    s_add_u32 s40, s39, {L1}                     ; piece 1
    s_add_u32 s39, s39, {L0}                     ; piece 0
    s_mul_i32 s41, s3, {TSZ}
    s_add_u32 s41, s41, {TBL}                    ; piece 2
    v_lshlrev_b32 v{vX}, 4, v{vLB}
    ''')
    srd(a, 12, 's54', 's55', 's36', 's43')
    piece = lambda pr: (39 + min(pr // 6, 2), (pr % 6)*1024)
    q = Seq()
    for v in (22, 23, 24): q('buffer_x', tag=('gat', 1, v)); q.o[-1]['t'] = ''
    q('s_waitcnt lgkmcnt(0)')
    def mdma(pr):
        sg, off = piece(pr)
        q(f's_add_u32 m0, s{sg}, {off}\ns_add_u32 s42, s38, {pr*1024}')
        q(f'buffer_load_dwordx4 v{vX}, s[12:15], s42 offen lds', tag=('m', pr))
    for v in range(4):
        for pr in range(EDM*v, EDM*v + EDM): mdma(pr)
        step(q, 0, v, L0, visit=False)
    t = Asm(); srd(t, 8, 's72', 's73', 's36', 's43'); q('\n'.join(t.l))
    if 'epi' in diag: stamp(q)
    WU, W0, W1, WR, CS, RB, TT, DD, MM, A0, VV = 8, 10, 12, 14, 0, 16, 20, 24, 28, 32, 48
    TMP = 7
    q(f'''
    v_lshrrev_b32 v3, 4, v{vLB}                  ; q
    v_and_b32 v2, 15, v{vLB}                     ; e
    v_add_u32 v5, {WST}, v{vX}
    ds_read_b128 v[44:47], v5
    ds_read_b128 v[48:51], v5 offset:1024
    s_lshl_b32 s37, s3, 10
    s_add_u32 s37, s37, {DST}
    v_lshl_add_u32 v5, v2, 1, s37
    v_lshlrev_b32 v4, 5, v2
    v_lshl_add_u32 v4, v3, 3, v4                 ; e*32 + q*8
    v_add_u32 v2, s39, v4
    v_add_u32 v3, s40, v4
    v_add_u32 v4, s41, v4
    s_mov_b32 s43, 0xffff0000
    s_mov_b32 s44, {SQ:#x}
    s_mov_b32 s45, {SQ:#x}
    v_mov_b32 v{RB+1}, 0
    v_mov_b32 v{RB+3}, 0
    v_mov_b32 v{W0+1}, 0
    v_mov_b32 v{W1+1}, 0
    v_mov_b32 v{WR+1}, 0
    ''')
    def drd(p):
        for h in range(2): q(f'ds_read_u16 v{DD + 2*(p % 2) + h}, v5 offset:{32*(2*p+h)}', tag=('d', p))
    drd(0); drd(1)
    q(f'''
    s_waitcnt lgkmcnt(4)
    v_mov_b32 v{WU}, v44
    v_mov_b32 v{WU+1}, v45
    v_mov_b32 v{W0}, v46
    v_mov_b32 v{W1}, v47
    v_mov_b32 v{WR}, v48
    v_mov_b32 v{CS}, v50
    v_mov_b32 v{CS+1}, v51
    ''')
    MF = 'v_mfma_f32_16x16x16_bf16'
    HS = lambda p: (0, 1) if p < 12 else (0,)
    VR = lambda p, h: VV + 4*h
    lds = lambda v: (2 + min(v // 12, 2), (v % 12)*512)
    def E1(p):
        d = DD + 2*(p % 2); H2 = HS(p)
        q.wait('l', [('d', p)])
        for h in H2: q(f'v_lshlrev_b32 v{d+h}, 16, v{d+h}')
        for h in H2: q(f'v_pk_fma_f32 {vp(TT+2*h)}, {vp(d)}, s[44:45], {vp(CS)} op_sel:[{h},0,0] op_sel_hi:[{h},0,1]')
        if p + 2 <= 12: drd(p + 2)
        for h in H2: q(f'v_pk_mul_f32 {vp(TT+2*h)}, {vp(TT+2*h)}, {vp(TT+2*h)} neg_lo:[0,1] neg_hi:[0,1]')
        for h in H2: q(f'v_exp_f32 v{TT+2*h}, v{TT+2*h}\nv_exp_f32 v{TT+2*h+1}, v{TT+2*h+1}')
        if 4*EDM + p < 13: mdma(4*EDM + p)
        for h in H2: q(f'v_cvt_pk_bf16_f32 v{RB+2*h}, v{TT+2*h}, v{TT+2*h+1}')
        for h in H2:
            q(f'{MF} {vp(A0+8*h,4)}, {vp(W0)}, {vp(RB+2*h)}, 0')
            q(f'{MF} {vp(A0+8*h+4,4)}, {vp(W1)}, {vp(RB+2*h)}, 0')
    def E2(p):
        H2 = HS(p)
        q.wait('v', [('m', p)])
        for h in H2:
            b, off = lds(2*p + h)
            q(f'ds_read_b64 {vp(MM + 2*h)}, v{b} offset:{off}', tag=('mm', p))
        for k in (0, 2):
            for h in H2: q(f'v_pk_mul_f32 {vp(ACC(2*p+h)+k)}, {vp(ACC(2*p+h)+k)}, {vp(A0+8*h+k)}')
        for k in (0, 2):
            for h in H2: q(f'v_pk_fma_f32 {vp(ACC(2*p+h)+k)}, {vp(ACC(2*p+h)+4+k)}, {vp(A0+8*h+4+k)}, {vp(ACC(2*p+h)+k)}')
        for k in (0, 1):
            for h in H2: q(f'v_cvt_pk_bf16_f32 v{ACC(2*p+h)+k}, v{ACC(2*p+h)+2*k}, v{ACC(2*p+h)+2*k+1}')
        for h in H2: q(f'{MF} {vp(VR(p,h),4)}, {vp(WR)}, {vp(RB+2*h)}, 0')
        for h in H2: q(f'{MF} {vp(ACC(2*p+h)+4,4)}, {vp(WU)}, {vp(ACC(2*p+h))}, 0')
    def E3(p):
        H2 = HS(p)
        q.wait('l', [('mm', p)])
        for k in (0, 1):
            for h in H2:
                q(f'v_lshlrev_b32 v{ACC(2*p+h)+2*k}, 16, v{MM+2*h+k}\nv_and_b32 v{ACC(2*p+h)+2*k+1}, s43, v{MM+2*h+k}')
        for k in (0, 2):
            for h in H2: q(f'v_pk_fma_f32 {vp(ACC(2*p+h)+k)}, {vp(ACC(2*p+h)+4+k)}, {vp(VR(p,h)+k)}, {vp(ACC(2*p+h)+k)}')
        for k in (0, 1):
            for h in H2: q(f'v_cvt_pk_bf16_f32 v{ACC(2*p+h)+k}, v{ACC(2*p+h)+2*k}, v{ACC(2*p+h)+2*k+1}')
        sg, off2 = piece(p)
        q(f's_add_u32 s42, s{sg}, {off2}\nv_add_u32 v{TMP}, s42, v{vX}')
        for h in H2:
            b, off = lds(2*p + h)
            q(f'ds_write_b64 v{b}, {vp(ACC(2*p+h))} offset:{off}')
        q(f'ds_read_b128 {vp(ACC(min(2*p+1, 24)),4)}, v{TMP}', tag=('o', p))
    def ST(pr):
        A = ACC(min(2*pr + 1, 24))
        q(f's_add_u32 s42, s38, {pr*1024}')
        q.wait('l', [('o', pr)])
        q(f'buffer_store_dwordx4 {vp(A,4)}, v{vX}, s[8:11], s42 offen {stf}')
    E1(0)
    if 'epi' in diag: stamp(q, T0=TT, T1=TT+1)
    for p in range(12):
        E2(p); E1(p + 1)
        if p >= 1: ST(p - 1)
        E3(p)
    ST(11)
    if 'epi' in diag: stamp(q, T0=TT, T1=TT+1)
    q('s_cmp_ge_u32 s3, 4\ns_cbranch_scc1 B_last')
    E2(12); E3(12)
    q('s_mov_b32 exec_hi, 0')
    ST(12)
    q.resolve(a, False)
    a.label('B_last')
    if 'stamp' in diag:
        a('s_mov_b64 exec, -1\ns_waitcnt vmcnt(0)')
        stamp(a); stamp(a, True)
    a.label('B_end')
    a('s_endpgm')
    out = a.l + stubs.l
    for l in late: out += l
    return out
```

```python
from common import *
import os
NAME = 'bin_kernel'
LDS = 163840
H = int(os.environ.get('HH', 17728)); SB = 12416; WT = 12352
assert 3*H >= TMAX + 256*NPH and (TMAX + 256*NPH)*6 <= TSTRIDE
SD = 'dst_sel:DWORD dst_unused:UNUSED_PAD src0_sel:DWORD'
def gen(PF=8, ldf='nt', mpf=112, stag=0, oob=True, hold=10, stf='sc1', late=True, fused=False, tbf='', diag=()):
    a = Asm()
    def stamp(real=False):
        if 'stamp' not in diag: return
        a(f'''
        {'s_memrealtime' if real else 's_memtime'} s[76:77]
        s_waitcnt lgkmcnt(0)
        v_mov_b32 v30, s76
        v_mov_b32 v31, 0
        s_mov_b64 exec, 1
        buffer_store_dword v30, v31, s[72:75], s78 offen
        s_mov_b64 exec, -1
        s_add_u32 s78, s78, 4
        ''')
    NGR = 25
    RG = lambda q: 56 + 8*q
    R0 = lambda k: 56 + 2*k
    R1 = lambda k: 57 + 2*k
    TA = lambda q: 56 - 2*PF + 2*(q % PF)
    a.label(FNAME if fused else NAME)
    a(f'''
    s_cmp_ge_u32 s2, {NCU}
    s_cbranch_scc1 {'B_end' if fused else 'A_end'}
    {f's_load_dwordx2 s[80:81], s[0:1], {K_DBG}' if fused else ''}
    s_load_dwordx4 s[36:39], s[0:1], {K_II}
    s_load_dwordx2 s[40:41], s[0:1], {K_ANG}
    s_load_dwordx2 s[44:45], s[0:1], {K_WS}
    s_load_dwordx2 s[42:43], s[0:1], {K_M}
    s_load_dwordx2 s[62:63], s[0:1], {K_DIST}
    s_mul_i32 s47, s2, {TILE}
    s_add_u32 s49, s47, {TILE}
    s_and_b32 s47, s47, 0xffffffc0
    s_and_b32 s49, s49, 0xffffffc0
    s_sub_u32 s49, s49, s47
    s_lshl_b32 s46, s47, 2
    s_lshl_b32 s47, s47, 1
    s_lshl_b32 s50, s49, 2
    s_lshl_b32 s51, s49, 1
    s_mul_i32 s48, s2, {TSTRIDE}
    v_lshlrev_b32 v1, 4, v0                      ; x*16
    v_lshlrev_b32 v2, 3, v0                      ; x*8
    v_mov_b32 v3, 1
    v_mov_b32 v4, 0
    v_mov_b32 v5, 0
    v_mov_b32 v6, 0
    v_mov_b32 v7, 0
    s_waitcnt lgkmcnt(0)
    ''')
    srd(a, 4, 's36', 's37', 's46', 's50')
    srd(a, 8, 's38', 's39', 's46', 's50')
    srd(a, 12, 's40', 's41', 's47', 's51')
    def loads(q):
        a(f's_mov_b32 s50, {q*8192}\ns_mov_b32 s51, {q*4096}')
        a(f'buffer_load_dwordx4 v[{RG(q)}:{RG(q)+3}], v1, s[4:7], s50 offen {ldf}')
        a(f'buffer_load_dwordx4 v[{RG(q)+4}:{RG(q)+7}], v1, s[8:11], s50 offen {ldf}')
        a(f'buffer_load_dwordx2 v[{TA(q)}:{TA(q)+1}], v2, s[12:15], s51 offen {ldf}')
    if 'stamp' in diag:
        srd(a, 72, 's44', 's45', 200000000, 1 << 20)
        a('v_lshrrev_b32 v8, 6, v0\ns_nop 1\nv_readfirstlane_b32 s3, v8\ns_lshl_b32 s78, s2, 3\ns_add_u32 s78, s78, s3\ns_lshl_b32 s78, s78, 8')
        stamp(True); stamp(); a('s_waitcnt vmcnt(0)')
    def slow(tag):
        a(f's_bitcmp1_b32 s2, 3\ns_cbranch_scc0 A_f{tag}\ns_waitcnt vmcnt(0)\nA_f{tag}:')
    for q in range(PF):
        loads(q)
        if q < stag: slow(q)
    for k in range(2): a(f'ds_write_b128 v1, v[4:7] offset:{k*8192}')
    srd(a, 16, 's44', 's45', 's48', H*6)
    srd(a, 20, 's44', 's45', TAB_OFF, TAB_BYTES)
    srd(a, 64, 's42', 's43', None, E*32)
    srd(a, 68, 's62', 's63', None, E*2)
    a(f'''
    s_mov_b32 s24, 1374390
    s_mov_b32 s25, {EPC}
    s_mov_b32 s26, {MPH}
    s_mov_b32 s27, 0xffff0000
    s_mov_b32 s28, 0xffff
    s_mov_b32 s29, {H}
    s_mov_b32 s33, 0x07060302
    s_sub_u32 s32, s49, {24*2048}
    s_lshr_b32 s32, s32, 2
    v_cmp_gt_u32 s[30:31], s32, v0
    v_lshrrev_b32 v8, 6, v0
    s_waitcnt lgkmcnt(0)
    v_readfirstlane_b32 s3, v8
    s_barrier
    ''')
    def prefetch(pos):
        if mpf != pos: return
        a(f'''
        v_lshlrev_b32 v9, 7, v0
        s_mul_i32 s50, s2, {EPC*32}
        s_and_b32 s50, s50, 0xffffff80
        s_add_u32 s51, s50, 65536
        s_mul_i32 s52, s2, {EPC*2}
        s_and_b32 s52, s52, 0xffffff80
        s_mov_b32 m0, 160000
        s_nop 0
        buffer_load_dword v9, s[64:67], s50 offen lds
        v_cmp_gt_u32 vcc, {(EPC*32 + 127 + 127)//128 - 512}, v0
        s_mov_b64 exec, vcc
        buffer_load_dword v9, s[64:67], s51 offen lds
        s_mov_b64 exec, -1
        v_cmp_gt_u32 vcc, 50, v0
        s_mov_b64 exec, vcc
        buffer_load_dword v9, s[68:71], s52 offen lds
        s_mov_b64 exec, -1
        ''')
    for q in range(NGR):
        issued = min(NGR, q + PF)
        a(f's_waitcnt vmcnt({3*(issued - q - 1)})')
        if q == NGR-1: a('s_mov_b64 exec, s[30:31]')
        td = [12, 13, 14, 15]; tp = [16, 17, 18, 19]; tl = [20, 21, 22, 23]
        I = lambda e: RG(q) + e; O = lambda e: RG(q) + 4 + e
        for e in range(4): a(f'v_or_b32 v{td[e]}, 3, v{O(e)}')
        for e in range(4): a(f'v_mul_hi_u32_u24 v{tp[e]}, s26, v{I(e)}')
        for e in range(4): a(f'v_mul_hi_u32_u24 v{td[e]}, s24, v{td[e]}')
        for e in range(4): a(f'v_mul_u32_u24 v{tl[e]}, s25, v{td[e]}')
        for e in range(4): a(f'v_and_b32 v{tl[e]}, -4, v{tl[e]}')
        for e in range(4): a(f'v_sub_u32 v{tl[e]}, v{O(e)}, v{tl[e]}')
        for e in range(4): a(f'v_lshl_or_b32 v{tp[e]}, v{tp[e]}, 8, v{td[e]}')
        for e in range(4): a(f'v_lshlrev_b32 v{tp[e]}, 2, v{tp[e]}')
        for e in range(4): a(f'v_and_b32 v{td[e]}, 15, v{tl[e]}')
        for e in range(4):
            a(f'ds_add_u32 v{tp[e]}, v3')
            a(f'v_lshrrev_b32 v{tl[e]}, 4, v{tl[e]}')
            a(f'v_lshl_or_b32 v{td[e]}, v{I(e)}, 4, v{td[e]}')
        for e in range(4):
            k = 4*q + e
            a(f'v_lshl_or_b32 v{R0(k)}, v{td[e]}, 8, v{tl[e]}')
            if e % 2 == 0: a(f'v_lshl_or_b32 v{R1(k)}, v{TA(q)+e//2}, 16, v{tp[e]}')
            else: a(f'v_and_or_b32 v{R1(k)}, v{TA(q)+e//2}, s27, v{tp[e]}')
        if q + PF < NGR: loads(q + PF)
    a('s_mov_b64 exec, -1')
    prefetch(1)
    a('s_waitcnt lgkmcnt(0)')
    stamp()
    a('s_barrier')
    stamp()
    C = 12; Q = 28; PB = 40
    a('v_mul_u32_u24 v11, 24, v0')
    for k in range(3): a(f'ds_read_b64 v[{C+2*k}:{C+2*k+1}], v11 offset:{8*k}')
    a('s_waitcnt lgkmcnt(0)')
    for k in range(6): a(f'v_and_b32 v{PB+k}, 1, v{C+k}')
    for k in range(6): a(f'v_add_u32 v{C+k}, v{C+k}, v{PB+k}')
    for k in range(1, 6): a(f'v_add_u32 v{C+k}, v{C+k}, v{C+k-1}')
    a(f'v_mov_b32 v46, v{C+5}')
    for sh in ('row_shr:1 row_mask:0xf', 'row_shr:2 row_mask:0xf', 'row_shr:4 row_mask:0xf', 'row_shr:8 row_mask:0xf', 'row_bcast:15 row_mask:0xa', 'row_bcast:31 row_mask:0xc'):
        a(f'v_add_u32_dpp v46, v46, v46 {sh} bank_mask:0xf')
    a(f'''
    v_readlane_b32 s35, v46, 63
    s_lshl_b32 s50, s3, 2
    s_add_u32 s50, s50, {WT}
    v_mov_b32 v47, s50
    v_mov_b32 v48, s35
    s_mov_b64 exec, 1
    ds_write_b32 v47, v48
    s_mov_b64 exec, -1
    v_sub_u32 v46, v46, v{C+5}
    v_mov_b32 v47, {WT}
    s_waitcnt lgkmcnt(0)
    s_barrier
    ds_read_b128 v[48:51], v47
    ds_read_b128 v[52:55], v47 offset:16
    s_mov_b32 s35, 0
    s_mov_b32 s34, 0
    s_waitcnt lgkmcnt(0)
    ''')
    for w in range(8):
        a(f'v_readfirstlane_b32 s50, v{48+w}\ns_add_u32 s34, s34, s50\ns_cmp_eq_u32 s3, {w+1}\ns_cselect_b32 s35, s34, s35')
    a(f'v_add_u32 v{Q}, s35, v46')
    for k in range(1, 7): a(f'v_add_u32 v{Q+k}, v{Q}, v{C+k-1}')
    if not late:
        for k in range(6): a(f'v_lshl_or_b32 v{Q+k}, v{PB+k}, 16, v{Q+k}')
    for k in range(3): a(f'ds_write_b64 v11, v[{Q+2*k}:{Q+2*k+1}] offset:{8*k}')
    if late:
        a('s_mul_i32 s34, s34, 6\ns_waitcnt lgkmcnt(0)\ns_barrier')
    else:
        a(f'''
    v_cmp_eq_u32 vcc, 511, v0
    s_mov_b64 exec, vcc
    ds_write_b32 v11, v{Q+6} offset:24
    s_mov_b64 exec, -1
    s_mul_i32 s34, s34, 6
    v_lshrrev_b32 v45, 1, v0                     ; d
    v_and_b32 v46, 1, v0                         ; hh
    v_mul_u32_u24 v47, {6*1024}, v46
    v_lshl_add_u32 v47, v45, 2, v47
    v_mul_u32_u24 v45, 24, v0
    s_mul_i32 s50, s2, {256*48}
    s_waitcnt lgkmcnt(0)
    s_barrier
    ''')
        for k in range(6): a(f'ds_read_b32 v{C+k}, v47 offset:{1024*k}\nds_read_u16 v{Q+k}, v47 offset:{1024*k+4}')
        a('s_waitcnt lgkmcnt(0)\ns_barrier')
        for k in range(6): a(f'v_sub_u32_sdwa v{Q+k}, v{Q+k}, v{C+k} {SD} src1_sel:WORD_0')
        for k in range(6): a(f'v_sub_u32_sdwa v{Q+k}, v{Q+k}, v{C+k} {SD} src1_sel:WORD_1')
        for k in range(6): a(f'v_perm_b32 v{48+k}, v{Q+k}, v{C+k}, s{79}'.replace('s79', 's53'))
        a.l.insert(len(a.l) - 18, '    s_mov_b32 s53, 0x05040100')
        a(f'''
    buffer_store_dwordx4 v[48:51], v45, s[20:23], s50 offen {tbf}
    buffer_store_dwordx2 v[52:53], v45, s[20:23], s50 offen offset:16 {tbf}
    ''')
    stamp()
    prefetch(2)
    NR = 8
    ad = [12 + k for k in range(NR)]; rr = [20 + k for k in range(NR)]
    def issue(k0):
        if k0 == 96:
            for k in range(k0, k0+4): a(f'v_mov_b32 v{rr[k % NR]}, -1')
            a('s_mov_b64 exec, s[30:31]')
        for k in range(k0, k0+4): a(f'v_and_b32 v{ad[k % NR]}, s28, v{R1(k)}')
        for k in range(k0, k0+4): a(f'ds_add_rtn_u32 v{rr[k % NR]}, v{ad[k % NR]}, v3')
        if k0 == 96: a('s_mov_b64 exec, -1')
    def scat(k0, c):
        t = [28, 29, 30, 31]
        if oob:
            for e in range(4): a(f'v_mad_u32_u16 v{t[e]}, v{R1(k0+e)}, 8, s32')
            for e in range(4): a(f'ds_write_b64 v{t[e]}, v[{R0(k0+e)}:{R1(k0+e)}]')
            return
        if c == 0:
            for e in range(4): a(f'v_cmp_gt_u32_sdwa s[{54+2*e}:{55+2*e}], s29, v{R1(k0+e)} src0_sel:DWORD src1_sel:WORD_0')
            for e in range(4): a(f'v_lshlrev_b32_sdwa v{t[e]}, 3, v{R1(k0+e)} {SD} src1_sel:WORD_0')
        else:
            for e in range(4): a(f'v_subrev_u32_sdwa v{t[e]}, s32, v{R1(k0+e)} {SD} src1_sel:WORD_0')
            for e in range(4): a(f'v_cmp_gt_u32 s[{54+2*e}:{55+2*e}], s29, v{t[e]}')
            for e in range(4): a(f'v_lshlrev_b32 v{t[e]}, 3, v{t[e]}')
        for e in range(4):
            a(f's_mov_b64 exec, s[{54+2*e}:{55+2*e}]')
            a(f'ds_write_b64 v{t[e]}, v[{R0(k0+e)}:{R1(k0+e)}] offset:{SB}')
        a('s_mov_b64 exec, -1')
    a(f's_mov_b32 s32, {SB}')
    issue(0)
    for k0 in range(0, 100, 4):
        if k0 + 4 < 100: issue(k0 + 4)
        a(f's_waitcnt lgkmcnt({4 if k0 in (0, 96) else 8})')
        for k in range(k0, k0+4): a(f'v_bfi_b32 v{R1(k)}, s28, v{rr[k % NR]}, v{R1(k)}')
        scat(k0, 0)
        prefetch(100 + k0)
    a(f'''
    v_add_u32 v5, {SB}, v1
    v_add_u32 v6, {SB + 65536}, v1
    v_add_u32 v7, {SB + 131072}, v1
    v_mul_u32_u24 v4, 12, v0
    ''')
    NI = -(-H // 1024); RD = 4
    held = []
    def store(c, it, q): a(f's_mov_b32 s50, {c*H*6 + it*6144}\nbuffer_store_dwordx3 v[{q}:{q+2}], v4, s[16:19], s50 offen {stf}')
    for c in range(3):
        if c:
            a(f's_mov_b32 s32, {(SB - 8*c*H) & 0xffffffff if oob else c*H}')
            for n, k0 in enumerate(range(0, 100, 4)):
                scat(k0, c)
                if n % 2 == 0 and held: store(c - 1, *held.pop(0))
            assert not held
        if fused and c == 0: a(f's_waitcnt vmcnt({3 if mpf >= 100 else 0})')
        a('s_waitcnt lgkmcnt(0)\ns_barrier')
        if fused and c == 0:
            srd(a, 84, 's80', 's81', None, 256)
            a('''
            s_cmp_lg_u32 s3, 0
            s_cbranch_scc1 A_nt
            v_mov_b32 v28, 0
            s_mov_b64 exec, 1
            buffer_atomic_add v3, v28, s[84:87], 0 offen offset:128
            s_mov_b64 exec, -1
            A_nt:
            ''')
        if fused and c == 2: a('v_mov_b32 v28, 0\nbuffer_load_dword v29, v28, s[84:87], 0 offen offset:128 sc1')
        stamp()
        prefetch(3 + c)
        if late and c == 0:
            a(f'''
            v_lshrrev_b32 v28, 1, v0                     ; d
            v_and_b32 v29, 1, v0                         ; hh
            v_mul_u32_u24 v30, {6*1024}, v29
            v_lshl_add_u32 v30, v28, 2, v30
            v_mul_u32_u24 v28, 24, v0
            v_max_u32 v31, 4, v30
            v_subrev_u32 v31, 4, v31
            s_mul_i32 s51, s2, {256*48}
            ''')
            for k in range(6): a(f'ds_read_b32 v{8+k}, v30 offset:{1024*k}\nds_read_b32 v{14+k}, v{31 if k == 0 else 30} offset:{max(1024*k - 4, 0)}')
            a('v_cmp_ne_u32 vcc, 0, v0\ns_waitcnt lgkmcnt(0)\nv_cndmask_b32 v14, 0, v14, vcc')
            for k in range(6): a(f'v_add_u32 v{14+k}, 1, v{14+k}')
            for k in range(6): a(f'v_and_b32 v{14+k}, -2, v{14+k}')
            for k in range(6): a(f'v_sub_u32 v{8+k}, v{8+k}, v{14+k}')
            for k in range(6): a(f'v_lshl_or_b32 v{20+k}, v{8+k}, 16, v{14+k}')
            a('buffer_store_dwordx4 v[20:23], v28, s[20:23], s51 offen\nbuffer_store_dwordx2 v[24:25], v28, s[20:23], s51 offen offset:16')
        a(f's_min_u32 s18, s34, {(c+1)*H*6}')
        nh = hold if c < 2 else 0
        def QD(it):
            if it >= NI - nh: return [8, 12, 16, 20, 24, 32, 36, 40, 44, 48, 52][11 - nh + it - (NI - nh)] if False else HR[it - (NI - nh)]
            return RR[it % len(RR)]
        HR = [8, 12, 16, 20, 24, 32, 36, 40, 44, 48, 52][:nh]
        RR = [x for x in [52, 48, 44, 40, 36, 32]]
        def rd(it):
            a(f'ds_read_b128 v[{QD(it)}:{QD(it)+3}], v{5 + it // 8} offset:{(it % 8)*8192}')
        for it in range(RD-1): rd(it)
        for it in range(NI):
            if it + RD - 1 < NI: rd(it + RD - 1)
            q = QD(it)
            a(f's_waitcnt lgkmcnt({min(RD-1, NI-1-it)})\nv_perm_b32 v{q+1}, v{q+3}, v{q+1}, s33')
            if it >= NI - nh: held.append((it, q))
            else: store(c, it, q)
        if c < 2: a('s_barrier')
        stamp()
    if 'stamp' in diag:
        a('s_waitcnt vmcnt(0)'); stamp(); stamp(True)
    if fused:
        a(f'''
        s_waitcnt vmcnt({NI})
        s_mov_b32 s37, 0
        A_tl:
        v_readfirstlane_b32 s36, v29
        s_cmp_ge_u32 s36, 256
        s_cbranch_scc1 A_tw
        s_add_u32 s37, s37, 1
        s_cmp_gt_u32 s37, 100000
        s_cbranch_scc1 A_tw
        buffer_load_dword v29, v28, s[84:87], 0 offen offset:128 sc1
        s_waitcnt vmcnt(0)
        s_branch A_tl
        A_tw:
        ''')
        return a.l
    a.label('A_end')
    a('s_endpgm')
    return a.l
```

```python
E = 800000; T = 12800000; NCU = 256; TILE = 50000; EPC = 3125
import os
TSTRIDE = int(os.environ.get('TSTRIDE', 318720))
REC_BYTES = NCU*TSTRIDE
import os
NPH = int(os.environ.get('NPH', 12)); LASTW = float(os.environ.get('LASTW', 0.5))
MPH = int((NPH - 1 + LASTW)*2**32) // E
TAB_OFF = REC_BYTES + 256
TAB_BYTES = 65536*48
K_M, K_II, K_IO, K_DIST, K_ANG, K_CEN, K_FREQ, K_WRBF, K_WSBF, K_WD, K_WU, K_OUT, K_DBG, K_WS = [8*i for i in range(14)]
class Asm:
    def __init__(s): s.l = []
    def __call__(s, t):
        for x in t.strip('\n').split('\n'):
            x = x.strip()
            if not x: continue
            s.l.append(x if x.endswith(':') else '    ' + x)
    def label(s, n): s.l.append(n + ':')
def srd(a, r, lo, hi, off_s, size):
    if off_s is None:
        a(f's_mov_b32 s{r}, {lo}\ns_mov_b32 s{r+1}, {hi}')
    else:
        a(f's_add_u32 s{r}, {lo}, {off_s}\ns_addc_u32 s{r+1}, {hi}, 0')
    a(f's_mov_b32 s{r+2}, {size}\ns_mov_b32 s{r+3}, 0x20000')
KD = """.section .rodata,"a"
.p2align 6
.amdhsa_kernel {name}
  .amdhsa_next_free_vgpr {vgpr}
  .amdhsa_next_free_sgpr {sgpr}
  .amdhsa_accum_offset {acc}
  .amdhsa_group_segment_fixed_size 0
  .amdhsa_kernarg_size 112
  .amdhsa_user_sgpr_count 2
  .amdhsa_user_sgpr_kernarg_segment_ptr 1
  .amdhsa_system_sgpr_workgroup_id_x 1
.end_amdhsa_kernel
.text
"""
def head(name):
    return f""".globl {name}
.p2align 8
.type {name},@function
"""

def tile_start(j): return (TILE*j)//64*64
def range_start(d): return (EPC*d)//4*4
TMAX = 50048
FNAME = 'gather_scatter__molecular_angular_gemnet__graph_kernel'
SIG = float(os.environ.get('SIG', 0.3))
LB = int(os.environ.get('LB', 3))
KSH = int(SIG*E/(NPH - 1 + LASTW)/(32 >> LB))
WROWS = E/(NPH - 1 + LASTW)
DEC = float(os.environ.get('DEC', NPH - 1))
DM = round(MPH*KSH/(DEC*WROWS + (16 >> LB)*KSH))
def phase(i, d): return (i + ((d & 31) >> LB)*KSH)*(MPH - ((d & 31) >> LB)*DM) >> 32
assert all(phase(E - 1, c) < NPH for c in range(32))
```

```python
from common import *
import os
NAME = 'bin_kernel'
LDS = 163840
H = int(os.environ.get('HH', 17728)); SB = 12416; WT = 12352
assert 3*H >= TMAX + 256*NPH and (TMAX + 256*NPH)*6 <= TSTRIDE
SD = 'dst_sel:DWORD dst_unused:UNUSED_PAD src0_sel:DWORD'
def gen(PF=8, ldf='nt', mpf=112, stag=0, oob=True, hold=10, stf='sc1', late=True, fused=False, tbf='', diag=()):
    a = Asm()
    def stamp(real=False):
        if 'stamp' not in diag: return
        a(f'''
        {'s_memrealtime' if real else 's_memtime'} s[76:77]
        s_waitcnt lgkmcnt(0)
        v_mov_b32 v30, s76
        v_mov_b32 v31, 0
        s_mov_b64 exec, 1
        buffer_store_dword v30, v31, s[72:75], s78 offen
        s_mov_b64 exec, -1
        s_add_u32 s78, s78, 4
        ''')
    NGR = 25
    RG = lambda q: 56 + 8*q
    R0 = lambda k: 56 + 2*k
    R1 = lambda k: 57 + 2*k
    TA = lambda q: 56 - 2*PF + 2*(q % PF)
    a.label(FNAME if fused else NAME)
    a(f'''
    s_cmp_ge_u32 s2, {NCU}
    s_cbranch_scc1 {'B_end' if fused else 'A_end'}
    {f's_load_dwordx2 s[80:81], s[0:1], {K_DBG}' if fused else ''}
    s_load_dwordx4 s[36:39], s[0:1], {K_II}
    s_load_dwordx2 s[40:41], s[0:1], {K_ANG}
    s_load_dwordx2 s[44:45], s[0:1], {K_WS}
    s_load_dwordx2 s[42:43], s[0:1], {K_M}
    s_load_dwordx2 s[62:63], s[0:1], {K_DIST}
    s_mul_i32 s47, s2, {TILE}
    s_add_u32 s49, s47, {TILE}
    s_and_b32 s47, s47, 0xffffffc0
    s_and_b32 s49, s49, 0xffffffc0
    s_sub_u32 s49, s49, s47
    s_lshl_b32 s46, s47, 2
    s_lshl_b32 s47, s47, 1
    s_lshl_b32 s50, s49, 2
    s_lshl_b32 s51, s49, 1
    s_mul_i32 s48, s2, {TSTRIDE}
    v_lshlrev_b32 v1, 4, v0                      ; x*16
    v_lshlrev_b32 v2, 3, v0                      ; x*8
    v_mov_b32 v3, 1
    v_mov_b32 v4, 0
    v_mov_b32 v5, 0
    v_mov_b32 v6, 0
    v_mov_b32 v7, 0
    s_waitcnt lgkmcnt(0)
    ''')
    srd(a, 4, 's36', 's37', 's46', 's50')
    srd(a, 8, 's38', 's39', 's46', 's50')
    srd(a, 12, 's40', 's41', 's47', 's51')
    def loads(q):
        a(f's_mov_b32 s50, {q*8192}\ns_mov_b32 s51, {q*4096}')
        a(f'buffer_load_dwordx4 v[{RG(q)}:{RG(q)+3}], v1, s[4:7], s50 offen {ldf}')
        a(f'buffer_load_dwordx4 v[{RG(q)+4}:{RG(q)+7}], v1, s[8:11], s50 offen {ldf}')
        a(f'buffer_load_dwordx2 v[{TA(q)}:{TA(q)+1}], v2, s[12:15], s51 offen {ldf}')
    if 'stamp' in diag:
        srd(a, 72, 's44', 's45', 200000000, 1 << 20)
        a('v_lshrrev_b32 v8, 6, v0\ns_nop 1\nv_readfirstlane_b32 s3, v8\ns_lshl_b32 s78, s2, 3\ns_add_u32 s78, s78, s3\ns_lshl_b32 s78, s78, 8')
        stamp(True); stamp(); a('s_waitcnt vmcnt(0)')
    def slow(tag):
        a(f's_bitcmp1_b32 s2, 3\ns_cbranch_scc0 A_f{tag}\ns_waitcnt vmcnt(0)\nA_f{tag}:')
    for q in range(PF):
        loads(q)
        if q < stag: slow(q)
    for k in range(2): a(f'ds_write_b128 v1, v[4:7] offset:{k*8192}')
    srd(a, 16, 's44', 's45', 's48', H*6)
    srd(a, 20, 's44', 's45', TAB_OFF, TAB_BYTES)
    srd(a, 64, 's42', 's43', None, E*32)
    srd(a, 68, 's62', 's63', None, E*2)
    a(f'''
    s_mov_b32 s24, 1374390
    s_mov_b32 s25, {EPC}
    s_mov_b32 s26, {-DM}
    s_mov_b32 s53, {KSH}
    s_mov_b32 s27, 0xffff0000
    s_mov_b32 s28, 0xffff
    s_mov_b32 s29, {H}
    s_mov_b32 s33, 0x07060302
    s_sub_u32 s32, s49, {24*2048}
    s_lshr_b32 s32, s32, 2
    v_cmp_gt_u32 s[30:31], s32, v0
    v_lshrrev_b32 v8, 6, v0
    s_waitcnt lgkmcnt(0)
    v_readfirstlane_b32 s3, v8
    v_mov_b32 v8, {MPH}
    s_barrier
    ''')
    def prefetch(pos):
        if mpf != pos: return
        a(f'''
        v_lshlrev_b32 v9, 7, v0
        s_mul_i32 s50, s2, {EPC*32}
        s_and_b32 s50, s50, 0xffffff80
        s_add_u32 s51, s50, 65536
        s_mul_i32 s52, s2, {EPC*2}
        s_and_b32 s52, s52, 0xffffff80
        s_mov_b32 m0, 160000
        s_nop 0
        buffer_load_dword v9, s[64:67], s50 offen lds
        v_cmp_gt_u32 vcc, {(EPC*32 + 127 + 127)//128 - 512}, v0
        s_mov_b64 exec, vcc
        buffer_load_dword v9, s[64:67], s51 offen lds
        s_mov_b64 exec, -1
        v_cmp_gt_u32 vcc, 50, v0
        s_mov_b64 exec, vcc
        buffer_load_dword v9, s[68:71], s52 offen lds
        s_mov_b64 exec, -1
        ''')
    for q in range(NGR):
        issued = min(NGR, q + PF)
        a(f's_waitcnt vmcnt({3*(issued - q - 1)})')
        if q == NGR-1: a('s_mov_b64 exec, s[30:31]')
        td = [12, 13, 14, 15]; tp = [16, 17, 18, 19]; tl = [20, 21, 22, 23]
        I = lambda e: RG(q) + e; O = lambda e: RG(q) + 4 + e
        for e in range(4): a(f'v_or_b32 v{td[e]}, 3, v{O(e)}')
        for e in range(4): a(f'v_mul_hi_u32_u24 v{td[e]}, s24, v{td[e]}')
        for e in range(4): a(f'v_bfe_u32 v{tp[e]}, v{td[e]}, {LB}, {5 - LB}')
        for e in range(4): a(f'v_mad_i32_i24 v{tl[e]}, v{tp[e]}, s26, v8')
        for e in range(4): a(f'v_mad_u32_u24 v{tp[e]}, v{tp[e]}, s53, v{I(e)}')
        for e in range(4): a(f'v_mul_hi_u32_u24 v{tp[e]}, v{tl[e]}, v{tp[e]}')
        for e in range(4): a(f'v_mul_u32_u24 v{tl[e]}, s25, v{td[e]}')
        for e in range(4): a(f'v_and_b32 v{tl[e]}, -4, v{tl[e]}')
        for e in range(4): a(f'v_sub_u32 v{tl[e]}, v{O(e)}, v{tl[e]}')
        for e in range(4): a(f'v_lshl_or_b32 v{tp[e]}, v{tp[e]}, 8, v{td[e]}')
        for e in range(4): a(f'v_lshlrev_b32 v{tp[e]}, 2, v{tp[e]}')
        for e in range(4): a(f'v_and_b32 v{td[e]}, 15, v{tl[e]}')
        for e in range(4):
            a(f'ds_add_u32 v{tp[e]}, v3')
            a(f'v_lshrrev_b32 v{tl[e]}, 4, v{tl[e]}')
            a(f'v_lshl_or_b32 v{td[e]}, v{I(e)}, 4, v{td[e]}')
        for e in range(4):
            k = 4*q + e
            a(f'v_lshl_or_b32 v{R0(k)}, v{td[e]}, 8, v{tl[e]}')
            if e % 2 == 0: a(f'v_lshl_or_b32 v{R1(k)}, v{TA(q)+e//2}, 16, v{tp[e]}')
            else: a(f'v_and_or_b32 v{R1(k)}, v{TA(q)+e//2}, s27, v{tp[e]}')
        if q + PF < NGR: loads(q + PF)
    a('s_mov_b64 exec, -1')
    prefetch(1)
    a('s_waitcnt lgkmcnt(0)')
    stamp()
    a('s_barrier')
    stamp()
    C = 12; Q = 28; PB = 40
    a('v_mul_u32_u24 v11, 24, v0')
    for k in range(3): a(f'ds_read_b64 v[{C+2*k}:{C+2*k+1}], v11 offset:{8*k}')
    a('s_waitcnt lgkmcnt(0)')
    for k in range(6): a(f'v_and_b32 v{PB+k}, 1, v{C+k}')
    for k in range(6): a(f'v_add_u32 v{C+k}, v{C+k}, v{PB+k}')
    for k in range(1, 6): a(f'v_add_u32 v{C+k}, v{C+k}, v{C+k-1}')
    a(f'v_mov_b32 v46, v{C+5}')
    for sh in ('row_shr:1 row_mask:0xf', 'row_shr:2 row_mask:0xf', 'row_shr:4 row_mask:0xf', 'row_shr:8 row_mask:0xf', 'row_bcast:15 row_mask:0xa', 'row_bcast:31 row_mask:0xc'):
        a(f'v_add_u32_dpp v46, v46, v46 {sh} bank_mask:0xf')
    a(f'''
    v_readlane_b32 s35, v46, 63
    s_lshl_b32 s50, s3, 2
    s_add_u32 s50, s50, {WT}
    v_mov_b32 v47, s50
    v_mov_b32 v48, s35
    s_mov_b64 exec, 1
    ds_write_b32 v47, v48
    s_mov_b64 exec, -1
    v_sub_u32 v46, v46, v{C+5}
    v_mov_b32 v47, {WT}
    s_waitcnt lgkmcnt(0)
    s_barrier
    ds_read_b128 v[48:51], v47
    ds_read_b128 v[52:55], v47 offset:16
    s_mov_b32 s35, 0
    s_mov_b32 s34, 0
    s_waitcnt lgkmcnt(0)
    ''')
    for w in range(8):
        a(f'v_readfirstlane_b32 s50, v{48+w}\ns_add_u32 s34, s34, s50\ns_cmp_eq_u32 s3, {w+1}\ns_cselect_b32 s35, s34, s35')
    a(f'v_add_u32 v{Q}, s35, v46')
    for k in range(1, 7): a(f'v_add_u32 v{Q+k}, v{Q}, v{C+k-1}')
    if not late:
        for k in range(6): a(f'v_lshl_or_b32 v{Q+k}, v{PB+k}, 16, v{Q+k}')
    for k in range(3): a(f'ds_write_b64 v11, v[{Q+2*k}:{Q+2*k+1}] offset:{8*k}')
    if late:
        a('s_mul_i32 s34, s34, 6\ns_waitcnt lgkmcnt(0)\ns_barrier')
    else:
        a(f'''
    v_cmp_eq_u32 vcc, 511, v0
    s_mov_b64 exec, vcc
    ds_write_b32 v11, v{Q+6} offset:24
    s_mov_b64 exec, -1
    s_mul_i32 s34, s34, 6
    v_lshrrev_b32 v45, 1, v0                     ; d
    v_and_b32 v46, 1, v0                         ; hh
    v_mul_u32_u24 v47, {6*1024}, v46
    v_lshl_add_u32 v47, v45, 2, v47
    v_mul_u32_u24 v45, 24, v0
    s_mul_i32 s50, s2, {256*48}
    s_waitcnt lgkmcnt(0)
    s_barrier
    ''')
        for k in range(6): a(f'ds_read_b32 v{C+k}, v47 offset:{1024*k}\nds_read_u16 v{Q+k}, v47 offset:{1024*k+4}')
        a('s_waitcnt lgkmcnt(0)\ns_barrier')
        for k in range(6): a(f'v_sub_u32_sdwa v{Q+k}, v{Q+k}, v{C+k} {SD} src1_sel:WORD_0')
        for k in range(6): a(f'v_sub_u32_sdwa v{Q+k}, v{Q+k}, v{C+k} {SD} src1_sel:WORD_1')
        for k in range(6): a(f'v_perm_b32 v{48+k}, v{Q+k}, v{C+k}, s{79}'.replace('s79', 's53'))
        a.l.insert(len(a.l) - 18, '    s_mov_b32 s53, 0x05040100')
        a(f'''
    buffer_store_dwordx4 v[48:51], v45, s[20:23], s50 offen {tbf}
    buffer_store_dwordx2 v[52:53], v45, s[20:23], s50 offen offset:16 {tbf}
    ''')
    stamp()
    prefetch(2)
    NR = 8
    ad = [12 + k for k in range(NR)]; rr = [20 + k for k in range(NR)]
    def issue(k0):
        if k0 == 96:
            for k in range(k0, k0+4): a(f'v_mov_b32 v{rr[k % NR]}, -1')
            a('s_mov_b64 exec, s[30:31]')
        for k in range(k0, k0+4): a(f'v_and_b32 v{ad[k % NR]}, s28, v{R1(k)}')
        for k in range(k0, k0+4): a(f'ds_add_rtn_u32 v{rr[k % NR]}, v{ad[k % NR]}, v3')
        if k0 == 96: a('s_mov_b64 exec, -1')
    def scat(k0, c):
        t = [28, 29, 30, 31]
        if oob:
            for e in range(4): a(f'v_mad_u32_u16 v{t[e]}, v{R1(k0+e)}, 8, s32')
            for e in range(4): a(f'ds_write_b64 v{t[e]}, v[{R0(k0+e)}:{R1(k0+e)}]')
            return
        if c == 0:
            for e in range(4): a(f'v_cmp_gt_u32_sdwa s[{54+2*e}:{55+2*e}], s29, v{R1(k0+e)} src0_sel:DWORD src1_sel:WORD_0')
            for e in range(4): a(f'v_lshlrev_b32_sdwa v{t[e]}, 3, v{R1(k0+e)} {SD} src1_sel:WORD_0')
        else:
            for e in range(4): a(f'v_subrev_u32_sdwa v{t[e]}, s32, v{R1(k0+e)} {SD} src1_sel:WORD_0')
            for e in range(4): a(f'v_cmp_gt_u32 s[{54+2*e}:{55+2*e}], s29, v{t[e]}')
            for e in range(4): a(f'v_lshlrev_b32 v{t[e]}, 3, v{t[e]}')
        for e in range(4):
            a(f's_mov_b64 exec, s[{54+2*e}:{55+2*e}]')
            a(f'ds_write_b64 v{t[e]}, v[{R0(k0+e)}:{R1(k0+e)}] offset:{SB}')
        a('s_mov_b64 exec, -1')
    a(f's_mov_b32 s32, {SB}')
    issue(0)
    for k0 in range(0, 100, 4):
        if k0 + 4 < 100: issue(k0 + 4)
        a(f's_waitcnt lgkmcnt({4 if k0 in (0, 96) else 8})')
        for k in range(k0, k0+4): a(f'v_bfi_b32 v{R1(k)}, s28, v{rr[k % NR]}, v{R1(k)}')
        scat(k0, 0)
        prefetch(100 + k0)
    a(f'''
    v_add_u32 v5, {SB}, v1
    v_add_u32 v6, {SB + 65536}, v1
    v_add_u32 v7, {SB + 131072}, v1
    v_mul_u32_u24 v4, 12, v0
    ''')
    NI = -(-H // 1024); RD = 4
    held = []
    def store(c, it, q): a(f's_mov_b32 s50, {c*H*6 + it*6144}\nbuffer_store_dwordx3 v[{q}:{q+2}], v4, s[16:19], s50 offen {stf}')
    for c in range(3):
        if c:
            a(f's_mov_b32 s32, {(SB - 8*c*H) & 0xffffffff if oob else c*H}')
            for n, k0 in enumerate(range(0, 100, 4)):
                scat(k0, c)
                if n % 2 == 0 and held: store(c - 1, *held.pop(0))
            assert not held
        if fused and c == 1: a(f's_waitcnt vmcnt({NI})')
        a('s_waitcnt lgkmcnt(0)\ns_barrier')
        if fused and c == 1:
            srd(a, 84, 's80', 's81', None, 256)
            a('''
            s_cmp_lg_u32 s3, 0
            s_cbranch_scc1 A_nt
            v_mov_b32 v28, s2
            s_mov_b64 exec, 1
            buffer_store_byte v3, v28, s[84:87], 0 offen sc1
            s_mov_b64 exec, -1
            A_nt:
            ''')
        if fused and c == 2: a('v_and_b32 v28, 63, v0\nv_lshlrev_b32 v28, 2, v28\nbuffer_load_dword v29, v28, s[84:87], 0 offen sc1')
        stamp()
        prefetch(3 + c)
        if late and c == 0:
            a(f'''
            v_lshrrev_b32 v28, 1, v0                     ; d
            v_and_b32 v29, 1, v0                         ; hh
            v_mul_u32_u24 v30, {6*1024}, v29
            v_lshl_add_u32 v30, v28, 2, v30
            v_mul_u32_u24 v28, 24, v0
            v_max_u32 v31, 4, v30
            v_subrev_u32 v31, 4, v31
            s_mul_i32 s51, s2, {256*48}
            ''')
            for k in range(6): a(f'ds_read_b32 v{8+k}, v30 offset:{1024*k}\nds_read_b32 v{14+k}, v{31 if k == 0 else 30} offset:{max(1024*k - 4, 0)}')
            a('v_cmp_ne_u32 vcc, 0, v0\ns_waitcnt lgkmcnt(0)\nv_cndmask_b32 v14, 0, v14, vcc')
            for k in range(6): a(f'v_add_u32 v{14+k}, 1, v{14+k}')
            for k in range(6): a(f'v_and_b32 v{14+k}, -2, v{14+k}')
            for k in range(6): a(f'v_sub_u32 v{8+k}, v{8+k}, v{14+k}')
            for k in range(6): a(f'v_lshl_or_b32 v{20+k}, v{8+k}, 16, v{14+k}')
            a('buffer_store_dwordx4 v[20:23], v28, s[20:23], s51 offen ' + tbf + '\nbuffer_store_dwordx2 v[24:25], v28, s[20:23], s51 offen offset:16 ' + tbf)
        a(f's_min_u32 s18, s34, {(c+1)*H*6}')
        nh = hold if c < 2 else 0
        def QD(it):
            if it >= NI - nh: return [8, 12, 16, 20, 24, 32, 36, 40, 44, 48, 52][11 - nh + it - (NI - nh)] if False else HR[it - (NI - nh)]
            return RR[it % len(RR)]
        HR = [8, 12, 16, 20, 24, 32, 36, 40, 44, 48, 52][:nh]
        RR = [x for x in [52, 48, 44, 40, 36, 32]]
        def rd(it):
            a(f'ds_read_b128 v[{QD(it)}:{QD(it)+3}], v{5 + it // 8} offset:{(it % 8)*8192}')
        for it in range(RD-1): rd(it)
        for it in range(NI):
            if it + RD - 1 < NI: rd(it + RD - 1)
            q = QD(it)
            a(f's_waitcnt lgkmcnt({min(RD-1, NI-1-it)})\nv_perm_b32 v{q+1}, v{q+3}, v{q+1}, s33')
            if it >= NI - nh: held.append((it, q))
            else: store(c, it, q)
        if c < 2: a('s_barrier')
        stamp()
    if 'stamp' in diag:
        a('s_waitcnt vmcnt(0)'); stamp(); stamp(True)
    if fused:
        a(f'''
        s_waitcnt vmcnt({NI})
        s_mov_b32 s37, 0
        A_tl:
        v_and_b32 v29, 0x01010101, v29
        v_cmp_ne_u32 vcc, 0x01010101, v29
        s_cbranch_vccz A_tw
        s_add_u32 s37, s37, 1
        s_cmp_gt_u32 s37, 100000
        s_cbranch_scc1 A_tw
        buffer_load_dword v29, v28, s[84:87], 0 offen sc1
        s_waitcnt vmcnt(0)
        s_branch A_tl
        A_tw:
        ''')
        return a.l
    a.label('A_end')
    a('s_endpgm')
    return a.l
```

```python
from common import *
NAME = 'agg_kernel'
CNT = 0; FLAG = 1600; DNA = 1604; DNR = 1608; L0 = 1664; L1 = L0 + 196*256
PST = L1 + 196*256; PIMM = 65280
NXMAX = {10: 15, 11: 7, 12: 7}[NPH]
TSZ = (NXMAX + 8*NPH + 1)*32
TBL = PST + 8*2048
SPILL = TBL + 8*TSZ; SPCAP = 128
DST = SPILL + 8*SPCAP*8
WST = DST + 8192
LDS = 163840
assert WST + 2048 <= LDS and TSZ <= 4096
NV = 25
import os
MAXSW = int(os.environ.get('MAXSW', 20000))
T0, T1, vLB, vHALF, vKC, vPR, vX = range(7)
W = 8; G = 16; LP = 28; U = 30; XB = 38; Q0 = 42; Q1 = 46; vP2 = 50
PK = lambda v: [7, 52, 53, 54, 55][v % 5]
vF = Q1
ACC = lambda v: 56 + 8*v
sEPC, sEP24, sNM32, sLIM, sF8, sEPA, sFFFF = 16, 17, 18, 19, 20, 21, 22
sROW, sNX, sU, sUE, sSP, sRES, sDID = 23, 24, 25, 26, 27, 28, 29
sLIVE, sSKIP, sSW, sD, sSPB, sFAR, sST = 30, 32, 34, 35, 48, 49, 51
sR0, sRN = 100, 101
sTG = 72
sKF = 70
sNG = 52
sW24 = 50
MK = lambda v: 60 + 2*(v % 5)
INC = 8 + (1 << 16)
def sp(r): return f's[{r}:{r+1}]'
def vp(r, n=2): return f'v[{r}:{r+n-1}]'
SD = 'dst_sel:DWORD dst_unused:UNUSED_PAD src0_sel:DWORD'

class Seq:
    def __init__(s): s.o = []
    def __call__(s, t, tag=None, maybe=False, drop=False):
        ls = [x.strip() for x in t.strip('\n').split('\n') if x.strip()]
        for x in ls:
            c = 'v' if x.startswith('buffer_') else ('l' if x.startswith('ds_') else None)
            s.o.append(dict(t='' if drop else x, c=c, tag=tag if c else None, maybe=maybe or drop))
    def wait(s, c, tags): s.o.append(dict(t=None, c=None, w=c, tags=tags))
    def resolve(s, a, cyclic):
        n = len(s.o)
        for k, x in enumerate(s.o):
            if x['t'] is not None: a(x['t']); continue
            cnt = 0; found = None; j = k - 1; steps = 0
            while steps < n:
                if j < 0:
                    if not cyclic: break
                    j += n
                y = s.o[j]
                if y['c'] == x['w']:
                    if y['tag'] in x['tags']: found = cnt; break
                    if not y['maybe']: cnt += 1
                j -= 1; steps += 1
            assert found is not None, x
            a(f's_waitcnt vmcnt({min(found,63)})' if x['w'] == 'v' else f's_waitcnt lgkmcnt({min(found,15)})')

def gen(APOS=(1,3,5,7,9,11,13,15), DA=2, recflags='', prio=(0,12), wpf=False, EDM=2, rot=8, pp1=(), ep1=(), gatf='', fused=False, stf='nt', diag=()):
    NS = 8
    a = Asm(); stubs = Asm(); late = []
    uid = [0]
    def nid(): uid[0] += 1; return uid[0]
    def stamp(q, real=False, T0=T0, T1=T1):
        if 'stamp' not in diag: return
        q(f'''
        {'s_memrealtime' if real or 'rt' in diag else 's_memtime'} s[96:97]
        s_waitcnt lgkmcnt(0)
        v_mov_b32 v{T0}, s96
        v_mov_b32 v{T1}, 0
        s_mov_b64 exec, 1
        ''')
        t = f'buffer_store_dword v{T0}, v{T1}, s[92:95], s98 offen'
        q(t, maybe=True) if isinstance(q, Seq) else q(t)
        q('s_mov_b64 exec, -1\ns_add_u32 s98, s98, 4')
    def k2(q, extra='0'):
        q(f'''
        v_mbcnt_lo_u32_b32 v{T0}, -1, 0
        v_mbcnt_hi_u32_b32 v{T0}, -1, v{T0}
        v_and_b32 v{T0}, 15, v{T0}
        v_lshl_add_u32 v{T0}, v{T0}, 1, {extra}
        v_mov_b32_sdwa v{vX}, v{T0} dst_sel:WORD_1 dst_unused:UNUSED_PRESERVE src0_sel:WORD_0
        ''')
    def L1s(q, sig, p2=vP2, off=None):
        k = nid()
        q(f'''
        s_add_u32 s36, s{sU}, {32*(sig if off is None else off)}
        s_cmp_ge_u32 s36, s{sFAR}
        s_cbranch_scc1 B_far{k}
        B_farb{k}:
        v_add_u32_sdwa v{T0}, s36, v{vX} {SD} src1_sel:WORD_0
        ''')
        q(f'ds_read_b64 {vp(p2)}, v{T0}', tag=('ent', sig))
        stubs(f'''
        B_far{k}:
        s_cmp_ge_u32 s36, s{sUE}
        s_cselect_b32 s36, s{sFAR}, s36
        s_cbranch_scc1 B_farb{k}
        s_sub_u32 s37, s36, s{sROW}
        s_lshr_b32 s37, s37, 5
        s_mov_b32 s38, {-(-(1 << 32) // (8*NPH))}
        s_mul_hi_u32 s37, s37, s38
        s_mul_i32 s38, s37, {8*NPH*32}
        s_sub_u32 s36, s36, s38
        s_lshl_b32 s37, s37, 5
        ''')
        k2(stubs, 's37'); stubs(f's_branch B_farb{k}')
    def L2s(q, sig, quad, m0, m1, p2=vP2, wait=True):
        if wait: q.wait('l', [('ent', sig)])
        q(f'''
        v_cmp_lt_u32_sdwa {sp(m0)}, v{vX}, v{p2+1} src0_sel:WORD_1 src1_sel:WORD_0
        v_mad_u32_u16 v{T0}, v{vX}, 6, v{p2} op_sel:[1,0,0,0]
        v_cmp_lt_u32_sdwa {sp(m1)}, v{vX}, v{p2+1} src0_sel:WORD_1 src1_sel:WORD_1
        s_mov_b64 exec, {sp(m0)}
        ''')
        q(f'buffer_load_dwordx3 {vp(quad,3)}, v{T0}, s[8:11], 0 offen {recflags}', tag=('rec', sig))
        q('s_mov_b64 exec, -1')
        if sig == 0: q(f's_andn2_b64 {sp(m0)}, {sp(m0)}, {sp(sSKIP)}')
    def COS(q, quad, h, filler):
        if 'nocos' in diag: q(filler); return
        q(f'''
        v_cvt_f32_bf16_sdwa v{T0}, v{quad+1} dst_sel:DWORD dst_unused:UNUSED_PAD src0_sel:WORD_{h}
        v_pk_mul_f32 {vp(T0)}, {vp(T0)}, {sp(sKF)} op_sel_hi:[0,1]
        ''')
        q(f'''
        v_cos_f32 v{T0}, v{T0}
        v_cos_f32 v{T1}, v{T1}
        {filler}
        v_cvt_pk_bf16_f32 v{quad+1+2*h}, v{T0}, v{T1}
        ''')
    def A1(q, sig, quad, masks, par, live=True, p2=vP2):
        ex = lambda h: f's_and_b64 exec, {sp(masks[h])}, {sp(sLIVE)}' if live else f's_mov_b64 exec, {sp(masks[h])}'
        if live:
            COS(q, quad, 1, f'v_mov_b32 v{p2+1}, {INC}'); COS(q, quad, 0, ex(0))
        else: q(f'v_mov_b32 v{p2+1}, {INC}\n{ex(0)}')
        for h in range(2):
            if h: q(ex(1))
            q(f'v_lshlrev_b32_sdwa v{T0}, 2, v{quad+2*h} {SD} src1_sel:BYTE_0')
            q(f'ds_add_rtn_u32 v{p2+h}, v{T0}, v{p2+1} offset:{CNT+800*par}', tag=('ret', sig))
        q('s_mov_b64 exec, -1')
    def A2(q, sig, quad, masks, par, live=True, p2=vP2):
        for h in range(2):
            k = nid()
            q(f's_and_b64 exec, {sp(masks[h])}, {sp(sLIVE)}' if live else f's_mov_b64 exec, {sp(masks[h])}')
            q(f'''
            v_lshlrev_b32_sdwa v{T0}, 8, v{quad+2*h} {SD} src1_sel:BYTE_0
            v_cmp_le_u32 vcc, s{sLIM}, v{p2+h}
            v_and_or_b32 v{T0}, v{p2+h}, s{sF8}, v{T0}
            s_cbranch_vccnz B_sp{k}
            B_spb{k}:
            v_mov_b32_sdwa v{quad+2*h}, s{sEPA} dst_sel:BYTE_0 dst_unused:UNUSED_PRESERVE src0_sel:BYTE_0
            ''')
            q(f'ds_write_b64 v{T0}, {vp(quad+2*h)} offset:{[L0, L1][par]}')
            stubs(f'''
            B_sp{k}:
            v_mbcnt_lo_u32_b32 v{T1}, vcc_lo, 0
            v_mbcnt_hi_u32_b32 v{T1}, vcc_hi, v{T1}
            s_lshl_b32 s36, s{sSP}, 3
            s_add_u32 s36, s36, s{sSPB}
            v_lshl_add_u32 v{T1}, v{T1}, 3, s36
            s_bcnt1_i32_b64 s37, vcc
            s_add_u32 s{sSP}, s{sSP}, s37
            s_andn2_b64 s[36:37], exec, vcc
            s_mov_b64 exec, vcc
            ds_write_b64 v{T1}, {vp(quad+2*h)}
            s_mov_b64 exec, s[36:37]
            ''')
            if live:
                stubs(f'''
                s_cmp_le_u32 s{sSP}, {SPCAP-64}
                s_cbranch_scc1 B_spb{k}
                s_mov_b64 {sp(sLIVE)}, 0
                s_add_u32 s{sRES}, s{sU}, {32*sig + 16*(h+1)}
                ''')
            stubs(f's_branch B_spb{k}')
        q('s_mov_b64 exec, -1')
    def signal(q, off):
        q(f'''
        s_mov_b64 exec, 1
        v_mov_b32 v{T0}, 0
        v_mov_b32 v{T1}, 1
        ds_add_u32 v{T0}, v{T1} offset:{off}
        s_mov_b64 exec, -1
        ''')
    def peek(q, off): q(f'v_mov_b32 v{T0}, 0'); q(f'ds_read_b32 v{vP2}, v{T0} offset:{off}', tag='peek')
    def check(q, off):
        k = nid()
        q(f'''
        v_readfirstlane_b32 s36, v{vP2}
        s_cmp_lt_u32 s36, s{sTG}
        s_cbranch_scc1 B_sy{k}
        B_syb{k}:
        ''')
        stubs(f'''
        B_sy{k}:
        v_mov_b32 v{T0}, 0
        ds_read_b32 v{vP2}, v{T0} offset:{off}
        s_waitcnt lgkmcnt(0)
        v_readfirstlane_b32 s36, v{vP2}
        ''')
        if MAXSW < 1 << 30: stubs(f's_add_u32 s73, s73, 1\ns_cmp_gt_u32 s73, 2000000\ns_cbranch_scc1 B_syb{k}')
        stubs(f'''
        s_cmp_lt_u32 s36, s{sTG}
        s_cbranch_scc1 B_sy{k}
        s_branch B_syb{k}
        ''')
    def reads_done(q, par):
        k = nid()
        q(f's_add_u32 s36, s{sSW}, 1\ns_and_b32 s36, s36, 126\ns_cbranch_scc0 B_cl{k}\nB_clb{k}:')
        stubs(f'B_cl{k}:\nv_mov_b32 v{Q1}, s{sEPC}\nv_mov_b32 v{Q1+1}, 0')
        for v in range(24): stubs(f'ds_write_b64 v{vLB}, {vp(Q1)} offset:{[L0, L1][par] + v*256}')
        stubs(f's_cmp_lg_u32 s{sW24}, 0\ns_cbranch_scc1 B_clb{k}')
        stubs(f'ds_write_b64 v{vLB}, {vp(Q1)} offset:{[L0, L1][par] + 24*256}\ns_branch B_clb{k}')
        signal(q, DNR)
    def sweep_end(q, par, adv=True):
        k = nid()
        if par is not None: peek(q, DNA)
        if adv: q(f'''
        s_add_u32 s{sU}, s{sU}, {32*NS}
        s_mov_b64 {sp(sSKIP)}, 0
        s_cmp_eq_u32 s{sLIVE}, 0
        s_cbranch_scc1 B_st{k}
        B_stb{k}:
        ''')
        q(f's_add_u32 s{sSW}, s{sSW}, 1')
        if par is not None: q(f's_add_u32 s{sTG}, s{sTG}, 8')
        q(f'''
        s_mov_b32 s{sEPC}, s{sEPA}
        s_add_u32 s{sEPA}, s{sEPA}, 1
        s_and_b32 s{sEPA}, s{sEPA}, 255
        s_or_b32 s{sEP24}, s{sEPC}, s{sW24}
        s_waitcnt lgkmcnt(0)
        ''')
        if 'prebar' in diag: stamp(q)
        if par is None: q('s_barrier')
        else: check(q, DNA)
        stamp(q)
        if not adv: return
        stubs(f'''
        B_st{k}:
        s_and_b32 s{sU}, s{sRES}, 0xffffffe0
        s_bitcmp1_b32 s{sRES}, 4
        s_cselect_b64 {sp(sSKIP)}, -1, 0
        s_mov_b64 {sp(sLIVE)}, -1
        ''')
        k2(stubs); stubs(f's_branch B_stb{k}')
    def reappend(q, par):
        k = nid()
        q(f's_cmp_lg_u32 s{sSP}, 0\ns_cbranch_scc1 B_ra{k}\nB_rab{k}:')
        r = Seq()
        r(f'''
        B_ra{k}:
        v_mbcnt_lo_u32_b32 v{T0}, -1, 0
        v_mbcnt_hi_u32_b32 v{T0}, -1, v{T0}
        v_lshl_add_u32 v{T1}, v{T0}, 3, s{sSPB}
        ds_read_b64 {vp(Q0)}, v{T1}
        ds_read_b64 {vp(Q0+2)}, v{T1} offset:512
        v_cmp_gt_u32 s[44:45], s{sSP}, v{T0}
        v_add_u32 v{T0}, 64, v{T0}
        v_cmp_gt_u32 s[46:47], s{sSP}, v{T0}
        s_mov_b32 s{sSP}, 0
        s_waitcnt lgkmcnt(0)
        ''')
        A1(r, 99, Q0, (44, 46), par, live=False)
        r('s_waitcnt lgkmcnt(0)')
        A2(r, 99, Q0, (44, 46), par, live=False)
        r(f'''
        s_waitcnt lgkmcnt(0)
        s_cmp_le_u32 s{sSP}, {SPCAP-64}
        s_cbranch_scc1 B_rab{k}
        s_mov_b64 {sp(sLIVE)}, 0
        s_and_b32 s36, s{sSKIP}, 16
        s_add_u32 s{sRES}, s{sU}, s36
        s_branch B_rab{k}
        ''')
        tmp = Asm(); r.resolve(tmp, False); late.append(tmp.l)

    def poll(q, off, tag):
        q(f'''
        s_cmp_lg_u32 s3, 0
        s_cbranch_scc1 B_pw{tag}
        s_mov_b32 s37, 0
        B_pl{tag}:
        v_lshrrev_b32 v122, 2, v96
        buffer_load_dword v123, v122, s[40:43], 0 offen sc1
        s_waitcnt vmcnt(0)
        s_add_u32 s37, s37, 1
        s_cmp_gt_u32 s37, 100000
        s_cbranch_scc1 B_pw{tag}
        v_cmp_ne_u32 vcc, 0x03030303, v123
        s_cbranch_vccnz B_pl{tag}
        B_pw{tag}:
        s_barrier
        ''')
    if fused:
        recflags = 'sc1'
        a('s_mov_b32 s40, s84\ns_mov_b32 s41, s85\ns_mov_b32 s42, 256\ns_mov_b32 s43, 0x20000')
    else:
        a.label(NAME)
        a(f's_cmp_ge_u32 s2, {NCU}\ns_cbranch_scc1 B_end')
    a(f'''
    s_load_dwordx2 s[56:57], s[0:1], {K_WS}
    s_load_dwordx2 s[54:55], s[0:1], {K_M}
    s_load_dwordx2 s[58:59], s[0:1], {K_DIST}
    s_load_dwordx4 s[60:63], s[0:1], {K_CEN}     ; centers, ang_freq
    s_load_dwordx8 s[64:71], s[0:1], {K_WRBF}
    s_and_b32 s{sD}, s2, 7
    s_lshl_b32 s{sD}, s{sD}, 5
    s_lshr_b32 s36, s2, 3
    s_add_u32 s{sD}, s{sD}, s36
    s_add_u32 s{sD}, s{sD}, {rot}
    s_and_b32 s{sD}, s{sD}, 255
    v_lshrrev_b32 v34, 6, v0
    v_lshrrev_b32 v35, 1, v0
    v_mul_u32_u24 v35, {256*48}, v35
    v_and_b32 v36, 1, v0
    v_mad_u32_u24 v35, v36, 24, v35              ; j*12288 + hh*24
    v_lshlrev_b32 v36, 2, v0                     ; x*4
    v_readfirstlane_b32 s3, v34
    s_mul_i32 s36, s{sD}, 48
    v_and_b32 v37, 63, v0                        ; lane
    v_and_b32 v38, 15, v0                        ; n
    v_lshrrev_b32 v39, 5, v37                    ; h
    v_lshrrev_b32 v33, 4, v37                    ; q
    v_lshlrev_b32 v41, 1, v38
    v_lshl_add_u32 v40, v39, 8, v41              ; (8h)*32 + n*2
    s_mul_i32 s{sST}, s3, 25
    s_sub_i32 s37, s3, 4
    s_max_i32 s37, s37, 0
    s_sub_u32 s{sST}, s{sST}, s37
    s_mul_i32 s{sR0}, s{sD}, {EPC}
    s_add_u32 s{sRN}, s{sR0}, {EPC}
    s_and_b32 s{sR0}, s{sR0}, -4
    s_and_b32 s{sRN}, s{sRN}, -4
    s_sub_u32 s{sRN}, s{sRN}, s{sR0}
    s_lshl_b32 s37, s{sR0}, 1
    s_lshl_b32 s38, s{sRN}, 1
    s_waitcnt lgkmcnt(0)
    ''')
    srd(a, 12, 's56', 's57', TAB_OFF, TAB_BYTES)
    def table(): a(f'''
    buffer_load_dwordx4 v[104:107], v35, s[12:15], s39 offen {recflags}
    buffer_load_dwordx2 v[108:109], v35, s[12:15], s39 offen offset:16 {recflags}
    ''')
    a('s_load_dword s99, s[62:63], 0\ns_mov_b32 s39, s36')
    table()
    srd(a, 76, 's68', 's69', None, 512)
    for k in range(8): a(f'buffer_load_ushort v{72+k}, v40, s[76:79], 0 offen offset:{32*k}')
    srd(a, 80, 's58', 's59', 's37', 's38')
    a(f'''
    s_lshl_b32 s36, s{sST}, 5
    v_lshlrev_b32 v32, 4, v37                    ; lane*16
    v_mov_b32 v96, v32
    buffer_load_dwordx4 v[80:83], v32, s[80:83], s36 offen
    v_lshl_add_u32 v42, v33, 7, v41              ; (4q)*32 + n*2
    v_lshl_add_u32 v43, v33, 6, v41              ; (2q)*32 + n*2
    v_lshlrev_b32 v44, 2, v33                    ; (2q)*2
    ''')
    R = 84
    srd(a, 84, 's70', 's71', None, 512)
    for k in range(4): a(f'buffer_load_ushort v{R+k}, v42, s[84:87], 0 offen offset:{32*k}')
    srd(a, 88, 's66', 's67', None, 512)
    for k in range(4): a(f'buffer_load_ushort v{R+4+k}, v42, s[88:91], 0 offen offset:{32*k}')
    srd(a, 72, 's64', 's65', None, 256)
    for k in range(2): a(f'buffer_load_ushort v{R+8+k}, v43, s[72:75], 0 offen offset:{32*k}')
    srd(a, 44, 's60', 's61', None, 16)
    for k in range(2): a(f'buffer_load_ushort v{R+10+k}, v44, s[44:47], 0 offen offset:{2*k}')
    srd(a, 4, 's54', 's55', None, 0 if 'nogather' in diag else E*32)
    srd(a, 8, 's56', 's57', None, REC_BYTES + 16)
    if 'stamp' in diag:
        srd(a, 92, 's56', 's57', 200000000, 1 << 20)
        a('s_lshl_b32 s98, s2, 3\ns_add_u32 s98, s98, s3\ns_lshl_b32 s98, s98, 8\nv_mov_b32 v42, v0')
        stamp(a, True); stamp(a); a('v_mov_b32 v0, v42')
    if fused: a('s_barrier')
    a(f'''
    v_lshlrev_b32 v41, 4, v0
    v_mov_b32 v42, 0
    v_mov_b32 v43, 0
    v_mov_b32 v44, 0
    v_mov_b32 v45, 0
    v_add_u32 v52, {L0}, v41
    v_add_u32 v53, {L1}, v41
    s_mul_i32 s39, s3, {TSZ}
    s_add_u32 s39, s39, {TBL}
    v_add_u32 v54, s39, v32
    ''')
    for k in range(6): a(f'ds_write_b128 v52, v[42:45] offset:{k*8192}')
    for k in range(TSZ // 1024): a(f'ds_write_b128 v54, v[42:45] offset:{k*1024}')
    if TSZ % 1024: a(f's_mov_b64 exec, {(1 << (TSZ % 1024 // 16)) - 1}\nds_write_b128 v54, v[42:45] offset:{TSZ // 1024 * 1024}\ns_mov_b64 exec, -1')
    assert L1 - L0 == 6*8192 + 1024 and TBL - L1 == 8*8192 + 1024
    a(f'''
    v_mov_b32 v98, v53
    v_cmp_gt_u32 s[14:15], 64, v0
    s_mov_b64 exec, s[14:15]
    ds_write_b128 v52, v[42:45] offset:{6*8192}
    s_mov_b64 exec, -1
    v_and_b32 v52, 31, v0
    v_lshlrev_b32 v52, 3, v52
    v_cmp_gt_u32 vcc, 200, v0
    s_mov_b64 exec, vcc
    ds_write_b32 v36, v52 offset:{CNT}
    ds_write_b32 v36, v52 offset:{CNT+800}
    ds_write_b96 v42, v[42:44] offset:{FLAG}
    s_mov_b64 exec, -1
    s_mov_b32 s{sEPC}, 0
    s_mov_b32 s{sEPA}, 1
    s_mov_b32 s{sNM32}, 0xffffffe0
    s_mov_b32 s{sLIM}, {32 << 16}
    s_mov_b32 s{sF8}, 0xf8
    s_mov_b32 s{sFFFF}, 0xffff
    s_mov_b32 s{sSP}, 0
    s_mov_b32 s{sRES}, 0
    s_mov_b64 {sp(sLIVE)}, -1
    s_mov_b64 {sp(sSKIP)}, 0
    s_mov_b32 s{sSW}, 0
    s_mul_i32 s{sSPB}, s3, {SPCAP*8}
    s_add_u32 s{sSPB}, s{sSPB}, {SPILL}
    s_cmp_lt_u32 s3, 4
    s_cselect_b32 s37, 25, 24
    s_cselect_b32 s{sW24}, 0, 0x100
    s_bfm_b32 s{sNG}, s37, 0
    s_mov_b32 s{sNG+1}, 0
    s_lshl_b32 s36, s{sST}, 8
    v_and_b32 v52, 31, v37                       ; record rho
    v_lshl_add_u32 v{vLB}, v52, 3, s36
    v_lshlrev_b32 v{vHALF}, 4, v39
    s_lshl_b32 s36, s3, 11
    s_add_u32 s36, s36, {PST}
    s_sub_u32 s37, s36, {PIMM}
    v_lshl_add_u32 v53, v39, 10, s37
    v_bfe_u32 v54, v52, 2, 2
    v_lshl_add_u32 v53, v54, 8, v53              ; + q*256
    v_lshrrev_b32 v54, 4, v52
    v_lshl_add_u32 v53, v54, 3, v53              ; + j*8
    v_and_b32 v54, 3, v52
    v_lshl_add_u32 v{vKC}, v54, 1, v53           ; + r*2
    v_lshl_add_u32 v54, v33, 8, s36
    v_lshl_add_u32 v{vPR}, v38, 4, v54           ; P base + q*256 + e*16
    v_lshlrev_b32 v{vX}, 3, v33
    v_lshl_or_b32 v{vX}, v38, 17, v{vX}          ; q*8 | (2e << 16)
    s_add_u32 s{sROW}, s39, {NXMAX*32}
    s_add_u32 s{sFAR}, s{sROW}, {8*NPH*32}
    v_and_b32 v53, 1, v33
    v_cmp_eq_u32 s[56:57], 0, v53                ; lanes whose record is in 0..15
    v_lshrrev_b32 v52, 1, v0                     ; tile j
    s_mov_b32 s36, {TSTRIDE}
    v_mul_u32_u24 v120, s36, v52
    v_and_b32 v53, 1, v0                         ; hh
    v_mul_u32_u24 v54, {6*256}, v53
    v_lshrrev_b32 v55, 1, v37
    v_lshl_add_u32 v54, v55, 3, v54
    v_add_u32 v121, s{sROW}, v54
    s_mov_b32 s{sU}, s{sROW}
    s_mov_b32 s{sUE}, s{sFAR}
    s_sub_u32 s13, s{sROW}, 32
    ''')
    if fused:
        a(f'''
        s_waitcnt vmcnt(23)
        s_barrier
        s_cmp_lg_u32 s3, 0
        s_cbranch_scc1 B_nd
        v_mov_b32 v122, s2
        v_mov_b32 v123, 3
        s_mov_b64 exec, 1
        buffer_store_byte v123, v122, s[40:43], 0 offen sc1
        s_mov_b64 exec, -1
        B_nd:
        ''')
    if 'pro' in diag: stamp(a, T0=56, T1=57)
    a('s_waitcnt vmcnt(21)')
    if 'pro' in diag: stamp(a, T0=56, T1=57)
    N = 110
    for k in range(6): a(f'v_lshrrev_b32 v{N+k}, 16, v{104+k}')
    a(f'''
    v_max3_u32 v116, v{N}, v{N+1}, v{N+2}
    v_max3_u32 v116, v116, v{N+3}, v{N+4}
    v_max_u32 v116, v116, v{N+5}
    v_cmp_lt_u32 vcc, 32, v116
    s_cbranch_vccnz B_x
    B_xb:
    ''')
    def entry(q, k, r):
        q(f'''
        v_max_u32 v{r+1}, 1, v{N+k}
        v_mad_u32_u16 v{r}, v{104+k}, 6, v120
        v_subrev_u32 v{r+1}, 1, v{r+1}
        v_lshl_or_b32 v{r+1}, v{r+1}, 16, v{N+k}
        ''')
    def row(q, k):
        entry(q, k, 118)
        if 6 + k >= NPH: q('s_mov_b32 exec_lo, 0x55555555\ns_mov_b32 exec_hi, 0x55555555')
        q(f'ds_write_b64 v121, v[118:119] offset:{k*256}')
        if 6 + k >= NPH: q('s_mov_b64 exec, -1')
    stubs(f'B_x:\ns_mov_b32 s{sNX}, 0')
    for k in range(6):
        entry(stubs, k, 118)
        stubs(f'''
        v_cmp_lt_u32 vcc, 32, v{N+k}
        v_add_u32 v118, 192, v118
        v_subrev_u32 v119, {32 + (32 << 16)}, v119
        v_mbcnt_lo_u32_b32 v117, vcc_lo, 0
        v_mbcnt_hi_u32_b32 v117, vcc_hi, v117
        s_bcnt1_i32_b64 s37, vcc
        v_add_u32 v117, s{sNX}, v117
        s_add_u32 s{sNX}, s{sNX}, s37
        s_cmp_gt_u32 s{sNX}, {4*NXMAX}
        s_cselect_b64 vcc, 0, vcc
        s_sub_u32 s37, s{sROW}, 8
        v_lshlrev_b32 v117, 3, v117
        v_sub_u32 v117, s37, v117                ; extra entries grow downwards from the first row
        s_mov_b64 exec, vcc
        ds_write_b64 v117, v[118:119]
        s_mov_b64 exec, -1
        ''')
    for sh in ('row_shr:1 row_mask:0xf', 'row_shr:2 row_mask:0xf', 'row_shr:4 row_mask:0xf', 'row_shr:8 row_mask:0xf', 'row_bcast:15 row_mask:0xa', 'row_bcast:31 row_mask:0xc'):
        stubs(f'v_max_u32_dpp v116, v116, v116 {sh} bank_mask:0xf')
    stubs(f'''
    v_readlane_b32 s36, v116, 63                 ; longest segment of this wave
    s_add_u32 s37, s{sNX}, 3
    s_lshr_b32 s37, s37, 2
    s_lshl_b32 s37, s37, 5
    s_sub_u32 s{sU}, s{sROW}, s37
    s_cmp_gt_u32 s{sNX}, {4*NXMAX}
    s_cselect_b32 s37, 65, 0
    s_max_u32 s37, s37, s36
    s_cmp_gt_u32 s37, 64
    s_cbranch_scc0 B_xb
    s_mov_b32 s{sU}, s{sROW}                     ; general case: every phase once per chunk of 32 records
    s_add_u32 s36, s36, 31
    s_lshr_b32 s36, s36, 5
    s_mul_i32 s36, s36, {8*NPH*32}
    s_add_u32 s{sUE}, s{sROW}, s36
    s_mov_b32 s13, s{sFAR}
    s_branch B_xb
    ''')
    q = Seq()
    SL = list(range(-1, NS))
    pq = lambda s: 20 + 4*s
    pm = lambda s: (40, 42) if s < 0 else ((58 + 4*s, 60 + 4*s) if s < 3 else (60 + 4*s, 62 + 4*s))
    pp = lambda s: 54 + 2*(s + 1)
    row(q, 0)
    if fused:
        for k in range(1, 6): row(q, k)
        poll(q, 0, 'd')
    q('s_waitcnt lgkmcnt(0)')
    for s in SL:
        q(f's_add_u32 s36, s{sROW}, {32*s}' if s >= 0 else 's_mov_b32 s36, s13')
        q(f'v_add_u32_sdwa v{T0}, s36, v{vX} {SD} src1_sel:WORD_0')
        q(f'ds_read_b64 {vp(pp(s))}, v{T0}', tag=('ent', s))
    for s in SL: L2s(q, s, pq(s), *pm(s), pp(s))
    if not fused:
        for k in range(1, 6): row(q, k)
    q(f'''
    s_lshl_b32 s36, s99, 16
    s_and_b32 s37, s99, 0xffff0000
    v_mov_b32 v116, s36
    v_mov_b32 v117, s37
    v_mul_f32 v116, 0.15915494, v116
    v_mul_f32 v117, 0.15915494, v117
    v_readfirstlane_b32 s{sKF}, v116
    v_readfirstlane_b32 s{sKF+1}, v117
    ''')
    a_ = a; a = q
    stamp(q)
    a = a_
    import struct, math
    SQ = struct.unpack('<I', struct.pack('<f', math.sqrt(10*math.log2(math.e))))[0]
    def operands(q):
        for k in range(4):
            q(f'''
            v_lshl_or_b32 v{72+2*k}, v{73+2*k}, 16, v{72+2*k}
            v_cndmask_b32 v{W+4+k}, v{72+2*k}, 0, s[56:57]
            v_cndmask_b32 v{W+k}, 0, v{72+2*k}, s[56:57]
            ''')
        if 'ident' in diag:
            q(f'''
            v_lshrrev_b32 v97, 4, v96                ; lane
            v_and_b32 v72, 15, v97
            v_lshrrev_b32 v73, 5, v97
            v_lshlrev_b32 v73, 3, v73
            v_sub_u32 v72, v72, v73                  ; n - 8h
            s_mov_b32 s36, 0x3f80
            s_mov_b32 s37, 0x3f800000
            ''')
            for k in range(4):
                q(f'''
                v_cmp_eq_u32 vcc, {2*k}, v72
                v_mov_b32 v73, s36
                v_mov_b32 v74, s37
                v_cndmask_b32 v75, 0, v73, vcc
                v_cmp_eq_u32 vcc, {2*k+1}, v72
                s_nop 1
                v_cndmask_b32 v75, v75, v74, vcc
                v_cndmask_b32 v{W+4+k}, v75, 0, s[56:57]
                v_cndmask_b32 v{W+k}, 0, v75, s[56:57]
                ''')
        q(f'''
        s_lshl_b32 s36, s3, 10
        s_add_u32 s36, s36, {DST}
        v_add_u32 v97, s36, v96
        ds_write_b128 v97, v[80:83]
        v_lshl_or_b32 v72, v{R+1}, 16, v{R}          ; w_up
        v_lshl_or_b32 v73, v{R+3}, 16, v{R+2}
        v_lshl_or_b32 v74, v{R+6}, 16, v{R+4}
        v_lshl_or_b32 v75, v{R+7}, 16, v{R+5}
        v_lshl_or_b32 v76, v{R+9}, 16, v{R+8}        ; w_rbf
        v_mov_b32 v77, 0
        v_lshlrev_b32 v78, 16, v{R+10}
        v_lshlrev_b32 v79, 16, v{R+11}
        v_mul_f32 v78, {(SQ | 0x80000000):#x}, v78   ; -center*s
        v_mul_f32 v79, {(SQ | 0x80000000):#x}, v79
        v_add_u32 v97, {WST}, v96
        ds_write_b128 v97, v[72:75]
        ds_write_b128 v97, v[76:79] offset:1024
        ''')
        for k in range(100, 104): q(f'v_mov_b32 v{k}, 0')
        for k in range(8):
            q(f'ds_write_b128 v98, v[100:103] offset:{k*8192}')
            for r in range(104 + 19*k, 104 + 19*k + 19): q(f'v_mov_b32 v{r}, 0')
        q(f'v_add_u32 v98, {8*8192}, v98\ns_mov_b64 exec, s[14:15]\nds_write_b128 v98, v[100:103]\ns_mov_b64 exec, -1')
    q(f's_waitcnt vmcnt({len(SL)})')
    operands(q)
    if 'pro' in diag: stamp(q)
    q('s_waitcnt lgkmcnt(0)\ns_barrier')
    q(f'B_xl:\ns_add_u32 s36, s{sU}, 32\ns_cmp_ge_u32 s36, s{sROW}\ns_cbranch_scc1 B_xe')
    L1s(q, 100, 108, off=0); L2s(q, 100, 104, 44, 46, 108)
    q('s_waitcnt vmcnt(0)'); A1(q, 100, 104, (44, 46), 0, p2=108)
    q('s_waitcnt lgkmcnt(0)'); A2(q, 0, 104, (44, 46), 0, p2=108)
    q(f's_cmp_eq_u32 s{sLIVE}, 0\ns_cbranch_scc1 B_pz\ns_add_u32 s{sU}, s{sU}, 32\ns_branch B_xl\nB_xe:')
    for o in q.o[-60:]:
        if o.get('tag') in (('rec', 100), ('ent', 100), ('ret', 100)) or (o['c'] and o['tag'] is None and 'v[10' in (o['t'] or '')): o['maybe'] = True
    q(f's_mov_b32 s{sU}, s{sROW}')
    if 'pro' in diag: stamp(q)
    TP = lambda s, h: 72 + 4*((s + 1) % 6) + 2*h
    def cos2(ss):
        for st in range(4):
            for s in ss:
                for h in (1, 0):
                    t = TP(s, h)
                    q([f'v_cvt_f32_bf16_sdwa v{t}, v{pq(s)+1} dst_sel:DWORD dst_unused:UNUSED_PAD src0_sel:WORD_{h}',
                       f'v_pk_mul_f32 {vp(t)}, {vp(t)}, {sp(sKF)} op_sel_hi:[0,1]',
                       f'v_cos_f32 v{t}, v{t}\nv_cos_f32 v{t+1}, v{t+1}',
                       f'v_cvt_pk_bf16_f32 v{pq(s)+1+2*h}, v{t}, v{t+1}'][st])
    def yprio(tag, on):
        if on: q(f's_cmp_lt_u32 s3, 4\ns_cbranch_scc1 B_yp{tag}\ns_setprio 1\nB_yp{tag}:')
        else: q('s_setprio 0')
    for k in range(0, len(SL), 3):
        if k in pp1: yprio(f'p{k}', pp1.index(k) % 2 == 0)
        for s in SL[k:k+3]:
            q.wait('v', [('rec', s)])
            A1(q, s, pq(s), pm(s), 0, live=False, p2=pp(s))
        cos2(SL[k:k+3])
    for s in SL:
        if 10 + s + 1 in pp1: yprio(f'q{s+1}', pp1.index(10 + s + 1) % 2 == 0)
        q.wait('l', [('ret', s)]); A2(q, s, pq(s), pm(s), 0, p2=pp(s))
    if 'pro' in diag: stamp(q)
    q('B_pz:')
    q(f'B_pe:\ns_mov_b64 s[72:73], 0')
    for v in range(5): q(f'v_mov_b32 v{PK(v)}, v{vKC}\ns_mov_b64 {sp(MK(v))}, 0')
    for k in list(range(G, G+12)) + list(range(U, U+16)) + list(range(56, 100)) + list(range(104, 110)): q(f'v_mov_b32 v{k}, 0')
    sweep_end(q, None)
    q.resolve(a, False)

    MF = 'v_mfma_f32_16x16x32_bf16'
    GS = lambda v: Q0 if v == 24 else G + 4*(v % 3)
    def setprio(q, v, tag):
        if v in prio:
            if prio.index(v) % 2 == 0:
                q(f's_cmp_eq_u32 s{sW24}, 0\ns_cbranch_scc1 B_pr{tag}_{v}\ns_setprio 1\nB_pr{tag}_{v}:')
            else: q('s_setprio 0')
    def step(q, par, v, LB, visit=True):
        av = (v - 3) % NV; ap = par if v >= 3 else 1-par
        bv = (v - 4) % NV
        if v: q.wait('l', [('pr', par, v - 1)])
        q(f'{MF} {vp(ACC(bv),4)}, {vp(XB,4)}, {vp(U,4)}, {vp(ACC(bv),4)}', drop='nomfma' in diag)
        q(f'{MF} {vp(ACC(bv)+4,4)}, {vp(XB,4)}, {vp(U+4,4)}, {vp(ACC(bv)+4,4)}', drop='nomfma' in diag)
        if not visit and v == 3: return
        if visit:
            if v == 0: q.wait('l', [('lst', par, 0)])
            q(f'''
            v_lshrrev_b32 v{T0}, 7, v{LP}
            v_and_or_b32 v{T0}, v{T0}, s{sNM32}, v{vHALF}
            v_cmpx_eq_u32_sdwa {sp(MK(v))}, s{sEP24 if v == 24 else sEPC}, v{LP} src0_sel:DWORD src1_sel:BYTE_0
            v_bfe_u32 v{T1}, v{LP}, 8, 4
            v_lshl_add_u32 v{PK(v)}, v{T1}, 4, v{vKC}
            v_lshrrev_b32_sdwa v{PK(v)}, v{vHALF}, v{LP+1} dst_sel:WORD_1 dst_unused:UNUSED_PRESERVE src0_sel:DWORD src1_sel:DWORD
            ''')
        q.wait('v', [('gat', ap, av)])
        q(f'{MF} {vp(U,4)}, {vp(GS(av),4)}, {vp(W,4)}, 0', drop='nomfma' in diag)
        q(f'{MF} {vp(U+4,4)}, {vp(GS(av),4)}, {vp(W+4,4)}, 0', drop='nomfma' in diag)
        if visit: q(f'buffer_load_dwordx4 {vp(GS(v),4)}, v{T0}, s[4:7], 0 offen {gatf}', tag=('gat', par, v), drop='nodma' in diag)
        q(f's_mov_b64 exec, {sp(MK(bv))}')
        q(f'v_and_b32 v{T0}, s{sFFFF}, v{PK(bv)}')
        q(f'ds_write_b16_d16_hi v{T0}, v{vHALF} offset:{PIMM}', drop='nopw' in diag)
        q(f's_mov_b64 exec, {sp(MK(av))}')
        q(f'v_and_b32 v{T1}, s{sFFFF}, v{PK(av)}')
        q(f'ds_write_b16_d16_hi v{T1}, v{PK(av)} offset:{PIMM}', drop='nopw' in diag)
        q('s_mov_b64 exec, -1')
        if visit and v + 1 < NV: q(f'ds_read_b64 {vp(LP)}, v{vLB} offset:{LB + (v+1)*256}', tag=('lst', par, v+1))
        for k in range(4): q(f'v_cvt_pk_bf16_f32 v{XB+k}, v{U+2*k}, v{U+2*k+1}')
        q(f'ds_read_b128 {vp(U,4)}, v{vPR}', drop='nopr' in diag)
        q(f'ds_read_b128 {vp(U+4,4)}, v{vPR} offset:1024', tag=('pr', par, v), drop='nopr' in diag)
        if visit and v == 23:
            for k in range(4): q(f'v_mov_b32 v{Q0+k}, 0')
    def cntreset(q, off):
        q(f'''
        v_mbcnt_lo_u32_b32 v{T0}, -1, 0
        v_mbcnt_hi_u32_b32 v{T0}, -1, v{T0}
        v_add_u32 v{T0}, s{sST}, v{T0}
        v_and_b32 v{T1}, 31, v{T0}
        v_lshl_add_u32 v{T0}, v{T0}, 2, {off}
        v_lshlrev_b32 v{T1}, 3, v{T1}
        s_mov_b64 exec, {sp(sNG)}
        ds_write_b32 v{T0}, v{T1} offset:{CNT}
        ''')
    q = Seq()
    for par in range(2):
        LB = [L0, L1][par]
        q(f'B_loop{par}:')
        if MAXSW < 1 << 30: q(f's_cmp_gt_u32 s{sSW}, {MAXSW}\ns_cbranch_scc1 B_epi')
        q(f'''
        s_cmp_lt_u32 s{sU}, s{sUE}
        s_cselect_b32 s36, 1, s{sSP}
        s_cmp_eq_u32 s36, 0
        s_cbranch_scc1 B_free{par}
        ''')
        q(f'ds_read_b64 {vp(LP)}, v{vLB} offset:{LB}', tag=('lst', par, 0))
        for v in range(NV):
            setprio(q, v, par)
            step(q, par, v, LB)
            qd = lambda s: Q1 - 4*(s % 2); mk = lambda s: (40 + 4*(s % 2), 42 + 4*(s % 2))
            for s in range(NS):
                if v == APOS[s] + DA + 1: q.wait('l', [('ret', s)]); A2(q, s, qd(s), mk(s), 1-par)
            if v == APOS[-1] + DA + 1: signal(q, DNA)
            if v == NV - 2: reads_done(q, par)
            for s in range(NS):
                if v == APOS[s]: L2s(q, s, qd(s), *mk(s))
            if v == 1: peek(q, DNR)
            if v == 2: q.wait('l', ['peek']); check(q, DNR); reappend(q, 1-par)
            for s in range(NS):
                if v == APOS[s] - 1: L1s(q, s)
                if v == APOS[s] + DA: q.wait('v', [('rec', s)]); A1(q, s, qd(s), mk(s), 1-par)
            if v == 0:
                if par: q('s_movk_i32 s36, 800')
                cntreset(q, 's36' if par else '0')
                q(f'''
                s_mov_b64 exec, 1
                v_mov_b32 v{T0}, s{sSW}
                v_mov_b32 v{T1}, 0
                ds_max_u32 v{T1}, v{T0} offset:{FLAG}
                s_mov_b64 exec, -1
                ''')
        sweep_end(q, par)
    q('s_branch B_loop0')
    q.resolve(a, True)
    q = Seq()
    q(f'''
    B_free1:
    s_mov_b32 s{sDID}, {L1 - L0}
    s_branch B_free
    B_free0:
    s_mov_b32 s{sDID}, 0
    B_free:
    v_mov_b32 v{T0}, 0
    v_add_u32 v{vLB}, s{sDID}, v{vLB}
    ds_read_b32 v{vF}, v{T0} offset:{FLAG}
    ''')
    q(f'ds_read_b64 {vp(LP)}, v{vLB} offset:{L0}', tag=('lst', 0, 0))
    q(f'''
    s_waitcnt lgkmcnt(1)
    v_readfirstlane_b32 s36, v{vF}
    s_add_u32 s36, s36, 1
    s_cmp_lt_u32 s36, s{sSW}
    s_cbranch_scc1 B_epi
    ''')
    for v in (22, 23, 24): q('buffer_x', tag=('gat', 1, v)); q.o[-1]['t'] = ''
    for v in range(NV):
        setprio(q, v, 'f')
        step(q, 0, v, L0)
        if v == 0:
            q(f's_cmp_lg_u32 s{sDID}, 0\ns_cselect_b32 s36, 800, 0')
            cntreset(q, 's36'); signal(q, DNA)
        if v == NV - 2: reads_done(q, 0)
    sweep_end(q, 0, adv=False)
    q(f'''
    v_subrev_u32 v{vLB}, s{sDID}, v{vLB}
    s_cmp_lg_u32 s{sDID}, 0
    s_cbranch_scc1 B_loop0
    s_branch B_loop1
    ''')
    q.resolve(a, False)

    a.label('B_epi')
    stamp(a)
    a(f'''
    s_setprio 0
    s_load_dwordx2 s[72:73], s[0:1], {K_OUT}
    s_lshl_b32 s36, s{sR0}, 5
    s_lshl_b32 s43, s{sRN}, 5
    v_mbcnt_lo_u32_b32 v{vLB}, -1, 0
    v_mbcnt_hi_u32_b32 v{vLB}, -1, v{vLB}        ; lane
    s_lshl_b32 s38, s{sST}, 9
    s_lshl_b32 s39, s{sST}, 8
    s_add_u32 s40, s39, {L1}                     ; piece 1
    s_add_u32 s39, s39, {L0}                     ; piece 0
    s_mul_i32 s41, s3, {TSZ}
    s_add_u32 s41, s41, {TBL}                    ; piece 2
    v_lshlrev_b32 v{vX}, 4, v{vLB}
    ''')
    srd(a, 12, 's54', 's55', 's36', 's43')
    piece = lambda pr: (39 + min(pr // 6, 2), (pr % 6)*1024)
    q = Seq()
    for v in (22, 23, 24): q('buffer_x', tag=('gat', 1, v)); q.o[-1]['t'] = ''
    q('s_waitcnt lgkmcnt(0)')
    def mdma(pr):
        sg, off = piece(pr)
        q(f's_add_u32 m0, s{sg}, {off}\ns_add_u32 s42, s38, {pr*1024}')
        q(f'buffer_load_dwordx4 v{vX}, s[12:15], s42 offen lds', tag=('m', pr))
    for v in range(4):
        for pr in range(EDM*v, EDM*v + EDM): mdma(pr)
        step(q, 0, v, L0, visit=False)
    t = Asm(); srd(t, 8, 's72', 's73', 's36', 's43'); q('\n'.join(t.l))
    if 'epi' in diag: stamp(q)
    WU, W0, W1, WR, CS, RB, TT, DD, MM, A0, VV = 8, 10, 12, 14, 0, 16, 20, 24, 28, 32, 48
    TMP = 7
    q(f'''
    v_lshrrev_b32 v3, 4, v{vLB}                  ; q
    v_and_b32 v2, 15, v{vLB}                     ; e
    v_add_u32 v5, {WST}, v{vX}
    ds_read_b128 v[44:47], v5
    ds_read_b128 v[48:51], v5 offset:1024
    s_lshl_b32 s37, s3, 10
    s_add_u32 s37, s37, {DST}
    v_lshl_add_u32 v5, v2, 1, s37
    v_lshlrev_b32 v4, 5, v2
    v_lshl_add_u32 v4, v3, 3, v4                 ; e*32 + q*8
    v_add_u32 v2, s39, v4
    v_add_u32 v3, s40, v4
    v_add_u32 v4, s41, v4
    s_mov_b32 s43, 0xffff0000
    s_mov_b32 s44, {SQ:#x}
    s_mov_b32 s45, {SQ:#x}
    v_mov_b32 v{RB+1}, 0
    v_mov_b32 v{RB+3}, 0
    v_mov_b32 v{W0+1}, 0
    v_mov_b32 v{W1+1}, 0
    v_mov_b32 v{WR+1}, 0
    ''')
    def drd(p):
        for h in range(2): q(f'ds_read_u16 v{DD + 2*(p % 2) + h}, v5 offset:{32*(2*p+h)}', tag=('d', p))
    drd(0); drd(1)
    q(f'''
    s_waitcnt lgkmcnt(4)
    v_mov_b32 v{WU}, v44
    v_mov_b32 v{WU+1}, v45
    v_mov_b32 v{W0}, v46
    v_mov_b32 v{W1}, v47
    v_mov_b32 v{WR}, v48
    v_mov_b32 v{CS}, v50
    v_mov_b32 v{CS+1}, v51
    ''')
    MF = 'v_mfma_f32_16x16x16_bf16'
    HS = lambda p: (0, 1) if p < 12 else (0,)
    VR = lambda p, h: VV + 4*h
    lds = lambda v: (2 + min(v // 12, 2), (v % 12)*512)
    def E1(p):
        d = DD + 2*(p % 2); H2 = HS(p)
        q.wait('l', [('d', p)])
        for h in H2: q(f'v_lshlrev_b32 v{d+h}, 16, v{d+h}')
        for h in H2: q(f'v_pk_fma_f32 {vp(TT+2*h)}, {vp(d)}, s[44:45], {vp(CS)} op_sel:[{h},0,0] op_sel_hi:[{h},0,1]')
        if p + 2 <= 12: drd(p + 2)
        for h in H2: q(f'v_pk_mul_f32 {vp(TT+2*h)}, {vp(TT+2*h)}, {vp(TT+2*h)} neg_lo:[0,1] neg_hi:[0,1]')
        for h in H2: q(f'v_exp_f32 v{TT+2*h}, v{TT+2*h}\nv_exp_f32 v{TT+2*h+1}, v{TT+2*h+1}')
        if 4*EDM + p < 13: mdma(4*EDM + p)
        for h in H2: q(f'v_cvt_pk_bf16_f32 v{RB+2*h}, v{TT+2*h}, v{TT+2*h+1}')
        for h in H2:
            q(f'{MF} {vp(A0+8*h,4)}, {vp(W0)}, {vp(RB+2*h)}, 0')
            q(f'{MF} {vp(A0+8*h+4,4)}, {vp(W1)}, {vp(RB+2*h)}, 0')
    def E2(p):
        H2 = HS(p)
        q.wait('v', [('m', p)])
        for h in H2:
            b, off = lds(2*p + h)
            q(f'ds_read_b64 {vp(MM + 2*h)}, v{b} offset:{off}', tag=('mm', p))
        for k in (0, 2):
            for h in H2: q(f'v_pk_mul_f32 {vp(ACC(2*p+h)+k)}, {vp(ACC(2*p+h)+k)}, {vp(A0+8*h+k)}')
        for k in (0, 2):
            for h in H2: q(f'v_pk_fma_f32 {vp(ACC(2*p+h)+k)}, {vp(ACC(2*p+h)+4+k)}, {vp(A0+8*h+4+k)}, {vp(ACC(2*p+h)+k)}')
        for k in (0, 1):
            for h in H2: q(f'v_cvt_pk_bf16_f32 v{ACC(2*p+h)+k}, v{ACC(2*p+h)+2*k}, v{ACC(2*p+h)+2*k+1}')
        for h in H2: q(f'{MF} {vp(VR(p,h),4)}, {vp(WR)}, {vp(RB+2*h)}, 0')
        for h in H2: q(f'{MF} {vp(ACC(2*p+h)+4,4)}, {vp(WU)}, {vp(ACC(2*p+h))}, 0')
    def E3(p):
        H2 = HS(p)
        q.wait('l', [('mm', p)])
        for k in (0, 1):
            for h in H2:
                q(f'v_lshlrev_b32 v{ACC(2*p+h)+2*k}, 16, v{MM+2*h+k}\nv_and_b32 v{ACC(2*p+h)+2*k+1}, s43, v{MM+2*h+k}')
        for k in (0, 2):
            for h in H2: q(f'v_pk_fma_f32 {vp(ACC(2*p+h)+k)}, {vp(ACC(2*p+h)+4+k)}, {vp(VR(p,h)+k)}, {vp(ACC(2*p+h)+k)}')
        for k in (0, 1):
            for h in H2: q(f'v_cvt_pk_bf16_f32 v{ACC(2*p+h)+k}, v{ACC(2*p+h)+2*k}, v{ACC(2*p+h)+2*k+1}')
        sg, off2 = piece(p)
        q(f's_add_u32 s42, s{sg}, {off2}\nv_add_u32 v{TMP}, s42, v{vX}')
        for h in H2:
            b, off = lds(2*p + h)
            q(f'ds_write_b64 v{b}, {vp(ACC(2*p+h))} offset:{off}')
        q(f'ds_read_b128 {vp(ACC(min(2*p+1, 24)),4)}, v{TMP}', tag=('o', p))
    def ST(pr):
        A = ACC(min(2*pr + 1, 24))
        q(f's_add_u32 s42, s38, {pr*1024}')
        q.wait('l', [('o', pr)])
        q(f'buffer_store_dwordx4 {vp(A,4)}, v{vX}, s[8:11], s42 offen {stf}')
    E1(0)
    if 'epi' in diag: stamp(q, T0=TT, T1=TT+1)
    for p in range(12):
        if p in ep1: yprio(f'e{p}', ep1.index(p) % 2 == 0)
        E2(p); E1(p + 1)
        if p >= 1: ST(p - 1)
        E3(p)
    ST(11)
    if 'epi' in diag: stamp(q, T0=TT, T1=TT+1)
    q('s_cmp_ge_u32 s3, 4\ns_cbranch_scc1 B_last')
    E2(12); E3(12)
    q('s_mov_b32 exec_hi, 0')
    ST(12)
    q.resolve(a, False)
    a.label('B_last')
    if 'stamp' in diag:
        a('s_mov_b64 exec, -1\ns_waitcnt vmcnt(0)')
        stamp(a); stamp(a, True)
    a.label('B_end')
    a('s_endpgm')
    out = a.l + stubs.l
    for l in late: out += l
    return out
```

```python
from common import *
NAME = 'agg_kernel'
CNT = 0; FLAG = 1600; DNA = 1604; DNR = 1608; L0 = 1664; L1 = L0 + 196*256
PST = L1 + 196*256; PIMM = 65280
NXMAX = {10: 15, 11: 7, 12: 7}[NPH]
TSZ = (NXMAX + 8*NPH + 1)*32
TBL = PST + 8*2048
SPILL = TBL + 8*TSZ; SPCAP = 128
DST = SPILL + 8*SPCAP*8
WST = DST + 8192
LDS = 163840
assert WST + 2048 <= LDS and TSZ <= 4096
NV = 25
import os
MAXSW = int(os.environ.get('MAXSW', 20000))
T0, T1, vLB, vHALF, vKC, vPR, vX = range(7)
W = 8; G = 16; LP = 28; U = 30; XB = 38; Q0 = 42; Q1 = 46; vP2 = 50
PK = lambda v: [7, 52, 53, 54, 55][v % 5]
vF = Q1
ACC = lambda v: 56 + 8*v
sEPC, sEP24, sNM32, sLIM, sF8, sEPA, sFFFF = 16, 17, 18, 19, 20, 21, 22
sROW, sNX, sU, sUE, sSP, sRES, sDID = 23, 24, 25, 26, 27, 28, 29
sLIVE, sSKIP, sSW, sD, sSPB, sFAR, sST = 30, 32, 34, 35, 48, 49, 51
sR0, sRN = 100, 101
sTG = 72
sKF = 70
sNG = 52
sW24 = 50
MK = lambda v: 60 + 2*(v % 5)
INC = 8 + (1 << 16)
def sp(r): return f's[{r}:{r+1}]'
def vp(r, n=2): return f'v[{r}:{r+n-1}]'
SD = 'dst_sel:DWORD dst_unused:UNUSED_PAD src0_sel:DWORD'

class Seq:
    def __init__(s): s.o = []
    def __call__(s, t, tag=None, maybe=False, drop=False):
        ls = [x.strip() for x in t.strip('\n').split('\n') if x.strip()]
        for x in ls:
            c = 'v' if x.startswith('buffer_') else ('l' if x.startswith('ds_') else None)
            s.o.append(dict(t='' if drop else x, c=c, tag=tag if c else None, maybe=maybe or drop))
    def wait(s, c, tags): s.o.append(dict(t=None, c=None, w=c, tags=tags))
    def resolve(s, a, cyclic):
        n = len(s.o)
        for k, x in enumerate(s.o):
            if x['t'] is not None: a(x['t']); continue
            cnt = 0; found = None; j = k - 1; steps = 0
            while steps < n:
                if j < 0:
                    if not cyclic: break
                    j += n
                y = s.o[j]
                if y['c'] == x['w']:
                    if y['tag'] in x['tags']: found = cnt; break
                    if not y['maybe']: cnt += 1
                j -= 1; steps += 1
            assert found is not None, x
            a(f's_waitcnt vmcnt({min(found,63)})' if x['w'] == 'v' else f's_waitcnt lgkmcnt({min(found,15)})')

def gen(APOS=(1,3,5,7,9,11,13,15), DA=2, recflags='', prio=(0,12), wpf=False, EDM=2, mdf='', rot=8, pp1=(), ep1=(), gatf='', fused=False, stf='nt', diag=()):
    NS = 8
    a = Asm(); stubs = Asm(); late = []
    uid = [0]
    def nid(): uid[0] += 1; return uid[0]
    def stamp(q, real=False, T0=T0, T1=T1):
        if 'stamp' not in diag: return
        q(f'''
        {'s_memrealtime' if real or 'rt' in diag else 's_memtime'} s[96:97]
        s_waitcnt lgkmcnt(0)
        v_mov_b32 v{T0}, s96
        v_mov_b32 v{T1}, 0
        s_mov_b64 exec, 1
        ''')
        t = f'buffer_store_dword v{T0}, v{T1}, s[92:95], s98 offen'
        q(t, maybe=True) if isinstance(q, Seq) else q(t)
        q('s_mov_b64 exec, -1\ns_add_u32 s98, s98, 4')
    def k2(q, extra='0'):
        q(f'''
        v_mbcnt_lo_u32_b32 v{T0}, -1, 0
        v_mbcnt_hi_u32_b32 v{T0}, -1, v{T0}
        v_and_b32 v{T0}, 15, v{T0}
        v_lshl_add_u32 v{T0}, v{T0}, 1, {extra}
        v_mov_b32_sdwa v{vX}, v{T0} dst_sel:WORD_1 dst_unused:UNUSED_PRESERVE src0_sel:WORD_0
        ''')
    def L1s(q, sig, p2=vP2, off=None):
        k = nid()
        q(f'''
        s_add_u32 s36, s{sU}, {32*(sig if off is None else off)}
        s_cmp_ge_u32 s36, s{sFAR}
        s_cbranch_scc1 B_far{k}
        B_farb{k}:
        v_add_u32_sdwa v{T0}, s36, v{vX} {SD} src1_sel:WORD_0
        ''')
        q(f'ds_read_b64 {vp(p2)}, v{T0}', tag=('ent', sig))
        stubs(f'''
        B_far{k}:
        s_cmp_ge_u32 s36, s{sUE}
        s_cselect_b32 s36, s{sFAR}, s36
        s_cbranch_scc1 B_farb{k}
        s_sub_u32 s37, s36, s{sROW}
        s_lshr_b32 s37, s37, 5
        s_mov_b32 s38, {-(-(1 << 32) // (8*NPH))}
        s_mul_hi_u32 s37, s37, s38
        s_mul_i32 s38, s37, {8*NPH*32}
        s_sub_u32 s36, s36, s38
        s_lshl_b32 s37, s37, 5
        ''')
        k2(stubs, 's37'); stubs(f's_branch B_farb{k}')
    def L2s(q, sig, quad, m0, m1, p2=vP2, wait=True):
        if wait: q.wait('l', [('ent', sig)])
        q(f'''
        v_cmp_lt_u32_sdwa {sp(m0)}, v{vX}, v{p2+1} src0_sel:WORD_1 src1_sel:WORD_0
        v_mad_u32_u16 v{T0}, v{vX}, 6, v{p2} op_sel:[1,0,0,0]
        v_cmp_lt_u32_sdwa {sp(m1)}, v{vX}, v{p2+1} src0_sel:WORD_1 src1_sel:WORD_1
        s_mov_b64 exec, {sp(m0)}
        ''')
        q(f'buffer_load_dwordx3 {vp(quad,3)}, v{T0}, s[8:11], 0 offen {recflags}', tag=('rec', sig))
        q('s_mov_b64 exec, -1')
        if sig == 0: q(f's_andn2_b64 {sp(m0)}, {sp(m0)}, {sp(sSKIP)}')
    def COS(q, quad, h, filler):
        if 'nocos' in diag: q(filler); return
        q(f'''
        v_cvt_f32_bf16_sdwa v{T0}, v{quad+1} dst_sel:DWORD dst_unused:UNUSED_PAD src0_sel:WORD_{h}
        v_pk_mul_f32 {vp(T0)}, {vp(T0)}, {sp(sKF)} op_sel_hi:[0,1]
        ''')
        q(f'''
        v_cos_f32 v{T0}, v{T0}
        v_cos_f32 v{T1}, v{T1}
        {filler}
        v_cvt_pk_bf16_f32 v{quad+1+2*h}, v{T0}, v{T1}
        ''')
    def A1(q, sig, quad, masks, par, live=True, p2=vP2, nh=2):
        ex = lambda h: f's_and_b64 exec, {sp(masks[h])}, {sp(sLIVE)}' if live else f's_mov_b64 exec, {sp(masks[h])}'
        if live:
            COS(q, quad, 1, f'v_mov_b32 v{p2+1}, {INC}'); COS(q, quad, 0, ex(0))
        else: q(f'v_mov_b32 v{p2+1}, {INC}\n{ex(0)}')
        for h in range(nh):
            if h: q(ex(1))
            q(f'v_lshlrev_b32_sdwa v{T0}, 2, v{quad+2*h} {SD} src1_sel:BYTE_0')
            q(f'ds_add_rtn_u32 v{p2+h}, v{T0}, v{p2+1} offset:{CNT+800*par}', tag=('ret', sig))
        q('s_mov_b64 exec, -1')
    def A2(q, sig, quad, masks, par, live=True, p2=vP2, nh=2):
        for h in range(nh):
            k = nid()
            q(f's_and_b64 exec, {sp(masks[h])}, {sp(sLIVE)}' if live else f's_mov_b64 exec, {sp(masks[h])}')
            q(f'''
            v_lshlrev_b32_sdwa v{T0}, 8, v{quad+2*h} {SD} src1_sel:BYTE_0
            v_cmp_le_u32 vcc, s{sLIM}, v{p2+h}
            v_and_or_b32 v{T0}, v{p2+h}, s{sF8}, v{T0}
            s_cbranch_vccnz B_sp{k}
            B_spb{k}:
            v_mov_b32_sdwa v{quad+2*h}, s{sEPA} dst_sel:BYTE_0 dst_unused:UNUSED_PRESERVE src0_sel:BYTE_0
            ''')
            q(f'ds_write_b64 v{T0}, {vp(quad+2*h)} offset:{[L0, L1][par]}')
            stubs(f'''
            B_sp{k}:
            v_mbcnt_lo_u32_b32 v{T1}, vcc_lo, 0
            v_mbcnt_hi_u32_b32 v{T1}, vcc_hi, v{T1}
            s_lshl_b32 s36, s{sSP}, 3
            s_add_u32 s36, s36, s{sSPB}
            v_lshl_add_u32 v{T1}, v{T1}, 3, s36
            s_bcnt1_i32_b64 s37, vcc
            s_add_u32 s{sSP}, s{sSP}, s37
            s_andn2_b64 s[36:37], exec, vcc
            s_mov_b64 exec, vcc
            ds_write_b64 v{T1}, {vp(quad+2*h)}
            s_mov_b64 exec, s[36:37]
            ''')
            if live:
                stubs(f'''
                s_cmp_le_u32 s{sSP}, {SPCAP-64}
                s_cbranch_scc1 B_spb{k}
                s_mov_b64 {sp(sLIVE)}, 0
                s_add_u32 s{sRES}, s{sU}, {32*sig + 16*(h+1)}
                ''')
            stubs(f's_branch B_spb{k}')
        q('s_mov_b64 exec, -1')
    def signal(q, off):
        q(f'''
        s_mov_b64 exec, 1
        v_mov_b32 v{T0}, 0
        v_mov_b32 v{T1}, 1
        ds_add_u32 v{T0}, v{T1} offset:{off}
        s_mov_b64 exec, -1
        ''')
    def peek(q, off): q(f'v_mov_b32 v{T0}, 0'); q(f'ds_read_b32 v{vP2}, v{T0} offset:{off}', tag='peek')
    def check(q, off):
        k = nid()
        q(f'''
        v_readfirstlane_b32 s36, v{vP2}
        s_cmp_lt_u32 s36, s{sTG}
        s_cbranch_scc1 B_sy{k}
        B_syb{k}:
        ''')
        stubs(f'''
        B_sy{k}:
        v_mov_b32 v{T0}, 0
        ds_read_b32 v{vP2}, v{T0} offset:{off}
        s_waitcnt lgkmcnt(0)
        v_readfirstlane_b32 s36, v{vP2}
        ''')
        if MAXSW < 1 << 30: stubs(f's_add_u32 s73, s73, 1\ns_cmp_gt_u32 s73, 2000000\ns_cbranch_scc1 B_syb{k}')
        stubs(f'''
        s_cmp_lt_u32 s36, s{sTG}
        s_cbranch_scc1 B_sy{k}
        s_branch B_syb{k}
        ''')
    def reads_done(q, par):
        k = nid()
        q(f's_add_u32 s36, s{sSW}, 1\ns_and_b32 s36, s36, 126\ns_cbranch_scc0 B_cl{k}\nB_clb{k}:')
        stubs(f'B_cl{k}:\nv_mov_b32 v{Q1}, s{sEPC}\nv_mov_b32 v{Q1+1}, 0')
        for v in range(24): stubs(f'ds_write_b64 v{vLB}, {vp(Q1)} offset:{[L0, L1][par] + v*256}')
        stubs(f's_cmp_lg_u32 s{sW24}, 0\ns_cbranch_scc1 B_clb{k}')
        stubs(f'ds_write_b64 v{vLB}, {vp(Q1)} offset:{[L0, L1][par] + 24*256}\ns_branch B_clb{k}')
        signal(q, DNR)
    def sweep_end(q, par, adv=True):
        k = nid()
        if par is not None: peek(q, DNA)
        if adv: q(f'''
        s_add_u32 s{sU}, s{sU}, {32*NS}
        s_mov_b64 {sp(sSKIP)}, 0
        s_cmp_eq_u32 s{sLIVE}, 0
        s_cbranch_scc1 B_st{k}
        B_stb{k}:
        ''')
        q(f's_add_u32 s{sSW}, s{sSW}, 1')
        if par is not None: q(f's_add_u32 s{sTG}, s{sTG}, 8')
        q(f'''
        s_mov_b32 s{sEPC}, s{sEPA}
        s_add_u32 s{sEPA}, s{sEPA}, 1
        s_and_b32 s{sEPA}, s{sEPA}, 255
        s_or_b32 s{sEP24}, s{sEPC}, s{sW24}
        s_waitcnt lgkmcnt(0)
        ''')
        if 'prebar' in diag: stamp(q)
        if par is None: q('s_barrier')
        else: check(q, DNA)
        stamp(q)
        if not adv: return
        stubs(f'''
        B_st{k}:
        s_and_b32 s{sU}, s{sRES}, 0xffffffe0
        s_bitcmp1_b32 s{sRES}, 4
        s_cselect_b64 {sp(sSKIP)}, -1, 0
        s_mov_b64 {sp(sLIVE)}, -1
        ''')
        k2(stubs); stubs(f's_branch B_stb{k}')
    def reappend(q, par):
        k = nid()
        q(f's_cmp_lg_u32 s{sSP}, 0\ns_cbranch_scc1 B_ra{k}\nB_rab{k}:')
        r = Seq()
        r(f'''
        B_ra{k}:
        v_mbcnt_lo_u32_b32 v{T0}, -1, 0
        v_mbcnt_hi_u32_b32 v{T0}, -1, v{T0}
        s_cmp_gt_u32 s{sSP}, 64
        v_lshl_add_u32 v{T1}, v{T0}, 3, s{sSPB}
        v_cmp_gt_u32 s[44:45], s{sSP}, v{T0}
        ds_read_b64 {vp(Q0)}, v{T1}
        s_cbranch_scc1 B_rw{k}
        s_mov_b32 s{sSP}, 0
        s_waitcnt lgkmcnt(0)
        ''')
        A1(r, 99, Q0, (44, 46), par, live=False, nh=1)
        r('s_waitcnt lgkmcnt(0)')
        A2(r, 99, Q0, (44, 46), par, live=False, nh=1)
        r(f'''
        s_branch B_rab{k}
        B_rw{k}:
        ds_read_b64 {vp(Q0+2)}, v{T1} offset:512
        v_add_u32 v{T0}, 64, v{T0}
        v_cmp_gt_u32 s[46:47], s{sSP}, v{T0}
        s_mov_b32 s{sSP}, 0
        s_waitcnt lgkmcnt(0)
        ''')
        A1(r, 99, Q0, (44, 46), par, live=False)
        r('s_waitcnt lgkmcnt(0)')
        A2(r, 99, Q0, (44, 46), par, live=False)
        r(f'''
        s_cmp_le_u32 s{sSP}, {SPCAP-64}
        s_cbranch_scc1 B_rab{k}
        s_mov_b64 {sp(sLIVE)}, 0
        s_and_b32 s36, s{sSKIP}, 16
        s_add_u32 s{sRES}, s{sU}, s36
        s_branch B_rab{k}
        ''')
        assert SPCAP == 128
        tmp = Asm(); r.resolve(tmp, False); late.append(tmp.l)

    def poll(q, off, tag):
        q(f'''
        s_cmp_lg_u32 s3, 0
        s_cbranch_scc1 B_pw{tag}
        s_mov_b32 s37, 0
        B_pl{tag}:
        v_lshrrev_b32 v122, 2, v96
        buffer_load_dword v123, v122, s[40:43], 0 offen sc1
        s_waitcnt vmcnt(0)
        s_add_u32 s37, s37, 1
        s_cmp_gt_u32 s37, 100000
        s_cbranch_scc1 B_pw{tag}
        v_cmp_ne_u32 vcc, 0x03030303, v123
        s_cbranch_vccnz B_pl{tag}
        B_pw{tag}:
        s_barrier
        ''')
    if fused:
        recflags = 'sc1'
        a('s_mov_b32 s40, s84\ns_mov_b32 s41, s85\ns_mov_b32 s42, 256\ns_mov_b32 s43, 0x20000')
    else:
        a.label(NAME)
        a(f's_cmp_ge_u32 s2, {NCU}\ns_cbranch_scc1 B_end')
    a(f'''
    s_load_dwordx2 s[56:57], s[0:1], {K_WS}
    s_load_dwordx2 s[54:55], s[0:1], {K_M}
    s_load_dwordx2 s[58:59], s[0:1], {K_DIST}
    s_load_dwordx4 s[60:63], s[0:1], {K_CEN}     ; centers, ang_freq
    s_load_dwordx8 s[64:71], s[0:1], {K_WRBF}
    s_and_b32 s{sD}, s2, 7
    s_lshl_b32 s{sD}, s{sD}, 5
    s_lshr_b32 s36, s2, 3
    s_add_u32 s{sD}, s{sD}, s36
    s_add_u32 s{sD}, s{sD}, {rot}
    s_and_b32 s{sD}, s{sD}, 255
    v_lshrrev_b32 v34, 6, v0
    v_lshrrev_b32 v35, 1, v0
    v_mul_u32_u24 v35, {256*48}, v35
    v_and_b32 v36, 1, v0
    v_mad_u32_u24 v35, v36, 24, v35              ; j*12288 + hh*24
    v_lshlrev_b32 v36, 2, v0                     ; x*4
    v_readfirstlane_b32 s3, v34
    s_mul_i32 s36, s{sD}, 48
    v_and_b32 v37, 63, v0                        ; lane
    v_and_b32 v38, 15, v0                        ; n
    v_lshrrev_b32 v39, 5, v37                    ; h
    v_lshrrev_b32 v33, 4, v37                    ; q
    v_lshlrev_b32 v41, 1, v38
    v_lshl_add_u32 v40, v39, 8, v41              ; (8h)*32 + n*2
    s_mul_i32 s{sST}, s3, 25
    s_sub_i32 s37, s3, 4
    s_max_i32 s37, s37, 0
    s_sub_u32 s{sST}, s{sST}, s37
    s_mul_i32 s{sR0}, s{sD}, {EPC}
    s_add_u32 s{sRN}, s{sR0}, {EPC}
    s_and_b32 s{sR0}, s{sR0}, -4
    s_and_b32 s{sRN}, s{sRN}, -4
    s_sub_u32 s{sRN}, s{sRN}, s{sR0}
    s_lshl_b32 s37, s{sR0}, 1
    s_lshl_b32 s38, s{sRN}, 1
    s_waitcnt lgkmcnt(0)
    ''')
    srd(a, 12, 's56', 's57', TAB_OFF, TAB_BYTES)
    def table(): a(f'''
    buffer_load_dwordx4 v[104:107], v35, s[12:15], s39 offen {recflags}
    buffer_load_dwordx2 v[108:109], v35, s[12:15], s39 offen offset:16 {recflags}
    ''')
    a('s_load_dword s99, s[62:63], 0\ns_mov_b32 s39, s36')
    table()
    srd(a, 76, 's68', 's69', None, 512)
    for k in range(8): a(f'buffer_load_ushort v{72+k}, v40, s[76:79], 0 offen offset:{32*k}')
    srd(a, 80, 's58', 's59', 's37', 's38')
    a(f'''
    s_lshl_b32 s36, s{sST}, 5
    v_lshlrev_b32 v32, 4, v37                    ; lane*16
    v_mov_b32 v96, v32
    buffer_load_dwordx4 v[80:83], v32, s[80:83], s36 offen
    v_lshl_add_u32 v42, v33, 7, v41              ; (4q)*32 + n*2
    v_lshl_add_u32 v43, v33, 6, v41              ; (2q)*32 + n*2
    v_lshlrev_b32 v44, 2, v33                    ; (2q)*2
    ''')
    R = 84
    srd(a, 84, 's70', 's71', None, 512)
    for k in range(4): a(f'buffer_load_ushort v{R+k}, v42, s[84:87], 0 offen offset:{32*k}')
    srd(a, 88, 's66', 's67', None, 512)
    for k in range(4): a(f'buffer_load_ushort v{R+4+k}, v42, s[88:91], 0 offen offset:{32*k}')
    srd(a, 72, 's64', 's65', None, 256)
    for k in range(2): a(f'buffer_load_ushort v{R+8+k}, v43, s[72:75], 0 offen offset:{32*k}')
    srd(a, 44, 's60', 's61', None, 16)
    for k in range(2): a(f'buffer_load_ushort v{R+10+k}, v44, s[44:47], 0 offen offset:{2*k}')
    srd(a, 4, 's54', 's55', None, 0 if 'nogather' in diag else E*32)
    srd(a, 8, 's56', 's57', None, REC_BYTES + 16)
    if 'stamp' in diag:
        srd(a, 92, 's56', 's57', 200000000, 1 << 20)
        a('s_lshl_b32 s98, s2, 3\ns_add_u32 s98, s98, s3\ns_lshl_b32 s98, s98, 8\nv_mov_b32 v42, v0')
        stamp(a, True); stamp(a); a('v_mov_b32 v0, v42')
    if fused: a('s_barrier')
    a(f'''
    v_lshlrev_b32 v41, 4, v0
    v_mov_b32 v42, 0
    v_mov_b32 v43, 0
    v_mov_b32 v44, 0
    v_mov_b32 v45, 0
    v_add_u32 v52, {L0}, v41
    v_add_u32 v53, {L1}, v41
    s_mul_i32 s39, s3, {TSZ}
    s_add_u32 s39, s39, {TBL}
    v_add_u32 v54, s39, v32
    ''')
    for k in range(6): a(f'ds_write_b128 v52, v[42:45] offset:{k*8192}')
    for k in range(TSZ // 1024): a(f'ds_write_b128 v54, v[42:45] offset:{k*1024}')
    if TSZ % 1024: a(f's_mov_b64 exec, {(1 << (TSZ % 1024 // 16)) - 1}\nds_write_b128 v54, v[42:45] offset:{TSZ // 1024 * 1024}\ns_mov_b64 exec, -1')
    assert L1 - L0 == 6*8192 + 1024 and TBL - L1 == 8*8192 + 1024
    a(f'''
    v_mov_b32 v98, v53
    v_cmp_gt_u32 s[14:15], 64, v0
    s_mov_b64 exec, s[14:15]
    ds_write_b128 v52, v[42:45] offset:{6*8192}
    s_mov_b64 exec, -1
    v_and_b32 v52, 31, v0
    v_lshlrev_b32 v52, 3, v52
    v_cmp_gt_u32 vcc, 200, v0
    s_mov_b64 exec, vcc
    ds_write_b32 v36, v52 offset:{CNT}
    ds_write_b32 v36, v52 offset:{CNT+800}
    ds_write_b96 v42, v[42:44] offset:{FLAG}
    s_mov_b64 exec, -1
    s_mov_b32 s{sEPC}, 0
    s_mov_b32 s{sEPA}, 1
    s_mov_b32 s{sNM32}, 0xffffffe0
    s_mov_b32 s{sLIM}, {32 << 16}
    s_mov_b32 s{sF8}, 0xf8
    s_mov_b32 s{sFFFF}, 0xffff
    s_mov_b32 s{sSP}, 0
    s_mov_b32 s{sRES}, 0
    s_mov_b64 {sp(sLIVE)}, -1
    s_mov_b64 {sp(sSKIP)}, 0
    s_mov_b32 s{sSW}, 0
    s_mul_i32 s{sSPB}, s3, {SPCAP*8}
    s_add_u32 s{sSPB}, s{sSPB}, {SPILL}
    s_cmp_lt_u32 s3, 4
    s_cselect_b32 s37, 25, 24
    s_cselect_b32 s{sW24}, 0, 0x100
    s_bfm_b32 s{sNG}, s37, 0
    s_mov_b32 s{sNG+1}, 0
    s_lshl_b32 s36, s{sST}, 8
    v_and_b32 v52, 31, v37                       ; record rho
    v_lshl_add_u32 v{vLB}, v52, 3, s36
    v_lshlrev_b32 v{vHALF}, 4, v39
    s_lshl_b32 s36, s3, 11
    s_add_u32 s36, s36, {PST}
    s_sub_u32 s37, s36, {PIMM}
    v_lshl_add_u32 v53, v39, 10, s37
    v_bfe_u32 v54, v52, 2, 2
    v_lshl_add_u32 v53, v54, 8, v53              ; + q*256
    v_lshrrev_b32 v54, 4, v52
    v_lshl_add_u32 v53, v54, 3, v53              ; + j*8
    v_and_b32 v54, 3, v52
    v_lshl_add_u32 v{vKC}, v54, 1, v53           ; + r*2
    v_lshl_add_u32 v54, v33, 8, s36
    v_lshl_add_u32 v{vPR}, v38, 4, v54           ; P base + q*256 + e*16
    v_lshlrev_b32 v{vX}, 3, v33
    v_lshl_or_b32 v{vX}, v38, 17, v{vX}          ; q*8 | (2e << 16)
    s_add_u32 s{sROW}, s39, {NXMAX*32}
    s_add_u32 s{sFAR}, s{sROW}, {8*NPH*32}
    v_and_b32 v53, 1, v33
    v_cmp_eq_u32 s[56:57], 0, v53                ; lanes whose record is in 0..15
    v_lshrrev_b32 v52, 1, v0                     ; tile j
    s_mov_b32 s36, {TSTRIDE}
    v_mul_u32_u24 v120, s36, v52
    v_and_b32 v53, 1, v0                         ; hh
    v_mul_u32_u24 v54, {6*256}, v53
    v_lshrrev_b32 v55, 1, v37
    v_lshl_add_u32 v54, v55, 3, v54
    v_add_u32 v121, s{sROW}, v54
    s_mov_b32 s{sU}, s{sROW}
    s_mov_b32 s{sUE}, s{sFAR}
    s_sub_u32 s13, s{sROW}, 32
    ''')
    if fused:
        a(f'''
        s_waitcnt vmcnt(23)
        s_barrier
        s_cmp_lg_u32 s3, 0
        s_cbranch_scc1 B_nd
        v_mov_b32 v122, s2
        v_mov_b32 v123, 3
        s_mov_b64 exec, 1
        buffer_store_byte v123, v122, s[40:43], 0 offen sc1
        s_mov_b64 exec, -1
        B_nd:
        ''')
    if 'pro' in diag: stamp(a, T0=56, T1=57)
    a('s_waitcnt vmcnt(21)')
    if 'pro' in diag: stamp(a, T0=56, T1=57)
    N = 110
    for k in range(6): a(f'v_lshrrev_b32 v{N+k}, 16, v{104+k}')
    a(f'''
    v_max3_u32 v116, v{N}, v{N+1}, v{N+2}
    v_max3_u32 v116, v116, v{N+3}, v{N+4}
    v_max_u32 v116, v116, v{N+5}
    v_cmp_lt_u32 vcc, 32, v116
    s_cbranch_vccnz B_x
    B_xb:
    ''')
    def entry(q, k, r):
        q(f'''
        v_max_u32 v{r+1}, 1, v{N+k}
        v_mad_u32_u16 v{r}, v{104+k}, 6, v120
        v_subrev_u32 v{r+1}, 1, v{r+1}
        v_lshl_or_b32 v{r+1}, v{r+1}, 16, v{N+k}
        ''')
    def row(q, k):
        entry(q, k, 118)
        if 6 + k >= NPH: q('s_mov_b32 exec_lo, 0x55555555\ns_mov_b32 exec_hi, 0x55555555')
        q(f'ds_write_b64 v121, v[118:119] offset:{k*256}')
        if 6 + k >= NPH: q('s_mov_b64 exec, -1')
    stubs(f'B_x:\ns_mov_b32 s{sNX}, 0')
    for k in range(6):
        entry(stubs, k, 118)
        stubs(f'''
        v_cmp_lt_u32 vcc, 32, v{N+k}
        v_add_u32 v118, 192, v118
        v_subrev_u32 v119, {32 + (32 << 16)}, v119
        v_mbcnt_lo_u32_b32 v117, vcc_lo, 0
        v_mbcnt_hi_u32_b32 v117, vcc_hi, v117
        s_bcnt1_i32_b64 s37, vcc
        v_add_u32 v117, s{sNX}, v117
        s_add_u32 s{sNX}, s{sNX}, s37
        s_cmp_gt_u32 s{sNX}, {4*NXMAX}
        s_cselect_b64 vcc, 0, vcc
        s_sub_u32 s37, s{sROW}, 8
        v_lshlrev_b32 v117, 3, v117
        v_sub_u32 v117, s37, v117                ; extra entries grow downwards from the first row
        s_mov_b64 exec, vcc
        ds_write_b64 v117, v[118:119]
        s_mov_b64 exec, -1
        ''')
    for sh in ('row_shr:1 row_mask:0xf', 'row_shr:2 row_mask:0xf', 'row_shr:4 row_mask:0xf', 'row_shr:8 row_mask:0xf', 'row_bcast:15 row_mask:0xa', 'row_bcast:31 row_mask:0xc'):
        stubs(f'v_max_u32_dpp v116, v116, v116 {sh} bank_mask:0xf')
    stubs(f'''
    v_readlane_b32 s36, v116, 63                 ; longest segment of this wave
    s_add_u32 s37, s{sNX}, 3
    s_lshr_b32 s37, s37, 2
    s_lshl_b32 s37, s37, 5
    s_sub_u32 s{sU}, s{sROW}, s37
    s_cmp_gt_u32 s{sNX}, {4*NXMAX}
    s_cselect_b32 s37, 65, 0
    s_max_u32 s37, s37, s36
    s_cmp_gt_u32 s37, 64
    s_cbranch_scc0 B_xb
    s_mov_b32 s{sU}, s{sROW}                     ; general case: every phase once per chunk of 32 records
    s_add_u32 s36, s36, 31
    s_lshr_b32 s36, s36, 5
    s_mul_i32 s36, s36, {8*NPH*32}
    s_add_u32 s{sUE}, s{sROW}, s36
    s_mov_b32 s13, s{sFAR}
    s_branch B_xb
    ''')
    q = Seq()
    SL = list(range(-1, NS))
    pq = lambda s: 20 + 4*s
    pm = lambda s: (40, 42) if s < 0 else ((58 + 4*s, 60 + 4*s) if s < 3 else (60 + 4*s, 62 + 4*s))
    pp = lambda s: 54 + 2*(s + 1)
    row(q, 0)
    if fused:
        for k in range(1, 6): row(q, k)
        poll(q, 0, 'd')
    q('s_waitcnt lgkmcnt(0)')
    for s in SL:
        q(f's_add_u32 s36, s{sROW}, {32*s}' if s >= 0 else 's_mov_b32 s36, s13')
        q(f'v_add_u32_sdwa v{T0}, s36, v{vX} {SD} src1_sel:WORD_0')
        q(f'ds_read_b64 {vp(pp(s))}, v{T0}', tag=('ent', s))
    for s in SL: L2s(q, s, pq(s), *pm(s), pp(s))
    if not fused:
        for k in range(1, 6): row(q, k)
    q(f'''
    s_lshl_b32 s36, s99, 16
    s_and_b32 s37, s99, 0xffff0000
    v_mov_b32 v116, s36
    v_mov_b32 v117, s37
    v_mul_f32 v116, 0.15915494, v116
    v_mul_f32 v117, 0.15915494, v117
    v_readfirstlane_b32 s{sKF}, v116
    v_readfirstlane_b32 s{sKF+1}, v117
    ''')
    a_ = a; a = q
    stamp(q)
    a = a_
    import struct, math
    SQ = struct.unpack('<I', struct.pack('<f', math.sqrt(10*math.log2(math.e))))[0]
    def operands(q):
        for k in range(4):
            q(f'''
            v_lshl_or_b32 v{72+2*k}, v{73+2*k}, 16, v{72+2*k}
            v_cndmask_b32 v{W+4+k}, v{72+2*k}, 0, s[56:57]
            v_cndmask_b32 v{W+k}, 0, v{72+2*k}, s[56:57]
            ''')
        if 'ident' in diag:
            q(f'''
            v_lshrrev_b32 v97, 4, v96                ; lane
            v_and_b32 v72, 15, v97
            v_lshrrev_b32 v73, 5, v97
            v_lshlrev_b32 v73, 3, v73
            v_sub_u32 v72, v72, v73                  ; n - 8h
            s_mov_b32 s36, 0x3f80
            s_mov_b32 s37, 0x3f800000
            ''')
            for k in range(4):
                q(f'''
                v_cmp_eq_u32 vcc, {2*k}, v72
                v_mov_b32 v73, s36
                v_mov_b32 v74, s37
                v_cndmask_b32 v75, 0, v73, vcc
                v_cmp_eq_u32 vcc, {2*k+1}, v72
                s_nop 1
                v_cndmask_b32 v75, v75, v74, vcc
                v_cndmask_b32 v{W+4+k}, v75, 0, s[56:57]
                v_cndmask_b32 v{W+k}, 0, v75, s[56:57]
                ''')
        q(f'''
        s_lshl_b32 s36, s3, 10
        s_add_u32 s36, s36, {DST}
        v_add_u32 v97, s36, v96
        ds_write_b128 v97, v[80:83]
        v_lshl_or_b32 v72, v{R+1}, 16, v{R}          ; w_up
        v_lshl_or_b32 v73, v{R+3}, 16, v{R+2}
        v_lshl_or_b32 v74, v{R+6}, 16, v{R+4}
        v_lshl_or_b32 v75, v{R+7}, 16, v{R+5}
        v_lshl_or_b32 v76, v{R+9}, 16, v{R+8}        ; w_rbf
        v_mov_b32 v77, 0
        v_lshlrev_b32 v78, 16, v{R+10}
        v_lshlrev_b32 v79, 16, v{R+11}
        v_mul_f32 v78, {(SQ | 0x80000000):#x}, v78   ; -center*s
        v_mul_f32 v79, {(SQ | 0x80000000):#x}, v79
        v_add_u32 v97, {WST}, v96
        ds_write_b128 v97, v[72:75]
        ds_write_b128 v97, v[76:79] offset:1024
        ''')
        for k in range(100, 104): q(f'v_mov_b32 v{k}, 0')
        for k in range(8):
            q(f'ds_write_b128 v98, v[100:103] offset:{k*8192}')
            for r in range(104 + 19*k, 104 + 19*k + 19): q(f'v_mov_b32 v{r}, 0')
        q(f'v_add_u32 v98, {8*8192}, v98\ns_mov_b64 exec, s[14:15]\nds_write_b128 v98, v[100:103]\ns_mov_b64 exec, -1')
    q(f's_waitcnt vmcnt({len(SL)})')
    operands(q)
    if 'pro' in diag: stamp(q)
    q('s_waitcnt lgkmcnt(0)\ns_barrier')
    q(f'B_xl:\ns_add_u32 s36, s{sU}, 32\ns_cmp_ge_u32 s36, s{sROW}\ns_cbranch_scc1 B_xe')
    L1s(q, 100, 108, off=0); L2s(q, 100, 104, 44, 46, 108)
    q('s_waitcnt vmcnt(0)'); A1(q, 100, 104, (44, 46), 0, p2=108)
    q('s_waitcnt lgkmcnt(0)'); A2(q, 0, 104, (44, 46), 0, p2=108)
    q(f's_cmp_eq_u32 s{sLIVE}, 0\ns_cbranch_scc1 B_pz\ns_add_u32 s{sU}, s{sU}, 32\ns_branch B_xl\nB_xe:')
    for o in q.o[-60:]:
        if o.get('tag') in (('rec', 100), ('ent', 100), ('ret', 100)) or (o['c'] and o['tag'] is None and 'v[10' in (o['t'] or '')): o['maybe'] = True
    q(f's_mov_b32 s{sU}, s{sROW}')
    if 'pro' in diag: stamp(q)
    TP = lambda s, h: 72 + 4*((s + 1) % 6) + 2*h
    def cos2(ss):
        for st in range(4):
            for s in ss:
                for h in (1, 0):
                    t = TP(s, h)
                    q([f'v_cvt_f32_bf16_sdwa v{t}, v{pq(s)+1} dst_sel:DWORD dst_unused:UNUSED_PAD src0_sel:WORD_{h}',
                       f'v_pk_mul_f32 {vp(t)}, {vp(t)}, {sp(sKF)} op_sel_hi:[0,1]',
                       f'v_cos_f32 v{t}, v{t}\nv_cos_f32 v{t+1}, v{t+1}',
                       f'v_cvt_pk_bf16_f32 v{pq(s)+1+2*h}, v{t}, v{t+1}'][st])
    def yprio(tag, on):
        if on: q(f's_cmp_lt_u32 s3, 4\ns_cbranch_scc1 B_yp{tag}\ns_setprio 1\nB_yp{tag}:')
        else: q('s_setprio 0')
    for k in range(0, len(SL), 3):
        if k in pp1: yprio(f'p{k}', pp1.index(k) % 2 == 0)
        for s in SL[k:k+3]:
            q.wait('v', [('rec', s)])
            A1(q, s, pq(s), pm(s), 0, live=False, p2=pp(s))
        cos2(SL[k:k+3])
    for s in SL:
        if 10 + s + 1 in pp1: yprio(f'q{s+1}', pp1.index(10 + s + 1) % 2 == 0)
        q.wait('l', [('ret', s)]); A2(q, s, pq(s), pm(s), 0, p2=pp(s))
    if 'pro' in diag: stamp(q)
    q('B_pz:')
    q(f'B_pe:\ns_mov_b64 s[72:73], 0')
    for v in range(5): q(f'v_mov_b32 v{PK(v)}, v{vKC}\ns_mov_b64 {sp(MK(v))}, 0')
    for k in list(range(G, G+12)) + list(range(U, U+16)) + list(range(56, 100)) + list(range(104, 110)): q(f'v_mov_b32 v{k}, 0')
    sweep_end(q, None)
    q.resolve(a, False)

    MF = 'v_mfma_f32_16x16x32_bf16'
    GS = lambda v: Q0 if v == 24 else G + 4*(v % 3)
    def setprio(q, v, tag):
        if v in prio:
            if prio.index(v) % 2 == 0:
                q(f's_cmp_eq_u32 s{sW24}, 0\ns_cbranch_scc1 B_pr{tag}_{v}\ns_setprio 1\nB_pr{tag}_{v}:')
            else: q('s_setprio 0')
    def step(q, par, v, LB, visit=True):
        av = (v - 3) % NV; ap = par if v >= 3 else 1-par
        bv = (v - 4) % NV
        if v: q.wait('l', [('pr', par, v - 1)])
        q(f'{MF} {vp(ACC(bv),4)}, {vp(XB,4)}, {vp(U,4)}, {vp(ACC(bv),4)}', drop='nomfma' in diag)
        q(f'{MF} {vp(ACC(bv)+4,4)}, {vp(XB,4)}, {vp(U+4,4)}, {vp(ACC(bv)+4,4)}', drop='nomfma' in diag)
        if not visit and v == 3: return
        if visit:
            if v == 0: q.wait('l', [('lst', par, 0)])
            q(f'''
            v_lshrrev_b32 v{T0}, 7, v{LP}
            v_and_or_b32 v{T0}, v{T0}, s{sNM32}, v{vHALF}
            v_cmpx_eq_u32_sdwa {sp(MK(v))}, s{sEP24 if v == 24 else sEPC}, v{LP} src0_sel:DWORD src1_sel:BYTE_0
            v_bfe_u32 v{T1}, v{LP}, 8, 4
            v_lshl_add_u32 v{PK(v)}, v{T1}, 4, v{vKC}
            v_lshrrev_b32_sdwa v{PK(v)}, v{vHALF}, v{LP+1} dst_sel:WORD_1 dst_unused:UNUSED_PRESERVE src0_sel:DWORD src1_sel:DWORD
            ''')
        q.wait('v', [('gat', ap, av)])
        q(f'{MF} {vp(U,4)}, {vp(GS(av),4)}, {vp(W,4)}, 0', drop='nomfma' in diag)
        q(f'{MF} {vp(U+4,4)}, {vp(GS(av),4)}, {vp(W+4,4)}, 0', drop='nomfma' in diag)
        if visit: q(f'buffer_load_dwordx4 {vp(GS(v),4)}, v{T0}, s[4:7], 0 offen {gatf}', tag=('gat', par, v), drop='nodma' in diag)
        q(f's_mov_b64 exec, {sp(MK(bv))}')
        q(f'v_and_b32 v{T0}, s{sFFFF}, v{PK(bv)}')
        q(f'ds_write_b16_d16_hi v{T0}, v{vHALF} offset:{PIMM}', drop='nopw' in diag)
        q(f's_mov_b64 exec, {sp(MK(av))}')
        q(f'v_and_b32 v{T1}, s{sFFFF}, v{PK(av)}')
        q(f'ds_write_b16_d16_hi v{T1}, v{PK(av)} offset:{PIMM}', drop='nopw' in diag)
        q('s_mov_b64 exec, -1')
        if visit and v + 1 < NV: q(f'ds_read_b64 {vp(LP)}, v{vLB} offset:{LB + (v+1)*256}', tag=('lst', par, v+1))
        for k in range(4): q(f'v_cvt_pk_bf16_f32 v{XB+k}, v{U+2*k}, v{U+2*k+1}')
        q(f'ds_read_b128 {vp(U,4)}, v{vPR}', drop='nopr' in diag)
        q(f'ds_read_b128 {vp(U+4,4)}, v{vPR} offset:1024', tag=('pr', par, v), drop='nopr' in diag)
        if visit and v == 23:
            for k in range(4): q(f'v_mov_b32 v{Q0+k}, 0')
    def cntreset(q, off):
        q(f'''
        v_mbcnt_lo_u32_b32 v{T0}, -1, 0
        v_mbcnt_hi_u32_b32 v{T0}, -1, v{T0}
        v_add_u32 v{T0}, s{sST}, v{T0}
        v_and_b32 v{T1}, 31, v{T0}
        v_lshl_add_u32 v{T0}, v{T0}, 2, {off}
        v_lshlrev_b32 v{T1}, 3, v{T1}
        s_mov_b64 exec, {sp(sNG)}
        ds_write_b32 v{T0}, v{T1} offset:{CNT}
        ''')
    q = Seq()
    for par in range(2):
        LB = [L0, L1][par]
        q(f'B_loop{par}:')
        if MAXSW < 1 << 30: q(f's_cmp_gt_u32 s{sSW}, {MAXSW}\ns_cbranch_scc1 B_epi')
        q(f'''
        s_cmp_lt_u32 s{sU}, s{sUE}
        s_cselect_b32 s36, 1, s{sSP}
        s_cmp_eq_u32 s36, 0
        s_cbranch_scc1 B_free{par}
        ''')
        q(f'ds_read_b64 {vp(LP)}, v{vLB} offset:{LB}', tag=('lst', par, 0))
        for v in range(NV):
            setprio(q, v, par)
            step(q, par, v, LB)
            qd = lambda s: Q1 - 4*(s % 2); mk = lambda s: (40 + 4*(s % 2), 42 + 4*(s % 2))
            for s in range(NS):
                if v == APOS[s] + DA + 1: q.wait('l', [('ret', s)]); A2(q, s, qd(s), mk(s), 1-par)
            if v == APOS[-1] + DA + 1: signal(q, DNA)
            if v == NV - 2: reads_done(q, par)
            for s in range(NS):
                if v == APOS[s]: L2s(q, s, qd(s), *mk(s))
            if v == 1: peek(q, DNR)
            if v == 2:
                q.wait('l', ['peek'])
                if 'drs' in diag: stamp(q)
                check(q, DNR)
                if 'drs' in diag: stamp(q)
                reappend(q, 1-par)
                if 'drs' in diag: stamp(q)
            for s in range(NS):
                if v == APOS[s] - 1: L1s(q, s)
                if v == APOS[s] + DA: q.wait('v', [('rec', s)]); A1(q, s, qd(s), mk(s), 1-par)
            if v == 0:
                if par: q('s_movk_i32 s36, 800')
                cntreset(q, 's36' if par else '0')
                q(f'''
                s_mov_b64 exec, 1
                v_mov_b32 v{T0}, s{sSW}
                v_mov_b32 v{T1}, 0
                ds_max_u32 v{T1}, v{T0} offset:{FLAG}
                s_mov_b64 exec, -1
                ''')
        sweep_end(q, par)
    q('s_branch B_loop0')
    q.resolve(a, True)
    q = Seq()
    q(f'''
    B_free1:
    s_mov_b32 s{sDID}, {L1 - L0}
    s_branch B_free
    B_free0:
    s_mov_b32 s{sDID}, 0
    B_free:
    v_mov_b32 v{T0}, 0
    v_add_u32 v{vLB}, s{sDID}, v{vLB}
    ds_read_b32 v{vF}, v{T0} offset:{FLAG}
    ''')
    q(f'ds_read_b64 {vp(LP)}, v{vLB} offset:{L0}', tag=('lst', 0, 0))
    q(f'''
    s_waitcnt lgkmcnt(1)
    v_readfirstlane_b32 s36, v{vF}
    s_add_u32 s36, s36, 1
    s_cmp_lt_u32 s36, s{sSW}
    s_cbranch_scc1 B_epi
    ''')
    for v in (22, 23, 24): q('buffer_x', tag=('gat', 1, v)); q.o[-1]['t'] = ''
    for v in range(NV):
        setprio(q, v, 'f')
        step(q, 0, v, L0)
        if v == 0:
            q(f's_cmp_lg_u32 s{sDID}, 0\ns_cselect_b32 s36, 800, 0')
            cntreset(q, 's36'); signal(q, DNA)
        if v == NV - 2: reads_done(q, 0)
    sweep_end(q, 0, adv=False)
    q(f'''
    v_subrev_u32 v{vLB}, s{sDID}, v{vLB}
    s_cmp_lg_u32 s{sDID}, 0
    s_cbranch_scc1 B_loop0
    s_branch B_loop1
    ''')
    q.resolve(a, False)

    a.label('B_epi')
    stamp(a)
    a(f'''
    s_setprio 0
    s_load_dwordx2 s[72:73], s[0:1], {K_OUT}
    s_lshl_b32 s36, s{sR0}, 5
    s_lshl_b32 s43, s{sRN}, 5
    v_mbcnt_lo_u32_b32 v{vLB}, -1, 0
    v_mbcnt_hi_u32_b32 v{vLB}, -1, v{vLB}        ; lane
    s_lshl_b32 s38, s{sST}, 9
    s_lshl_b32 s39, s{sST}, 8
    s_add_u32 s40, s39, {L1}                     ; piece 1
    s_add_u32 s39, s39, {L0}                     ; piece 0
    s_mul_i32 s41, s3, {TSZ}
    s_add_u32 s41, s41, {TBL}                    ; piece 2
    v_lshlrev_b32 v{vX}, 4, v{vLB}
    ''')
    srd(a, 12, 's54', 's55', 's36', 's43')
    piece = lambda pr: (39 + min(pr // 6, 2), (pr % 6)*1024)
    q = Seq()
    for v in (22, 23, 24): q('buffer_x', tag=('gat', 1, v)); q.o[-1]['t'] = ''
    q('s_waitcnt lgkmcnt(0)')
    def mdma(pr):
        sg, off = piece(pr)
        q(f's_add_u32 m0, s{sg}, {off}\ns_add_u32 s42, s38, {pr*1024}')
        q(f'buffer_load_dwordx4 v{vX}, s[12:15], s42 offen {mdf} lds', tag=('m', pr))
    for v in range(4):
        for pr in range(EDM*v, EDM*v + EDM): mdma(pr)
        step(q, 0, v, L0, visit=False)
    t = Asm(); srd(t, 8, 's72', 's73', 's36', 's43'); q('\n'.join(t.l))
    if 'epi' in diag: stamp(q)
    WU, W0, W1, WR, CS, RB, TT, DD, MM, A0, VV = 8, 10, 12, 14, 0, 16, 20, 24, 28, 32, 48
    TMP = 7
    q(f'''
    v_lshrrev_b32 v3, 4, v{vLB}                  ; q
    v_and_b32 v2, 15, v{vLB}                     ; e
    v_add_u32 v5, {WST}, v{vX}
    ds_read_b128 v[44:47], v5
    ds_read_b128 v[48:51], v5 offset:1024
    s_lshl_b32 s37, s3, 10
    s_add_u32 s37, s37, {DST}
    v_lshl_add_u32 v5, v2, 1, s37
    v_lshlrev_b32 v4, 5, v2
    v_lshl_add_u32 v4, v3, 3, v4                 ; e*32 + q*8
    v_add_u32 v2, s39, v4
    v_add_u32 v3, s40, v4
    v_add_u32 v4, s41, v4
    s_mov_b32 s43, 0xffff0000
    s_mov_b32 s44, {SQ:#x}
    s_mov_b32 s45, {SQ:#x}
    v_mov_b32 v{RB+1}, 0
    v_mov_b32 v{RB+3}, 0
    v_mov_b32 v{W0+1}, 0
    v_mov_b32 v{W1+1}, 0
    v_mov_b32 v{WR+1}, 0
    ''')
    def drd(p):
        for h in range(2): q(f'ds_read_u16 v{DD + 2*(p % 2) + h}, v5 offset:{32*(2*p+h)}', tag=('d', p))
    drd(0); drd(1)
    q(f'''
    s_waitcnt lgkmcnt(4)
    v_mov_b32 v{WU}, v44
    v_mov_b32 v{WU+1}, v45
    v_mov_b32 v{W0}, v46
    v_mov_b32 v{W1}, v47
    v_mov_b32 v{WR}, v48
    v_mov_b32 v{CS}, v50
    v_mov_b32 v{CS+1}, v51
    ''')
    MF = 'v_mfma_f32_16x16x16_bf16'
    HS = lambda p: (0, 1) if p < 12 else (0,)
    VR = lambda p, h: VV + 4*h
    lds = lambda v: (2 + min(v // 12, 2), (v % 12)*512)
    def E1(p):
        d = DD + 2*(p % 2); H2 = HS(p)
        q.wait('l', [('d', p)])
        for h in H2: q(f'v_lshlrev_b32 v{d+h}, 16, v{d+h}')
        for h in H2: q(f'v_pk_fma_f32 {vp(TT+2*h)}, {vp(d)}, s[44:45], {vp(CS)} op_sel:[{h},0,0] op_sel_hi:[{h},0,1]')
        if p + 2 <= 12: drd(p + 2)
        for h in H2: q(f'v_pk_mul_f32 {vp(TT+2*h)}, {vp(TT+2*h)}, {vp(TT+2*h)} neg_lo:[0,1] neg_hi:[0,1]')
        for h in H2: q(f'v_exp_f32 v{TT+2*h}, v{TT+2*h}\nv_exp_f32 v{TT+2*h+1}, v{TT+2*h+1}')
        if 4*EDM + p < 13: mdma(4*EDM + p)
        for h in H2: q(f'v_cvt_pk_bf16_f32 v{RB+2*h}, v{TT+2*h}, v{TT+2*h+1}')
        for h in H2:
            q(f'{MF} {vp(A0+8*h,4)}, {vp(W0)}, {vp(RB+2*h)}, 0')
            q(f'{MF} {vp(A0+8*h+4,4)}, {vp(W1)}, {vp(RB+2*h)}, 0')
    def E2(p):
        H2 = HS(p)
        q.wait('v', [('m', p)])
        for h in H2:
            b, off = lds(2*p + h)
            q(f'ds_read_b64 {vp(MM + 2*h)}, v{b} offset:{off}', tag=('mm', p))
        for k in (0, 2):
            for h in H2: q(f'v_pk_mul_f32 {vp(ACC(2*p+h)+k)}, {vp(ACC(2*p+h)+k)}, {vp(A0+8*h+k)}')
        for k in (0, 2):
            for h in H2: q(f'v_pk_fma_f32 {vp(ACC(2*p+h)+k)}, {vp(ACC(2*p+h)+4+k)}, {vp(A0+8*h+4+k)}, {vp(ACC(2*p+h)+k)}')
        for k in (0, 1):
            for h in H2: q(f'v_cvt_pk_bf16_f32 v{ACC(2*p+h)+k}, v{ACC(2*p+h)+2*k}, v{ACC(2*p+h)+2*k+1}')
        for h in H2: q(f'{MF} {vp(VR(p,h),4)}, {vp(WR)}, {vp(RB+2*h)}, 0')
        for h in H2: q(f'{MF} {vp(ACC(2*p+h)+4,4)}, {vp(WU)}, {vp(ACC(2*p+h))}, 0')
    def E3(p):
        H2 = HS(p)
        q.wait('l', [('mm', p)])
        for k in (0, 1):
            for h in H2:
                q(f'v_lshlrev_b32 v{ACC(2*p+h)+2*k}, 16, v{MM+2*h+k}\nv_and_b32 v{ACC(2*p+h)+2*k+1}, s43, v{MM+2*h+k}')
        for k in (0, 2):
            for h in H2: q(f'v_pk_fma_f32 {vp(ACC(2*p+h)+k)}, {vp(ACC(2*p+h)+4+k)}, {vp(VR(p,h)+k)}, {vp(ACC(2*p+h)+k)}')
        for k in (0, 1):
            for h in H2: q(f'v_cvt_pk_bf16_f32 v{ACC(2*p+h)+k}, v{ACC(2*p+h)+2*k}, v{ACC(2*p+h)+2*k+1}')
        sg, off2 = piece(p)
        q(f's_add_u32 s42, s{sg}, {off2}\nv_add_u32 v{TMP}, s42, v{vX}')
        for h in H2:
            b, off = lds(2*p + h)
            q(f'ds_write_b64 v{b}, {vp(ACC(2*p+h))} offset:{off}')
        q(f'ds_read_b128 {vp(ACC(min(2*p+1, 24)),4)}, v{TMP}', tag=('o', p))
    def ST(pr):
        A = ACC(min(2*pr + 1, 24))
        q(f's_add_u32 s42, s38, {pr*1024}')
        q.wait('l', [('o', pr)])
        q(f'buffer_store_dwordx4 {vp(A,4)}, v{vX}, s[8:11], s42 offen {stf}')
    E1(0)
    if 'epi' in diag: stamp(q, T0=TT, T1=TT+1)
    for p in range(12):
        if p in ep1: yprio(f'e{p}', ep1.index(p) % 2 == 0)
        E2(p); E1(p + 1)
        if p >= 1: ST(p - 1)
        E3(p)
    ST(11)
    if 'epi' in diag: stamp(q, T0=TT, T1=TT+1)
    q('s_cmp_ge_u32 s3, 4\ns_cbranch_scc1 B_last')
    E2(12); E3(12)
    q('s_mov_b32 exec_hi, 0')
    ST(12)
    q.resolve(a, False)
    a.label('B_last')
    if 'stamp' in diag:
        a('s_mov_b64 exec, -1\ns_waitcnt vmcnt(0)')
        stamp(a); stamp(a, True)
    a.label('B_end')
    a('s_endpgm')
    out = a.l + stubs.l
    for l in late: out += l
    return out
```
